```python
import torch

def _softmax(x, axis=-1):
    return torch.softmax(x, dim=axis)
def _gelu(x):
    return torch.nn.functional.gelu(x, approximate="tanh")
def _silu(x):
    return torch.nn.functional.silu(x)
def _sigmoid(x):
    return torch.sigmoid(x)
def _layernorm(x, axis=-1, eps=1e-5):
    m = x.mean(dim=axis, keepdim=True)
    v = x.var(dim=axis, keepdim=True, unbiased=False)
    return (x - m) / torch.sqrt(v + eps)
def _scatter_add(tgt, idx, src, axis=0):
    return tgt.clone().index_add_(axis, idx, src)
def _segment_sum(src, seg, n):
    out = torch.zeros((n,) + src.shape[1:], dtype=src.dtype)
    return out.index_add_(0, seg, src)
def _pad(x, pw):
    flat = tuple(v for pair in reversed(pw) for v in pair)
    return torch.nn.functional.pad(x, flat)

kernel_name = 'concat_heads__grouped_kv_mqa__linear_kernel_hedgehog__prompt'

def setup_inputs():

    _w = (lambda a: (lambda t: t.to(torch.bfloat16) if t.is_floating_point() else t)(torch.as_tensor(a)))
    def _A_setup():
        B, S, D, H = 1, 2048, 640, 32
        Dh = D // H
        return {
            "x": _w((lambda *s: torch.randn(*s, dtype=torch.bfloat16) * 0.05)(B, S, D)),
            "wq": _w((lambda *s: torch.randn(*s, dtype=torch.bfloat16) * 1.6)(D, H * Dh)),
            "wk": _w((lambda *s: torch.randn(*s, dtype=torch.bfloat16) * 1.6)(D, Dh)),
            "wv": _w((lambda *s: torch.randn(*s, dtype=torch.bfloat16) * 0.1)(D, Dh)),
            "wo": _w((lambda *s: torch.randn(*s, dtype=torch.bfloat16) * 0.1)(H * Dh, D)),
        }
    _A_in = _A_setup()

    def _B_setup():
        B, S, D, H = 1, 2048, 640, 32
        Dh = D // H
        return {
            "x": _w((lambda *s: torch.randn(*s, dtype=torch.bfloat16) * 0.4)(B, S, D)),
            "wqkv": _w((lambda *s: torch.randn(*s, dtype=torch.bfloat16) * 0.4)(D, 3 * D)),
            "w_phi": _w((lambda *s: torch.randn(*s, dtype=torch.bfloat16) * 0.4)(H, Dh, Dh) * (Dh ** -0.5)),
            "wo": _w((lambda *s: torch.randn(*s, dtype=torch.bfloat16) * 0.05)(D, D)),
        }
    _B_in = _B_setup()

    return {
        "A_x": _A_in["x"],
        "A_wq": _A_in["wq"],
        "A_wk": _A_in["wk"],
        "A_wv": _A_in["wv"],
        "A_wo": _A_in["wo"],
        "B_x": _B_in["x"],
        "B_wqkv": _B_in["wqkv"],
        "B_w_phi": _B_in["w_phi"],
        "B_wo": _B_in["wo"],
    }

def reference(A_x, A_wq, A_wk, A_wv, A_wo, B_x, B_wqkv, B_w_phi, B_wo):
    def _A_ref(x, wq, wk, wv, wo):
        B, S, D = x.shape
        H = 32
        Dh = D // H
        q = (lambda x, *d: x.permute(*d))((x @ wq).reshape(B, S, H, Dh), 0, 2, 1, 3)
        k = x @ wk
        v = x @ wv
        scores = torch.einsum("bhqd,bkd->bhqk", q, k) * (Dh ** -0.5)
        p = _softmax(scores, axis=-1)
        o = torch.einsum("bhqk,bkd->bhqd", p, v)
        return (lambda x, *d: x.permute(*d))(o, 0, 2, 1, 3).reshape(B, S, H * Dh) @ wo

    def _B_ref(x, wqkv, w_phi, wo):
        B, S, D = x.shape
        H = 32; Dh = D // H
        qkv = (lambda x, *d: x.permute(*d))((x @ wqkv).reshape(B, S, 3, H, Dh), 2, 0, 3, 1, 4)
        q, k, v = qkv[0], qkv[1], qkv[2]
        pq = torch.einsum("bhsd,hdf->bhsf", q, w_phi)
        pk = torch.einsum("bhsd,hdf->bhsf", k, w_phi)
        phi_q = torch.concatenate([_softmax(pq, axis=-1), _softmax(-pq, axis=-1)], axis=-1)
        phi_k = torch.concatenate([_softmax(pk, axis=-1), _softmax(-pk, axis=-1)], axis=-1)
        kv = torch.einsum("bhsf,bhsd->bhfd", phi_k, v)
        z  = torch.einsum("bhsf->bhf", phi_k)
        num = torch.einsum("bhqf,bhfd->bhqd", phi_q, kv)
        den = torch.einsum("bhqf,bhf->bhq", phi_q, z)[..., None] + 1e-6
        o = num / den
        return (lambda x, *d: x.permute(*d))(o, 0, 2, 1, 3).reshape(B, S, D) @ wo

    a = _A_ref(A_x, A_wq, A_wk, A_wv, A_wo)
    b = _B_ref(B_x, B_wqkv, B_w_phi, B_wo)
    return torch.concatenate([a, b], axis=-1)
```

```python
NAME = "concat_heads__grouped_kv_mqa__linear_kernel_hedgehog__prompt"

WS_Q    = 0x000000
WS_KV   = 0x300000
WS_KMAX = 0x340000
WS_OA   = 0x400000
WS_OB   = 0x700000
WS_PQ   = 0xA00000
WS_PHIQ = 0xA00000
WS_KVP  = 0x1000000
WS_KVF  = 0x1200000
WS_BYTES = 268435456

class E:
    def __init__(self):
        self.l = []
    def __call__(self, s):
        for x in s.split("\n"):
            x = x.strip()
            if x:
                self.l.append("  " + x)
    def label(self, n):
        self.l.append(n + ":")
    def c(self, s):
        self.l.append("  ; " + s)
    def raw(self, s):
        self.l.append(s)
    def text(self):
        return "\n".join(self.l) + "\n"

def vr(a, n):
    return f"v[{a}:{a+n-1}]" if n > 1 else f"v{a}"
def sr(a, n):
    return f"s[{a}:{a+n-1}]" if n > 1 else f"s{a}"

def kernel_header(e, name):
    e.raw(f".globl {name}")
    e.raw(".p2align 8")
    e.raw(f".type {name},@function")
    e.raw(f"{name}:")

def kernel_desc(name, vgprs, sgprs=102, agprs=0):
    acc = (vgprs + 3) // 4 * 4
    return f""".p2align 6
.amdhsa_kernel {name}
  .amdhsa_next_free_vgpr {acc + agprs}
  .amdhsa_next_free_sgpr {sgprs}
  .amdhsa_accum_offset {acc}
  .amdhsa_group_segment_fixed_size 0
  .amdhsa_kernarg_size 96
  .amdhsa_user_sgpr_count 2
  .amdhsa_user_sgpr_kernarg_segment_ptr 1
  .amdhsa_system_sgpr_workgroup_id_x 1
  .amdhsa_float_denorm_mode_32 3
.end_amdhsa_kernel
"""

def make_srd(e, d, base, nbytes):
    e(f"s_mov_b32 s{d}, s{base}")
    e(f"s_and_b32 s{d+1}, s{base+1}, 0xffff")
    e(f"s_mov_b32 s{d+2}, {nbytes}")
    e(f"s_mov_b32 s{d+3}, 0x00020000")

WS_STAMP = 0x2000000
def stamp(e, idx, sreg_ws=4, tmp=90):
    pass

import struct
def f2h(x): return "0x%08x" % struct.unpack("<I", struct.pack("<f", x))[0]
LOG2E = 1.4426950408889634

def features(e, p, ep, em, t):
    mx, mn = t, t+1
    e(f"v_max3_f32 v{mx}, v{p}, v{p+1}, v{p+2}")
    e(f"v_min3_f32 v{mn}, v{p}, v{p+1}, v{p+2}")
    for i in range(3, 19, 2):
        e(f"v_max3_f32 v{mx}, v{mx}, v{p+i}, v{p+i+1}")
        e(f"v_min3_f32 v{mn}, v{mn}, v{p+i}, v{p+i+1}")
    e(f"v_max_f32 v{mx}, v{mx}, v{p+19}")
    e(f"v_min_f32 v{mn}, v{mn}, v{p+19}")
    e(f"v_mul_f32 v{mx}, {f2h(-LOG2E)}, v{mx}")
    e(f"v_mul_f32 v{mn}, {f2h(LOG2E)}, v{mn}")
    for i in range(20):
        e(f"v_fma_f32 v{em+i}, -v{p+i}, s98, v{mn}")
        e(f"v_fma_f32 v{ep+i}, v{p+i}, s98, v{mx}")
    for i in range(20):
        e(f"v_exp_f32 v{ep+i}, v{ep+i}")
        e(f"v_exp_f32 v{em+i}, v{em+i}")
    sp, sm = t+2, t+4
    e(f"v_pk_add_f32 v[{sp}:{sp+1}], v[{ep}:{ep+1}], v[{ep+2}:{ep+3}]")
    e(f"v_pk_add_f32 v[{sm}:{sm+1}], v[{em}:{em+1}], v[{em+2}:{em+3}]")
    for i in range(4, 20, 2):
        e(f"v_pk_add_f32 v[{sp}:{sp+1}], v[{sp}:{sp+1}], v[{ep+i}:{ep+i+1}]")
        e(f"v_pk_add_f32 v[{sm}:{sm+1}], v[{sm}:{sm+1}], v[{em+i}:{em+i+1}]")
    e(f"v_add_f32 v{sp}, v{sp}, v{sp+1}")
    e(f"v_add_f32 v{sm}, v{sm}, v{sm+1}")
    e(f"v_rcp_f32 v{sp}, v{sp}")
    e(f"v_rcp_f32 v{sm}, v{sm}")
    e("s_nop 0")
    for i in range(0, 20, 2):
        e(f"v_pk_mul_f32 v[{ep+i}:{ep+i+1}], v[{ep+i}:{ep+i+1}], v[{sp}:{sp+1}] op_sel_hi:[1,0]")
        e(f"v_pk_mul_f32 v[{em+i}:{em+i+1}], v[{em+i}:{em+i+1}], v[{sm}:{sm+1}] op_sel_hi:[1,0]")
```

```python
from common import *
import os
VAR = os.environ.get("VAR","")

def merge(a, b):
    out = []
    na, nb = len(a), len(b)
    j = 0
    for i, x in enumerate(a):
        out.append(x)
        want = max(i + 1, -(-(i + 1) * nb // na))
        while j < min(want, nb):
            out.append(b[j]); j += 1
    out += b[j:]
    return out

class Gemm:
    def __init__(self, stg_b, nstg, nch, nx, acc=16, xf=(96,112), wf=(128,148), misc=168):
        self.STG_B, self.NSTG, self.NCH, self.NX = stg_b, nstg, nch, nx
        self.ACC = acc; self.XF = xf; self.WF = wf
        m = misc
        self.XA0b, self.XA1b, self.WAb = m, m + 1, m + 2
        self.XA0, self.XA1, self.WA = m + 3, m + 4, m + 5
        self.T = m + 6
        self.NV = m + 16
        self.VOX = 16
        self.VOW = 24
        self.LT = 32
    def acc(self, mt, nt): return self.ACC + (mt*4 + nt)*4
    def reads(self, ks, buf):
        r = []
        if "nolds" in VAR: return ["s_nop 0"]
        xa = self.XA0 if ks == 0 else self.XA1
        for nt in range(4):
            r.append(f"ds_read_b128 {vr(self.XF[buf]+4*nt,4)}, v{xa} offset:{nt*2048}")
        for mt in range(5):
            for b in range(2):
                r.append(f"ds_read_b64_tr_b16 {vr(self.WF[buf]+4*mt+2*b,2)}, v{self.WA} offset:{(32*ks+8*b)*160 + 8*mt}")
        return r
    def mfmas(self, buf):
        r = []
        if "nomfma" in VAR: return ["s_nop 0"]*20
        for mt in range(5):
            for nt in range(4):
                a = self.acc(mt, nt)
                r.append(f"v_mfma_f32_16x16x32_bf16 {vr(a,4)}, {vr(self.WF[buf]+4*mt,4)}, {vr(self.XF[buf]+4*nt,4)}, {vr(a,4)}")
        return r
    def loader_setup(self, e, s_wstride, xstride=1280, lane=1):
        T = self.LT
        e(f"v_lshrrev_b32 v{T}, 3, v{lane}")
        e(f"v_and_b32 v{T+1}, 7, v{lane}")
        e(f"v_xor_b32 v{T+1}, v{T+1}, v{T}")
        e(f"v_lshlrev_b32 v{T+1}, 4, v{T+1}")
        e(f"v_mul_u32_u24 v{T}, {xstride}, v{T}")
        e(f"v_add_u32 v{self.VOX}, v{T}, v{T+1}")
        for j in range(1, self.NX):
            e(f"v_add_u32 v{self.VOX+j}, {8*xstride*j}, v{self.VOX}")
        for j in range(5):
            e(f"v_add_u32 v{T}, {64*j}, v{lane}")
            e(f"v_mul_u32_u24 v{T+1}, 6554, v{T}")
            e(f"v_lshrrev_b32 v{T+1}, 16, v{T+1}")
            e(f"v_mul_u32_u24 v{T+2}, 10, v{T+1}")
            e(f"v_sub_u32 v{T+2}, v{T}, v{T+2}")
            e(f"v_and_b32 v{T+3}, 0x33, v{T+1}")
            e(f"v_and_b32 v{T+4}, 4, v{T+1}")
            e(f"v_lshlrev_b32 v{T+4}, 1, v{T+4}")
            e(f"v_and_b32 v{T+5}, 8, v{T+1}")
            e(f"v_lshrrev_b32 v{T+5}, 1, v{T+5}")
            e(f"v_or3_b32 v{T+3}, v{T+3}, v{T+4}, v{T+5}")
            e(f"v_mul_lo_u32 v{T+3}, v{T+3}, s{s_wstride}")
            e(f"v_lshl_add_u32 v{self.VOW+j}, v{T+2}, 4, v{T+3}")
    def dma(self, e, s_x, s_w, s_ldsx, s_ldsw, srdx="s[8:11]", srdw="s[12:15]"):
        e(f"s_mov_b32 m0, s{s_ldsx}")
        for j in range(self.NX):
            e("s_nop 0" if j == 0 else "s_add_u32 m0, m0, 1024")
            if j: e("s_nop 0")
            e(f"buffer_load_dwordx4 v{self.VOX+j}, {srdx}, s{s_x} offen lds")
        e(f"s_mov_b32 m0, s{s_ldsw}")
        for j in range(5):
            e("s_nop 0" if j == 0 else "s_add_u32 m0, m0, 1024")
            if j: e("s_nop 0")
            e(f"buffer_load_dwordx4 v{self.VOW+j}, {srdw}, s{s_w} offen lds")
    def loader_main(self, e, name, kmod, tail_hook=None):
        per = self.NX + 5
        NS, NCH = self.NSTG, self.NCH
        def advance():
            e("s_lshl_b32 s28, s23, 7"); e("s_add_u32 s28, s28, s20")
            e("s_mul_i32 s29, s23, s22"); e("s_add_u32 s29, s29, s21")
            e("s_add_u32 s23, s23, 1"); e(f"s_cmp_ge_u32 s23, {kmod}"); e("s_cselect_b32 s23, 0, s23")
        def slotadv():
            e(f"s_add_u32 s24, s24, {self.STG_B}"); e(f"s_add_u32 s25, s25, {self.STG_B}")
            e("s_add_u32 s26, s26, 1"); e(f"s_cmp_ge_u32 s26, {NS}")
            e(f"s_cselect_b32 s30, {NS*self.STG_B}, 0"); e("s_cselect_b32 s26, 0, s26")
            e("s_sub_u32 s24, s24, s30"); e("s_sub_u32 s25, s25, s30")
        e("s_mov_b32 s26, 0")
        e("s_mov_b32 s27, 2")
        e("s_mov_b32 s31, 0")
        e.label(f"{name}_lpro")
        advance(); self.dma(e, 28, 29, 24, 25); slotadv()
        e("s_sub_u32 s27, s27, 1"); e("s_cmp_lg_u32 s27, 0"); e(f"s_cbranch_scc1 {name}_lpro")
        e("s_cmp_lg_u32 s31, 0"); e(f"s_cbranch_scc1 {name}_lpro2")
        e(f"s_waitcnt vmcnt({per})")
        e("s_barrier")
        if NS > 2:
            e("s_mov_b32 s31, 1"); e(f"s_mov_b32 s27, {NS-2}"); e(f"s_branch {name}_lpro")
        e.label(f"{name}_lpro2")
        e(f"s_mov_b32 s27, {NCH-NS}")
        e.label(f"{name}_lloop")
        e(f"s_waitcnt vmcnt({per*(NS-2)})")
        e("s_barrier")
        advance()
        if "nodma" not in VAR: self.dma(e, 28, 29, 24, 25)
        slotadv()
        e("s_sub_u32 s27, s27, 1"); e("s_cmp_lg_u32 s27, 0"); e(f"s_cbranch_scc1 {name}_lloop")
        for c in range(NCH-NS, NCH):
            rem = max(NCH - 1 - (c + 1), 0)
            if tail_hook and c > NCH-NS:
                ex = tail_hook.extra(c) if hasattr(tail_hook, "extra") else 0
                if ex and c < NCH-1:
                    e("s_cmp_eq_u32 s40, 0"); e(f"s_cbranch_scc1 {name}_tw{c}a")
                    e(f"s_waitcnt vmcnt({per*rem})"); e(f"s_branch {name}_tw{c}b")
                    e.label(f"{name}_tw{c}a"); e(f"s_waitcnt vmcnt({per*rem + ex})"); e.label(f"{name}_tw{c}b")
                else:
                    e(f"s_waitcnt vmcnt({per*rem})")
            else:
                e(f"s_waitcnt vmcnt({per*rem})")
            e("s_barrier")
            if tail_hook: tail_hook(e, c, "issue")
    def compute_setup(self, e, s_xbase, s_wbase, lane=1):
        T = self.T
        e(f"v_and_b32 v{T}, 15, v{lane}")
        e(f"v_lshrrev_b32 v{T+1}, 4, v{lane}")
        e(f"v_and_b32 v{T+2}, 7, v{T}")
        e(f"v_xor_b32 v{T+2}, v{T+2}, v{T+1}")
        e(f"v_lshlrev_b32 v{T+2}, 4, v{T+2}")
        e(f"v_lshl_add_u32 v{T+2}, v{T}, 7, v{T+2}")
        e(f"v_add_u32 v{self.XA0b}, s{s_xbase}, v{T+2}")
        e(f"v_xor_b32 v{self.XA1b}, 64, v{self.XA0b}")
        e(f"v_lshrrev_b32 v{T+3}, 1, v{T+1}")
        e(f"v_lshlrev_b32 v{T+3}, 4, v{T+3}")
        e(f"v_and_b32 v{T+4}, 1, v{T+1}")
        e(f"v_lshl_add_u32 v{T+3}, v{T+4}, 2, v{T+3}")
        e(f"v_lshrrev_b32 v{T+4}, 2, v{T}")
        e(f"v_add_u32 v{T+3}, v{T+3}, v{T+4}")
        e(f"v_mul_u32_u24 v{T+3}, 160, v{T+3}")
        e(f"v_and_b32 v{T+4}, 3, v{lane}")
        e(f"v_mul_u32_u24 v{T+4}, 40, v{T+4}")
        e(f"v_add_u32 v{T+3}, v{T+3}, v{T+4}")
        e(f"v_add_u32 v{self.WAb}, s{s_wbase}, v{T+3}")
    def set_read_stage(self, s_stage):
        return [f"v_add_u32 v{self.XA0}, s{s_stage}, v{self.XA0b}",
                f"v_add_u32 v{self.XA1}, s{s_stage}, v{self.XA1b}",
                f"v_add_u32 v{self.WA}, s{s_stage}, v{self.WAb}"]
    def compute_main(self, e, name, st=None):
        for mt in range(5):
            for nt in range(4):
                for r in range(4): e(f"v_mov_b32 v{self.acc(mt,nt)+r}, 0")
        e("s_mov_b32 s26, 0")
        for x in self.set_read_stage(26): e(x)
        e(f"s_mov_b32 s27, {self.NCH}")
        e("s_barrier")
        if st: st.mark(e)
        for x in self.reads(0, 0): e(x)
        e(".p2align 6")
        e.label(f"{name}_kloop")
        e("s_waitcnt lgkmcnt(0)")
        for x in merge(self.mfmas(0), self.reads(1, 1)): e(x)
        e("s_waitcnt lgkmcnt(0)")
        e("s_barrier")
        other = [f"s_add_u32 s26, s26, {self.STG_B}", f"s_cmp_ge_u32 s26, {self.NSTG*self.STG_B}", "s_cselect_b32 s26, 0, s26"]
        other += self.set_read_stage(26)
        other += self.reads(0, 0)
        other.append("s_sub_u32 s27, s27, 1")
        for x in merge(self.mfmas(1), other): e(x)
        e("s_cmp_lg_u32 s27, 0")
        e(f"s_cbranch_scc1 {name}_kloop")
        e("s_waitcnt lgkmcnt(0)")
```

```python
from common import *
from gemm2 import *
from stamp import Stamps
import os
ST = Stamps(os.environ.get("STAMP")=="1")
VAR = os.environ.get("VAR","")
C_SCALE = (20 ** -0.5) * LOG2E
STG_B, NSTG = 36864, 4
W_OFF = 16384
L_PHI = NSTG*STG_B
L_ZERO = L_PHI + 8192
LDS_K1 = L_ZERO + 1024
L_V = 0
L_KH = 24576
L_PK = 36864
L_WK = 2*STG_B
L_WV = 3*STG_B
L_RED = 0
QT_B = 1536
TILE_B = 3584

def phi_addr(e, G, dst, s_hbase, lane=1):
    T = G.T
    e(f"v_lshrrev_b32 v{T}, 4, v{lane}")
    e(f"v_and_b32 v{T+1}, 3, v{lane}")
    e(f"v_cmp_eq_u32 vcc, v{T}, v{T+1}")
    e(f"v_add_u32 v{T}, s{s_hbase}, v{T}")
    e(f"v_mul_u32_u24 v{T}, 800, v{T}")
    e(f"v_bfe_u32 v{T+1}, v{lane}, 2, 2")
    e(f"v_mul_u32_u24 v{T+1}, 40, v{T+1}")
    e(f"v_add3_u32 v{T}, v{T}, v{T+1}, s99")
    e(f"v_mov_b32 v{T+1}, {L_ZERO}")
    e(f"v_cndmask_b32 v{dst}, v{T+1}, v{T}, vcc")

def phi_frags(e, addr, base):
    for mt in range(5):
        for ks in range(3):
            d = base + (mt*3+ks)*4
            e(f"ds_read_b64_tr_b16 v[{d}:{d+1}], v{addr} offset:{(8*ks)*40 + 8*mt}")
            if ks < 2:
                e(f"ds_read_b64_tr_b16 v[{d+2}:{d+3}], v{addr} offset:{(8*ks+4)*40 + 8*mt}")
            else:
                e(f"v_mov_b32 v{d+2}, 0"); e(f"v_mov_b32 v{d+3}, 0")

def phi_mfma(e, fr, kp, out):
    for ks in range(3):
        for mt in range(5):
            c = "0" if ks == 0 else vr(out+4*mt, 4)
            e(f"v_mfma_f32_16x16x32_bf16 {vr(out+4*mt,4)}, {vr(fr+(mt*3+ks)*4,4)}, {vr(kp+4*ks,4)}, {c}")

def pack_nt(e, G, nt, dst, scale=None):
    for mt in range(5):
        a = G.acc(mt, nt)
        if scale:
            for r in range(4): e(f"v_mul_f32 v{a+r}, {scale}, v{a+r}")
    for mt in range(5):
        a = G.acc(mt, nt)
        e(f"v_cvt_pk_bf16_f32 v{dst+2*mt}, v{a}, v{a+1}")
        e(f"v_cvt_pk_bf16_f32 v{dst+2*mt+1}, v{a+2}, v{a+3}")

def role_a(e, G, name):
    T = G.T
    XK = 96
    e("s_lshl_b32 s50, s41, 7"); e("s_lshl_b32 s51, s42, 5"); e("s_add_u32 s50, s50, s51")
    e("s_mul_i32 s51, s50, 1280"); e("s_mul_i32 s52, s3, 320"); e("s_add_u32 s51, s51, s52")
    e(f"v_and_b32 v{T}, 15, v1"); e(f"v_mul_u32_u24 v{T}, 1280, v{T}"); e(f"v_lshrrev_b32 v{T+1}, 4, v1"); e(f"v_lshl_add_u32 v{T}, v{T+1}, 4, v{T}")
    for nt2 in range(2):
        for ks in range(5):
            e(f"buffer_load_dwordx4 {vr(XK+(nt2*5+ks)*4,4)}, v{T}, s[8:11], s51 offen offset:{64*ks}")
        if nt2 == 0: e(f"s_add_u32 s51, s51, {16*1280}")
    e("s_lshr_b32 s52, s3, 1"); e("s_and_b32 s53, s3, 1")
    e("s_lshl_b32 s54, s41, 2"); e("s_lshl_b32 s55, s52, 1"); e("s_add_u32 s54, s54, s55")
    e("s_lshl_b32 s54, s54, 5"); e("s_lshl_b32 s55, s42, 3"); e("s_add_u32 s54, s54, s55"); e("s_lshl_b32 s55, s53, 2"); e("s_add_u32 s54, s54, s55")
    e(f"s_mul_i32 s54, s54, {QT_B}"); e(f"s_add_u32 s54, s54, {WS_Q}")
    e(f"v_lshrrev_b32 v{T+1}, 4, v1"); e(f"v_mul_u32_u24 v{T+1}, {QT_B}, v{T+1}"); e(f"v_and_b32 v{T+2}, 15, v1")
    e(f"v_lshl_add_u32 v{T+3}, v{T+2}, 4, v{T+1}")
    e(f"v_lshl_add_u32 v{T+4}, v{T+2}, 3, v{T+1}")
    e(f"s_mov_b32 s56, {f2h(C_SCALE)}")
    PK = 136
    for nt in range(4):
        b = PK + 14*(nt % 2)
        pack_nt(e, G, nt, b, scale="s56")
        e(f"v_mov_b32 v{b+10}, 0")
        for i in range(10): e(f"v_dot2c_f32_bf16 v{b+10}, v{b+i}, v{b+i}")
        e(f"v_mov_b32 v{b+11}, 0")
        e("s_nop 1")
        e(f"v_sqrt_f32 v{b+10}, v{b+10}")
        o = 256*(nt % 2); o8 = 128*(nt % 2)
        e(f"buffer_store_dwordx4 {vr(b,4)}, v{T+3}, s[16:19], s54 offen offset:{o}")
        e(f"buffer_store_dwordx4 {vr(b+4,4)}, v{T+3}, s[16:19], s54 offen offset:{o+512}")
        e(f"buffer_store_dwordx2 {vr(b+8,2)}, v{T+4}, s[16:19], s54 offen offset:{1024+o8}")
        e(f"buffer_store_dwordx2 {vr(b+10,2)}, v{T+4}, s[16:19], s54 offen offset:{1280+o8}")
        if nt == 1: e(f"s_add_u32 s54, s54, {32*QT_B}")
    WKF, WVF = 48, 56
    e(f"v_lshrrev_b32 v{T}, 4, v1"); e(f"v_lshlrev_b32 v{T}, 3, v{T}"); e(f"v_bfe_u32 v{T+1}, v1, 2, 2"); e(f"v_add_u32 v{T}, v{T}, v{T+1}")
    e(f"v_mul_u32_u24 v{T}, 40, v{T}"); e("s_mul_i32 s57, s3, 6400"); e(f"v_add_u32 v{T}, s57, v{T}")
    e(f"v_and_b32 v{T+1}, 3, v1")
    e(f"v_lshlrev_b32 v{T+2}, 4, v{T+1}")
    e(f"v_cmp_gt_u32 vcc, 3, v{T+1}"); e("s_nop 1"); e(f"v_cndmask_b32 v{T+5}, 0, v{T+2}, vcc"); e(f"v_add3_u32 v64, v{T}, v{T+5}, s99")
    e(f"v_cmp_gt_u32 vcc, 2, v{T+1}"); e("s_nop 1"); e(f"v_cndmask_b32 v{T+5}, 0, v{T+2}, vcc"); e(f"v_add3_u32 v65, v{T}, v{T+5}, s99"); e("v_add_u32 v65, 8, v65")
    e(f"v_lshlrev_b32 v{T+5}, 3, v{T+1}"); e(f"v_add3_u32 v66, v{T}, v{T+5}, s97")
    e(f"v_add_u32 v67, s97, v{T}"); e("v_add_u32 v67, 32, v67")
    for r in range(16, 48): e(f"v_mov_b32 v{r}, 0")
    e("s_waitcnt vmcnt(16)")
    for ks in range(5):
        for b in range(2):
            o = (32*ks + 4*b)*40
            e(f"ds_read_b64_tr_b16 v[{WKF+2*b}:{WKF+2*b+1}], v64 offset:{o}")
            e(f"ds_read_b64_tr_b16 v[{WKF+4+2*b}:{WKF+4+2*b+1}], v65 offset:{o}")
            e(f"ds_read_b64_tr_b16 v[{WVF+2*b}:{WVF+2*b+1}], v66 offset:{o}")
            e(f"ds_read_b64_tr_b16 v[{WVF+4+2*b}:{WVF+4+2*b+1}], v67 offset:{o}")
        e("s_waitcnt lgkmcnt(0)")
        for nt2 in range(2):
            x = XK + (nt2*5+ks)*4
            for mt in range(2):
                a = 16+(mt*2+nt2)*4
                e(f"v_mfma_f32_16x16x32_bf16 {vr(a,4)}, {vr(WKF+4*mt,4)}, {vr(x,4)}, {vr(a,4)}")
            for dt in range(2):
                a = 32+(nt2*2+dt)*4
                e(f"v_mfma_f32_16x16x32_bf16 {vr(a,4)}, {vr(x,4)}, {vr(WVF+4*dt,4)}, {vr(a,4)}")
        e("s_nop 3")
    e("s_nop 7")
    e(f"v_lshlrev_b32 v{T}, 4, v1"); e("s_lshl_b32 s57, s3, 13"); e(f"v_add_u32 v{T+1}, s57, v{T}")
    for t in range(8): e(f"ds_write_b128 v{T+1}, {vr(16+4*t,4)} offset:{L_RED + t*1024}")
    e("s_waitcnt lgkmcnt(0)")
    e("s_barrier")
    e("s_cmp_lt_u32 s3, 2")
    e("s_lshl_b32 s57, s3, 10")
    e("s_sub_u32 s58, s3, 2"); e("s_lshl_b32 s58, s58, 11"); e("s_add_u32 s58, s58, 4096")
    e("s_cmp_lt_u32 s3, 2")
    e("s_cselect_b32 s57, s57, s58"); e("s_cselect_b32 s58, 2048, 1024") if False else None
    e("s_cmp_lt_u32 s3, 2")
    e("s_movk_i32 s58, 1024"); e("s_cselect_b32 s58, 2048, s58")
    e(f"v_add_u32 v{T+1}, s57, v{T}"); e(f"v_add_u32 v{T+2}, s58, v{T+1}")
    for w in range(4):
        e(f"ds_read_b128 {vr(64+8*w,4)}, v{T+1} offset:{L_RED + w*8192}")
        e(f"ds_read_b128 {vr(68+8*w,4)}, v{T+2} offset:{L_RED + w*8192}")
    e("s_waitcnt lgkmcnt(0)")
    for r in range(8):
        e(f"v_add_f32 v{64+r}, v{64+r}, v{72+r}"); e(f"v_add_f32 v{80+r}, v{80+r}, v{88+r}")
    for r in range(8): e(f"v_add_f32 v{64+r}, v{64+r}, v{80+r}")
    for i in range(4): e(f"v_cvt_pk_bf16_f32 v{72+i}, v{64+2*i}, v{64+2*i+1}")
    e("s_lshl_b32 s50, s41, 2"); e("s_add_u32 s50, s50, s42")
    e(f"s_mul_i32 s51, s50, {TILE_B}"); e(f"s_add_u32 s51, s51, {WS_KV}")
    e("s_cmp_ge_u32 s3, 2")
    e(f"s_cbranch_scc1 {name}_vfin")
    e(f"v_and_b32 v{T}, 15, v1"); e("s_lshl_b32 s52, s3, 4"); e(f"v_add_u32 v{T}, s52, v{T}")
    e(f"v_lshrrev_b32 v{T+1}, 4, v1")
    e(f"v_cmp_gt_u32 vcc, 2, v{T+1}"); e("s_nop 1")
    e("v_cndmask_b32 v76, 0, v74, vcc"); e("v_cndmask_b32 v77, 0, v75, vcc")
    e(f"v_cmp_gt_u32 vcc, 3, v{T+1}"); e("s_nop 1")
    e("v_cndmask_b32 v78, 0, v72, vcc"); e("v_cndmask_b32 v79, 0, v73, vcc")
    e("v_mov_b32 v80, 0")
    for r in (76, 77, 78, 79): e(f"v_dot2c_f32_bf16 v80, v{r}, v{r}")
    e("s_nop 2")
    e("v_mov_b32 v81, v80"); e("s_nop 1"); e("v_permlane16_swap_b32 v80, v81"); e("s_nop 1"); e("v_add_f32 v80, v80, v81")
    e("v_mov_b32 v81, v80"); e("s_nop 1"); e("v_permlane32_swap_b32 v80, v81"); e("s_nop 1"); e("v_add_f32 v80, v80, v81")
    for sh in ("row_shr:1", "row_shr:2", "row_shr:4", "row_shr:8"):
        e("s_nop 1"); e(f"v_max_f32_dpp v80, v80, v80 {sh} row_mask:0xf bank_mask:0xf")
    e(f"v_lshlrev_b32 v{T+2}, 5, v{T+1}"); e(f"v_add_u32 v{T+2}, v{T+2}, v{T}"); e(f"v_lshlrev_b32 v{T+2}, 4, v{T+2}")
    e(f"v_cmp_gt_u32 vcc, 2, v{T+1}")
    e("s_and_saveexec_b64 s[60:61], vcc") if not ST.en else e("s_and_saveexec_b64 s[54:55], vcc")
    sv = "s[60:61]" if not ST.en else "s[54:55]"
    e(f"buffer_store_dwordx4 v[72:75], v{T+2}, s[16:19], s51 offen")
    e(f"s_andn2_b64 exec, {sv}, exec")
    e(f"v_cmp_eq_u32 vcc, 3, v{T+1}"); e("s_nop 1")
    e("v_mov_b32 v82, 0x3f80"); e("v_mov_b32 v83, 0")
    e("v_cndmask_b32 v72, v72, v82, vcc"); e("v_cndmask_b32 v73, v73, v83, vcc")
    e(f"v_subrev_u32 v{T+3}, 2, v{T+1}"); e(f"v_lshlrev_b32 v{T+3}, 5, v{T+3}"); e(f"v_add_u32 v{T+3}, v{T+3}, v{T}"); e(f"v_lshlrev_b32 v{T+3}, 3, v{T+3}")
    e(f"buffer_store_dwordx2 v[72:73], v{T+3}, s[16:19], s51 offen offset:3072")
    e(f"s_mov_b64 exec, {sv}")
    e("s_lshl_b32 s52, s50, 1"); e("s_add_u32 s52, s52, s3"); e("s_lshl_b32 s52, s52, 2"); e(f"s_add_u32 s52, s52, {WS_KMAX}")
    e("s_mov_b64 exec, 0x8000"); e("v_mov_b32 v81, 0")
    e("buffer_store_dword v80, v81, s[16:19], s52 offen")
    e("s_mov_b64 exec, -1")
    e(f"s_branch {name}_adone")
    e.label(f"{name}_vfin")
    e(f"v_and_b32 v{T}, 15, v1"); e(f"v_lshrrev_b32 v{T+1}, 4, v1")
    e(f"v_cmp_gt_u32 vcc, 4, v{T}"); e("s_nop 1")
    e("v_cndmask_b32 v74, 0, v74, vcc"); e("v_cndmask_b32 v75, 0, v75, vcc")
    e(f"v_cmp_eq_u32 vcc, 4, v{T}"); e("v_mov_b32 v82, 0x3f803f80"); e("s_nop 0")
    e("v_cndmask_b32 v74, v74, v82, vcc"); e("v_cndmask_b32 v75, v75, v82, vcc")
    e(f"v_and_b32 v{T+2}, 1, v{T+1}"); e(f"v_lshlrev_b32 v{T+2}, 5, v{T+2}"); e(f"v_add_u32 v{T+2}, v{T+2}, v{T}"); e(f"v_lshlrev_b32 v{T+2}, 4, v{T+2}")
    e(f"v_lshrrev_b32 v{T+3}, 1, v{T+1}"); e(f"v_lshl_add_u32 v{T+2}, v{T+3}, 3, v{T+2}")
    e("s_sub_u32 s52, s3, 2"); e("s_lshl_b32 s52, s52, 10"); e("s_add_u32 s52, s52, s51")
    e(f"buffer_store_dwordx2 v[72:73], v{T+2}, s[16:19], s52 offen offset:1024")
    e(f"buffer_store_dwordx2 v[74:75], v{T+2}, s[16:19], s52 offen offset:{1024+256}")
    e.label(f"{name}_adone")

PKB = lambda nt: 96 + 12*nt
FRB = 16

def pack_all(e, G):
    for nt in range(4):
        pack_nt(e, G, nt, PKB(nt))
        e(f"v_mov_b32 v{PKB(nt)+10}, 0"); e(f"v_mov_b32 v{PKB(nt)+11}, 0")

def phi_chain(e, kp, out):
    for ks in range(3):
        for mt in range(5):
            c = "0" if ks == 0 else vr(out+4*mt, 4)
            e(f"v_mfma_f32_16x16x32_bf16 {vr(out+4*mt,4)}, {vr(FRB+(mt*3+ks)*4,4)}, {vr(kp+4*ks,4)}, {c}")

def role_bq(e, G, name):
    T = G.T
    e("s_and_b32 s53, s3, 1"); e("s_lshl_b32 s50, s53, 2"); e(f"s_mov_b32 s99, {L_PHI}")
    phi_addr(e, G, T+6, 50)
    pack_all(e, G)
    phi_frags(e, T+6, FRB)
    e("s_lshr_b32 s52, s3, 1"); e("s_lshl_b32 s54, s41, 3"); e("s_lshl_b32 s55, s52, 2"); e("s_add_u32 s54, s54, s55")
    e("s_lshl_b32 s54, s54, 3"); e("s_lshl_b32 s55, s42, 1"); e("s_add_u32 s54, s54, s55"); e("s_add_u32 s54, s54, s53")
    e("s_mul_i32 s54, s54, 2560"); e(f"s_add_u32 s54, s54, {WS_PQ}")
    e(f"v_lshlrev_b32 v{T}, 4, v1"); e(f"v_lshlrev_b32 v{T+1}, 3, v1")
    e("s_waitcnt lgkmcnt(0)")
    OUT = (76, 144)
    phi_chain(e, PKB(0), OUT[0])
    for nt in range(4):
        if nt < 3: phi_chain(e, PKB(nt+1), OUT[(nt+1) % 2])
        else: e("s_nop 7")
        o = OUT[nt % 2]; b = PKB(nt)
        e("s_nop 1")
        for i in range(10): e(f"v_cvt_pk_bf16_f32 v{b+i}, v{o+2*i}, v{o+2*i+1}")
        e(f"buffer_store_dwordx4 {vr(b,4)}, v{T}, s[16:19], s54 offen")
        e(f"buffer_store_dwordx4 {vr(b+4,4)}, v{T}, s[16:19], s54 offen offset:1024")
        e(f"buffer_store_dwordx2 {vr(b+8,2)}, v{T+1}, s[16:19], s54 offen offset:2048")
        if nt < 3: e(f"s_add_u32 s54, s54, {8*2560}")

def role_bkv(e, G, name):
    T = G.T
    e("s_lshr_b32 s52, s3, 1"); e("s_and_b32 s53, s3, 1")
    e("s_mov_b32 s50, 0"); e(f"s_mov_b32 s99, {L_PHI}")
    phi_addr(e, G, T+6, 50)
    pack_all(e, G)
    phi_frags(e, T+6, FRB)
    e("s_cmp_eq_u32 s53, 0")
    e(f"s_cbranch_scc0 {name}_vw")
    e("s_mul_i32 s54, s52, 5120")
    e(f"v_lshlrev_b32 v{T}, 4, v1"); e(f"v_add_u32 v{T}, s54, v{T}")
    e(f"v_lshlrev_b32 v{T+1}, 3, v1"); e(f"v_add_u32 v{T+1}, s54, v{T+1}")
    for nt in (2, 3):
        o = L_KH + (nt-2)*2560
        e(f"ds_write_b128 v{T}, {vr(PKB(nt),4)} offset:{o}")
        e(f"ds_write_b128 v{T}, {vr(PKB(nt)+4,4)} offset:{o+1024}")
        e(f"ds_write_b64 v{T+1}, {vr(PKB(nt)+8,2)} offset:{o+2048}")
    e("s_waitcnt lgkmcnt(0)")
    e("s_barrier")
    e(f"s_branch {name}_go")
    e.label(f"{name}_vw")
    e(f"v_and_b32 v{T}, 15, v1"); e(f"v_mul_u32_u24 v{T}, 192, v{T}"); e(f"v_lshrrev_b32 v{T+1}, 4, v1"); e(f"v_mul_u32_u24 v{T+1}, 48, v{T+1}")
    e(f"v_add_u32 v{T}, v{T}, v{T+1}"); e("s_mul_i32 s54, s52, %d" % (64*192)); e(f"v_add_u32 v{T}, s54, v{T}")
    e(f"v_mov_b32 v{T+2}, 0x3f80"); e(f"v_mov_b32 v{T+3}, 0")
    for nt in range(4):
        o = L_V + nt*16*192
        e(f"ds_write_b128 v{T}, {vr(PKB(nt),4)} offset:{o}")
        e(f"ds_write_b128 v{T}, {vr(PKB(nt)+4,4)} offset:{o+16}")
        e(f"ds_write_b64 v{T}, {vr(PKB(nt)+8,2)} offset:{o+32}")
        e(f"ds_write_b64 v{T}, {vr(T+2,2)} offset:{o+40}")
    e("s_waitcnt lgkmcnt(0)")
    e("s_barrier")
    e("s_mul_i32 s54, s52, 5120")
    e(f"v_lshlrev_b32 v{T}, 4, v1"); e(f"v_add_u32 v{T}, s54, v{T}")
    e(f"v_lshlrev_b32 v{T+1}, 3, v1"); e(f"v_add_u32 v{T+1}, s54, v{T+1}")
    for i in range(2):
        o = L_KH + i*2560
        e(f"ds_read_b128 {vr(PKB(i),4)}, v{T} offset:{o}"); e(f"ds_read_b128 {vr(PKB(i)+4,4)}, v{T} offset:{o+1024}"); e(f"ds_read_b64 {vr(PKB(i)+8,2)}, v{T+1} offset:{o+2048}")
    e("s_waitcnt lgkmcnt(0)")
    e.label(f"{name}_go")
    e(f"v_and_b32 v{T}, 15, v1"); e(f"v_mul_u32_u24 v{T}, 320, v{T}"); e(f"v_lshrrev_b32 v{T+1}, 4, v1"); e(f"v_mul_u32_u24 v{T+1}, 80, v{T+1}")
    e(f"v_add_u32 v{T}, v{T}, v{T+1}")
    e("s_lshl_b32 s54, s52, 6"); e("s_lshl_b32 s55, s53, 5"); e("s_add_u32 s54, s54, s55"); e("s_mul_i32 s54, s54, 320"); e(f"s_add_u32 s54, s54, {L_PK}")
    e(f"v_add_u32 v{T}, s54, v{T}")
    e(f"s_mov_b32 s98, {f2h(LOG2E)}")
    OUT, EM, FT = 76, 144, 164
    PKO = PKB(2)
    for i in range(2):
        phi_chain(e, PKB(i), OUT)
        e("s_nop 7")
        features(e, OUT, OUT, EM, FT)
        for j in range(10):
            e(f"v_cvt_pk_bf16_f32 v{PKO+j}, v{OUT+2*j}, v{OUT+2*j+1}")
        for j in range(10):
            e(f"v_cvt_pk_bf16_f32 v{PKO+10+j}, v{EM+2*j}, v{EM+2*j+1}")
        for j in range(5):
            e(f"ds_write_b128 v{T}, {vr(PKO+4*j,4)} offset:{i*16*320 + 16*j}")
        e("s_nop 1")
    e("s_waitcnt lgkmcnt(0)")
    e("s_barrier")
    e(f"v_lshrrev_b32 v{T}, 4, v1"); e(f"v_lshlrev_b32 v{T}, 3, v{T}"); e(f"v_bfe_u32 v{T+1}, v1, 2, 2"); e(f"v_add_u32 v{T}, v{T}, v{T+1}")
    e(f"v_and_b32 v{T+1}, 3, v1"); e(f"v_lshlrev_b32 v{T+1}, 3, v{T+1}")
    e(f"v_mul_u32_u24 v{T+2}, 192, v{T}"); e(f"v_add_u32 v{T+2}, v{T+2}, v{T+1}"); e("s_mul_i32 s54, s3, 48"); e(f"v_add_u32 v{T+2}, s54, v{T+2}")
    e(f"v_mul_u32_u24 v{T+3}, 320, v{T}"); e(f"v_add_u32 v{T+3}, v{T+3}, v{T+1}"); e("s_mul_i32 s54, s3, 80"); e(f"s_add_u32 s54, s54, {L_PK}"); e(f"v_add_u32 v{T+3}, s54, v{T+3}")
    ACC = 16
    AF, BF = 40, 56
    def rd(ks):
        for mt in range(2):
            for b in range(2):
                e(f"ds_read_b64_tr_b16 v[{AF+(ks%2)*8+4*mt+2*b}:{AF+(ks%2)*8+4*mt+2*b+1}], v{T+2} offset:{L_V + (32*ks+4*b)*192 + 32*mt}")
        for nt in range(3):
            for b in range(2):
                e(f"ds_read_b64_tr_b16 v[{BF+(ks%2)*12+4*nt+2*b}:{BF+(ks%2)*12+4*nt+2*b+1}], v{T+3} offset:{(32*ks+4*b)*320 + 32*nt}")
    rd(0)
    for ks in range(4):
        if ks < 3: rd(ks+1); e("s_waitcnt lgkmcnt(10)")
        else: e("s_waitcnt lgkmcnt(0)")
        for mt in range(2):
            for nt in range(3):
                a = ACC + (mt*3+nt)*4
                c = "0" if ks == 0 else vr(a,4)
                e(f"v_mfma_f32_16x16x32_bf16 {vr(a,4)}, {vr(AF+(ks%2)*8+4*mt,4)}, {vr(BF+(ks%2)*12+4*nt,4)}, {c}")
    e("s_sub_u32 s54, s40, 2"); e("s_lshl_b32 s54, s54, 2"); e("s_add_u32 s54, s54, s42")
    e("s_lshl_b32 s54, s54, 4"); e("s_add_u32 s54, s54, s41"); e("s_lshl_b32 s54, s54, 2"); e("s_add_u32 s54, s54, s3")
    e("s_mul_i32 s54, s54, 3840"); e(f"s_add_u32 s54, s54, {WS_KVP}")
    e(f"v_and_b32 v{T}, 15, v1"); e(f"v_lshrrev_b32 v{T+1}, 4, v1")
    e(f"v_mul_u32_u24 v{T+2}, 96, v{T}"); e(f"v_lshl_add_u32 v{T+2}, v{T+1}, 4, v{T+2}")
    e(f"v_mov_b32 v{T+3}, 0x7f000000")
    e(f"v_cmp_gt_u32 vcc, 2, v{T+1}"); e("s_nop 1"); e(f"v_cndmask_b32 v{T+4}, v{T+3}, v{T+2}, vcc")
    e(f"v_cmp_gt_u32 vcc, 8, v{T}"); e("s_nop 1"); e(f"v_cndmask_b32 v{T+5}, v{T+3}, v{T+2}, vcc"); e(f"v_cndmask_b32 v{T+6}, v{T+3}, v{T+4}, vcc")
    e("s_nop 4")
    for mt in range(2):
        for nt in range(3):
            a = ACC + (mt*3+nt)*4
            va = {(0,0):T+2,(0,1):T+2,(0,2):T+5,(1,0):T+4,(1,1):T+4,(1,2):T+6}[(mt,nt)]
            e(f"buffer_store_dwordx4 {vr(a,4)}, v{va}, s[16:19], s54 offen offset:{nt*16*96 + mt*64}")

def gen(e, name="proj_kernel"):
    G = Gemm(STG_B, NSTG, 10, 4)
    kernel_header(e, name)
    e("s_cmp_ge_u32 s2, 256")
    e(f"s_cbranch_scc1 {name}_end")
    e("s_load_dwordx4 s[32:35], s[0:1], 0")
    e("s_load_dwordx4 s[36:39], s[0:1], 40")
    e("s_load_dwordx4 s[84:87], s[0:1], 16")
    e("s_load_dwordx2 s[88:89], s[0:1], 56")
    e("s_load_dwordx2 s[4:5], s[0:1], 88")
    ST.mark(e)
    e("v_lshrrev_b32 v2, 6, v0")
    e("v_and_b32 v1, 63, v0")
    e("s_and_b32 s40, s2, 3")
    e("v_readfirstlane_b32 s3, v2")
    e("s_lshr_b32 s41, s2, 2"); e("s_and_b32 s41, s41, 1")
    e("s_lshr_b32 s42, s2, 3")
    e("s_and_b32 s43, s42, 7"); e("s_lshl_b32 s41, s41, 3"); e("s_add_u32 s41, s41, s43")
    e("s_lshr_b32 s42, s42, 3")
    e("s_cmp_eq_u32 s40, 0")
    e("s_movk_i32 s44, 3840")
    e("s_cselect_b32 s44, 1280, s44")
    e("s_cmp_ge_u32 s3, 4")
    e(f"s_cbranch_scc1 {name}_loader")
    e("s_lshr_b32 s49, s3, 1"); e("s_lshl_b32 s50, s49, 13")
    e("s_and_b32 s49, s3, 1"); e("s_mul_i32 s51, s49, 10240"); e(f"s_add_u32 s51, s51, {W_OFF}")
    G.compute_setup(e, 50, 51)
    e(f"v_lshlrev_b32 v{G.T}, 4, v1"); e(f"v_add_u32 v{G.T}, {L_ZERO}, v{G.T}")
    for r in range(4): e(f"v_mov_b32 v{96+r}, 0")
    e(f"ds_write_b128 v{G.T}, v[96:99]")
    e("s_waitcnt lgkmcnt(0)")
    G.compute_main(e, name, ST)
    ST.mark(e)
    e("s_barrier")
    make_srd(e, 16, 4, WS_BYTES)
    e("s_nop 4")
    e("s_cmp_eq_u32 s40, 1"); e(f"s_cbranch_scc1 {name}_rbq")
    e("s_cmp_ge_u32 s40, 2"); e(f"s_cbranch_scc1 {name}_rbkv")
    e("s_mov_b32 s8, s32"); e("s_and_b32 s9, s33, 0xffff"); e("s_mov_b32 s10, %d" % (2048*640*2)); e("s_mov_b32 s11, 0x20000")
    e(f"s_mov_b32 s99, {L_WK}"); e(f"s_mov_b32 s97, {L_WV}")
    role_a(e, G, name)
    e(f"s_branch {name}_fin")
    e.label(f"{name}_rbq")
    role_bq(e, G, name)
    e(f"s_branch {name}_fin")
    e.label(f"{name}_rbkv")
    role_bkv(e, G, name)
    e.label(f"{name}_fin")
    e("s_waitcnt vmcnt(0)")
    ST.mark(e)
    ST.flush(e, 0, G.T, 3, "s[16:19]")
    e("s_endpgm")
    e.label(f"{name}_loader")
    e("s_sub_u32 s3, s3, 4")
    G.loader_setup(e, 44)
    e(f"v_lshlrev_b32 v{G.LT+8}, 4, v1")
    e("s_lshr_b32 s45, s3, 1")
    e("s_mul_i32 s46, s42, 160"); e("s_mul_i32 s47, s45, 80"); e("s_add_u32 s46, s46, s47")
    e("s_sub_u32 s47, s40, 2"); e("s_lshl_b32 s47, s47, 2"); e("s_add_u32 s47, s47, s42"); e("s_mov_b32 s59, s47"); e("s_mul_i32 s47, s47, 80")
    e("s_mul_i32 s48, s45, 640"); e("s_add_u32 s47, s47, s48"); e("s_add_u32 s47, s47, 640")
    e("s_cmp_ge_u32 s40, 2")
    e("s_cselect_b32 s46, s47, s46")
    e("s_lshl_b32 s20, s41, 7"); e("s_lshl_b32 s49, s3, 5"); e("s_add_u32 s20, s20, s49"); e("s_mul_i32 s20, s20, 1280")
    e("s_and_b32 s49, s3, 1"); e("s_lshl_b32 s49, s49, 5"); e("s_mul_i32 s21, s49, s44"); e("s_lshl_b32 s49, s46, 1"); e("s_add_u32 s21, s21, s49")
    e("s_lshl_b32 s22, s44, 6")
    e("s_lshl_b32 s24, s3, 12")
    e("s_lshr_b32 s49, s3, 1"); e("s_mul_i32 s25, s49, 10240"); e("s_and_b32 s49, s3, 1"); e("s_mul_i32 s49, s49, 5120")
    e("s_add_u32 s25, s25, s49"); e(f"s_add_u32 s25, s25, {W_OFF}")
    e("s_mul_i32 s23, s42, 3"); e("s_add_u32 s23, s23, s43"); e("s_cmp_ge_u32 s23, 10"); e("s_cselect_b32 s49, 10, 0"); e("s_sub_u32 s23, s23, s49")
    e("s_mul_i32 s57, s42, 6400"); e("s_mul_i32 s58, s59, 3200"); e("s_cmp_ge_u32 s40, 2"); e("s_cselect_b32 s57, s58, s57")
    e("s_lshl_b32 s58, s3, 11"); e("s_add_u32 s57, s57, s58"); e(f"s_add_u32 s58, s58, {L_PHI}")
    e("s_waitcnt lgkmcnt(0)")
    e("s_cmp_eq_u32 s40, 0")
    e("s_cselect_b32 s8, s32, s36"); e("s_cselect_b32 s9, s33, s37")
    e("s_cselect_b32 s12, s34, s38"); e("s_cselect_b32 s13, s35, s39")
    e("s_mov_b32 s14, %d" % (640*1920*2))
    e("s_cselect_b32 s14, %d, s14" % (640*640*2))
    e("s_and_b32 s9, s9, 0xffff"); e("s_mov_b32 s10, %d" % (2048*640*2)); e("s_mov_b32 s11, 0x20000")
    e("s_and_b32 s13, s13, 0xffff"); e("s_mov_b32 s15, 0x20000")
    make_srd(e, 16, 88, 25600)
    e("s_mov_b32 m0, s58"); e("s_nop 0")
    e(f"buffer_load_dwordx4 v{G.LT+8}, s[16:19], s57 offen lds")
    e(f"buffer_load_dwordx4 v{G.LT+8}, s[16:19], s57 offen offset:1024 lds")
    def tail(e, c, what):
        if what == "count":
            return None
        if c in (6, 7):
            lab = f"{name}_tx{c}"
            e("s_cmp_lg_u32 s40, 0"); e(f"s_cbranch_scc1 {lab}")
            make_srd(e, 16, 84 if c == 6 else 86, 25600)
            e("s_mul_i32 s57, s3, 7168"); e(f"s_add_u32 s58, s57, {L_WK if c == 6 else L_WV}")
            for j in range(7):
                e("s_mov_b32 m0, s58"); e("s_add_u32 s58, s58, 1024")
                e(f"buffer_load_dwordx4 v{G.LT+8}, s[16:19], s57 offen lds"); e("s_add_u32 s57, s57, 1024")
            e.label(lab)
    tail.extra = lambda c: {7: 7, 8: 14}.get(c, 0)
    G.loader_main(e, name, 10, tail)
    e.label(f"{name}_end")
    e("s_endpgm")
    return G.NV, LDS_K1
if __name__ == "__main__":
    import build
    build.build([("proj_kernel", gen)], "k1test.s", [("proj_kernel", 256, 512, LDS_K1)])
```

```python
from common import *
from stamp import Stamps
import os
ST = Stamps(os.environ.get("STAMP")=="1")
VAR = os.environ.get("VAR","")
TILE_B = 3584
QT_B = 1536
NSL = 8
RING_W = NSL*TILE_B
LDS_RING = 0
LDS_Q = 4*RING_W
LDS_RED = 0
LDS_OUT = LDS_Q
LDS_B = LDS_Q + 8*QT_B
LDS_K2 = LDS_B + 20480
QA = lambda u: 4 + 4*u
QB = lambda u: 36 + 2*u
S = (52, 68)
P = 84
def KV(p):
    b = 92 + 14*p
    return b, b+4, b+8, b+12
L16, L8 = 120, 121
A16, A8 = 122, 123
T0 = 124
NV = 128
NA = 128

def m1(e, n):
    u = n % 8; p = (n // 8) % 2
    e(f"v_mfma_f32_32x32x16_bf16 {vr(S[n%2],16)}, {vr(KV(p)[0],4)}, {vr(QA(u),4)}, 0")
def m2(e, n):
    if "nom2" in VAR: return
    u = n % 8; p = (n // 8) % 2
    e(f"v_mfma_f32_32x32x8_bf16 {vr(S[n%2],16)}, {vr(KV(p)[3],2)}, {vr(QB(u),2)}, {vr(S[n%2],16)}")
def pv(e, n, h):
    u = n % 8; p = (n // 8) % 2
    if "nopv" in VAR: return
    if "pvswap" in VAR:
        e(f"v_mfma_f32_32x32x16_bf16 a[{16*u}:{16*u+15}], {vr(P+4*h,4)}, {vr(KV(p)[1+h],4)}, a[{16*u}:{16*u+15}]"); return
    e(f"v_mfma_f32_32x32x16_bf16 a[{16*u}:{16*u+15}], {vr(KV(p)[1+h],4)}, {vr(P+4*h,4)}, a[{16*u}:{16*u+15}]")
def ex(e, n, a, b):
    if "exp16" in VAR:
        for r in range(a, b): e(f"v_exp_f16 v{S[n%2]+r}, v{S[n%2]+r}")
        return
    if "noexp" in VAR:
        for r in range(a, b): e(f"v_mov_b32 v{S[n%2]+r}, v{S[n%2]+r}")
        return
    for r in range(a, b): e(f"v_exp_f32 v{S[n%2]+r}, v{S[n%2]+r}")
def cv(e, n, a, b):
    if "perm" in VAR:
        for i in range(a, b): e(f"v_perm_b32 v{P+i}, v{S[n%2]+2*i+1}, v{S[n%2]+2*i}, s46")
        return
    for i in range(a, b): e(f"v_cvt_pk_bf16_f32 v{P+i}, v{S[n%2]+2*i}, v{S[n%2]+2*i+1}")
def ldk(e, p):
    e(f"ds_read_b128 {vr(KV(p)[0],4)}, v{A16}")
    e(f"ds_read_b64 {vr(KV(p)[3],2)}, v{A8} offset:3072")
def ldv(e, p):
    e(f"ds_read_b128 {vr(KV(p)[1],4)}, v{A16} offset:1024")
    e(f"ds_read_b128 {vr(KV(p)[2],4)}, v{A16} offset:2048")
def adv(e):
    e(f"s_add_u32 s20, s20, {TILE_B}")
    e("s_cmp_ge_u32 s20, s21")
    e("s_cselect_b32 s20, s22, s20")
    e(f"v_add_u32 v{A16}, s20, v{L16}")
    e(f"v_add_u32 v{A8}, s20, v{L8}")

def dma_tile(e, s_g, s_l):
    e(f"s_mov_b32 m0, s{s_l}")
    e("s_nop 0")
    for o in (0, 1024, 2048):
        e(f"buffer_load_dwordx4 v{L16}, s[8:11], s{s_g} offen offset:{o} lds")
    e("s_mov_b64 exec, s[38:39]")
    e(f"buffer_load_dwordx4 v{L16}, s[8:11], s{s_g} offen offset:3072 lds")
    e("s_mov_b64 exec, -1")

L_KVF = LDS_B
L_BZ  = LDS_B + 7680
L_OB  = LDS_B + 9728

def helper(e, name):
    e("s_sub_u32 s3, s3, 4")
    e("s_load_dwordx2 s[6:7], s[0:1], 80")
    e("s_load_dwordx2 s[40:41], s[0:1], 32")
    e("s_load_dwordx2 s[42:43], s[0:1], 64")
    e(f"s_mul_i32 s20, s3, {16*TILE_B}"); e(f"s_add_u32 s20, s20, {WS_KV}")
    e(f"s_mul_i32 s22, s3, {RING_W}")
    e("s_mov_b32 s21, s22")
    def tiles(n):
        for j in range(n):
            dma_tile(e, 20, 21)
            e(f"s_add_u32 s20, s20, {TILE_B}"); e(f"s_add_u32 s21, s21, {TILE_B}")
    tiles(1)
    e("s_lshr_b32 s12, s2, 2"); e("s_lshl_b32 s12, s12, 5"); e("s_and_b32 s13, s2, 3"); e("s_lshl_b32 s13, s13, 3"); e("s_add_u32 s12, s12, s13")
    e(f"s_mul_i32 s12, s12, {QT_B}"); e(f"s_add_u32 s12, s12, {WS_Q}"); e("s_mul_i32 s13, s3, 3072"); e("s_add_u32 s12, s12, s13")
    e(f"s_add_u32 s13, s13, {LDS_Q}"); e("s_mov_b32 m0, s13"); e("s_nop 0")
    for o in (0, 1024, 2048): e(f"buffer_load_dwordx4 v{L16}, s[8:11], s12 offen offset:{o} lds")
    tiles(1)
    e("s_mov_b32 s25, 6")
    e.label(f"{name}_hl0")
    tiles(1)
    e("s_sub_u32 s25, s25, 1"); e("s_cmp_lg_u32 s25, 0"); e(f"s_cbranch_scc1 {name}_hl0")
    e("s_and_b32 s26, s2, 7"); e("s_lshr_b32 s27, s2, 3")
    e(f"s_mul_i32 s28, s26, {16*15360}"); e("s_mul_i32 s29, s27, 480"); e("s_add_u32 s28, s28, s29"); e("s_mul_i32 s29, s3, 120"); e("s_add_u32 s28, s28, s29")
    e(f"s_add_u32 s28, s28, {WS_KVP}")
    e("v_mov_b32 v3, 0x7f000000"); e("v_cmp_gt_u32 vcc, 15, v2"); e("s_nop 1"); e(f"v_cndmask_b32 v3, v3, v{L8}, vcc")
    for p in range(16):
        e(f"buffer_load_dwordx2 v[{8+2*p}:{9+2*p}], v3, s[8:11], s28 offen")
        if p < 15: e("s_add_u32 s28, s28, 15360")
    for r in range(4): e(f"v_mov_b32 v{4+r}, 0")
    e(f"s_lshl_b32 s29, s3, 9"); e(f"s_add_u32 s29, s29, {L_BZ}"); e(f"v_add_u32 v40, s29, v{L8}"); e("ds_write_b64 v40, v[4:5]")
    e("s_waitcnt vmcnt(40) lgkmcnt(0)")
    e("s_barrier")
    e("s_waitcnt vmcnt(24)")
    e("s_barrier")
    e("s_waitcnt vmcnt(0)")
    for p in range(1, 16):
        e(f"v_add_f32 v8, v8, v{8+2*p}"); e(f"v_add_f32 v9, v9, v{9+2*p}")
    e("v_cvt_pk_bf16_f32 v8, v8, v9")
    e("s_mul_i32 s28, s26, 7680"); e("s_mul_i32 s29, s27, 240"); e("s_add_u32 s28, s28, s29"); e("s_mul_i32 s29, s3, 60"); e("s_add_u32 s28, s28, s29")
    e(f"s_add_u32 s28, s28, {WS_KVF}")
    e("v_mov_b32 v3, 0x7f000000"); e("v_lshlrev_b32 v4, 2, v2"); e("v_cmp_gt_u32 vcc, 15, v2"); e("s_nop 1"); e("v_cndmask_b32 v3, v3, v4, vcc")
    e("buffer_store_dword v8, v3, s[8:11], s28 offen sc0 sc1")
    e("s_waitcnt vmcnt(0)")
    make_srd(e, 44, 6, 256)
    e("s_lshl_b32 s29, s26, 5")
    e("s_mov_b64 exec, 1"); e("v_mov_b32 v4, 1"); e("v_mov_b32 v5, s29")
    e("buffer_atomic_add v4, v5, s[44:47], 0 offen sc1")
    e("s_mov_b64 exec, -1")
    e("s_mov_b32 s21, s22"); tiles(2)
    e("s_lshl_b32 s28, s27, 2"); e("s_add_u32 s28, s28, s3"); e("s_lshl_b32 s28, s28, 3"); e("s_add_u32 s28, s28, s26"); e("s_mul_i32 s28, s28, 2560")
    e(f"s_add_u32 s28, s28, {WS_PQ}")
    e(f"buffer_load_dwordx4 v[8:11], v{L16}, s[8:11], s28 offen")
    e(f"buffer_load_dwordx4 v[12:15], v{L16}, s[8:11], s28 offen offset:1024")
    e(f"buffer_load_dwordx2 v[16:17], v{L8}, s[8:11], s28 offen offset:2048")
    make_srd(e, 48, 40, 819200); make_srd(e, 52, 42, 819200)
    e("s_mul_i32 s29, s2, 3200"); e("v_lshlrev_b32 v3, 7, v2"); e("v_mov_b32 v4, 0x7f000000"); e("v_cmp_gt_u32 vcc, 25, v2"); e("s_nop 1"); e("v_cndmask_b32 v3, v4, v3, vcc")
    e("s_cmp_lg_u32 s3, 0"); e(f"s_cbranch_scc1 {name}_notouch")
    e("buffer_load_dword v18, v3, s[48:51], s29 offen"); e("buffer_load_dword v19, v3, s[52:55], s29 offen")
    e.label(f"{name}_notouch")
    e("s_waitcnt vmcnt(0)")
    e("s_barrier")
    tiles(4)
    Pq, EM, FT = 20, 40, 60
    for i in range(10):
        e(f"v_lshlrev_b32 v{Pq+2*i}, 16, v{8+i}"); e(f"v_and_b32 v{Pq+2*i+1}, 0xffff0000, v{8+i}")
    e(f"s_mov_b32 s98, {f2h(LOG2E)}")
    features(e, Pq, Pq, EM, FT)
    PH = 68
    for j in range(10): e(f"v_cvt_pk_bf16_f32 v{PH+j}, v{Pq+2*j}, v{Pq+2*j+1}")
    for j in range(10): e(f"v_cvt_pk_bf16_f32 v{PH+10+j}, v{EM+2*j}, v{EM+2*j+1}")
    e("s_mov_b32 s30, 0")
    e("s_mov_b64 exec, 1")
    e.label(f"{name}_poll")
    e("buffer_load_dword v4, v5, s[44:47], 0 offen sc0 sc1")
    e("s_waitcnt vmcnt(0)")
    e("v_readfirstlane_b32 s31, v4")
    e("s_add_u32 s30, s30, 1")
    e("s_cmp_ge_u32 s31, 128"); e(f"s_cbranch_scc1 {name}_pdone")
    e("s_cmp_gt_u32 s30, 2000000"); e(f"s_cbranch_scc1 {name}_pdone")
    e("s_sleep 8"); e(f"s_branch {name}_poll")
    e.label(f"{name}_pdone")
    e("s_mov_b64 exec, -1")
    e("s_mul_i32 s28, s26, 7680"); e("s_lshl_b32 s29, s3, 11"); e("s_add_u32 s28, s28, s29"); e(f"s_add_u32 s28, s28, {WS_KVF}")
    e(f"buffer_load_dwordx4 v[8:11], v{L16}, s[8:11], s28 offen sc0 sc1")
    e(f"buffer_load_dwordx4 v[12:15], v{L16}, s[8:11], s28 offen offset:1024 sc0 sc1")
    e(f"s_add_u32 s29, s29, {L_KVF}"); e(f"v_add_u32 v4, s29, v{L16}")
    e("s_waitcnt vmcnt(0)")
    e("ds_write_b128 v4, v[8:11]")
    e("s_cmp_eq_u32 s3, 3"); e("s_cselect_b32 s30, -1, -1"); e("s_cselect_b32 s31, 0, -1"); e("s_mov_b64 exec, s[30:31]")
    e("ds_write_b128 v4, v[12:15] offset:1024")
    e("s_mov_b64 exec, -1")
    e("s_waitcnt lgkmcnt(0)")
    e("s_barrier")
    tiles(2)
    e("v_lshrrev_b32 v3, 4, v2"); e("v_and_b32 v4, 3, v2"); e("v_cmp_eq_u32 vcc, v3, v4")
    e("v_mul_u32_u24 v3, 1920, v3"); e("v_bfe_u32 v4, v2, 2, 2"); e("v_mul_u32_u24 v4, 48, v4"); e("v_add_u32 v3, v3, v4"); e(f"v_add_u32 v3, {L_KVF}, v3")
    e(f"v_mov_b32 v4, {L_BZ}"); e("v_cndmask_b32 v3, v4, v3, vcc")
    ACC, FA = 8, (32, 88)
    def rd(ks):
        for mt in range(6):
            for b in range(2):
                d = FA[ks % 2] + 4*mt + 2*b
                e(f"ds_read_b64_tr_b16 v[{d}:{d+1}], v3 offset:{(8*ks+4*b)*48 + 8*mt}")
    rd(0)
    for ks in range(5):
        if ks < 4: rd(ks+1); e("s_waitcnt lgkmcnt(12)")
        else: e("s_waitcnt lgkmcnt(0)")
        for mt in range(6):
            c = "0" if ks == 0 else vr(ACC+4*mt, 4)
            e(f"v_mfma_f32_16x16x32_bf16 {vr(ACC+4*mt,4)}, {vr(FA[ks%2]+4*mt,4)}, {vr(PH+4*ks,4)}, {c}")
        e("s_nop 3")
    e("s_nop 7")
    e(f"v_add_f32 v{ACC+20}, {f2h(1e-6)}, v{ACC+20}")
    e(f"v_rcp_f32 v{ACC+20}, v{ACC+20}")
    e("s_nop 0")
    for r in range(20): e(f"v_mul_f32 v{ACC+r}, v{ACC+r}, v{ACC+20}")
    for j in range(10): e(f"v_cvt_pk_bf16_f32 v{40+j}, v{ACC+2*j}, v{ACC+2*j+1}")
    e("v_and_b32 v3, 15, v2"); e("v_mul_u32_u24 v3, 160, v3"); e("v_lshrrev_b32 v4, 4, v2"); e("v_mul_u32_u24 v4, 40, v4"); e("v_add_u32 v3, v3, v4")
    e(f"s_mul_i32 s29, s3, 2560"); e(f"s_add_u32 s29, s29, {L_OB}"); e("v_add_u32 v3, s29, v3")
    for j in range(5): e(f"ds_write_b64 v3, {vr(40+2*j,2)} offset:{8*j}")
    e("s_lshl_b32 s28, s27, 6"); e("s_lshl_b32 s30, s3, 4"); e("s_add_u32 s28, s28, s30"); e("s_mul_i32 s28, s28, 1280"); e("s_mul_i32 s30, s26, 160"); e("s_add_u32 s28, s28, s30")
    e(f"s_add_u32 s28, s28, {WS_OB}")
    for j in range(3):
        t = 52 + 3*j
        e(f"v_add_u32 v{t}, {64*j}, v2")
        e(f"v_mul_u32_u24 v{t+1}, 6554, v{t}"); e(f"v_lshrrev_b32 v{t+1}, 16, v{t+1}")
        e(f"v_mul_u32_u24 v{t+2}, 10, v{t+1}"); e(f"v_sub_u32 v{t+2}, v{t}, v{t+2}")
        e(f"v_mul_u32_u24 v{t+1}, 1280, v{t+1}"); e(f"v_lshl_add_u32 v{t+1}, v{t+2}, 4, v{t+1}")
        e(f"v_cmp_gt_u32 vcc, 160, v{t}"); e("v_mov_b32 v4, 0x7f000000"); e(f"v_lshlrev_b32 v{t}, 4, v{t}"); e(f"v_cndmask_b32 v{t+1}, v4, v{t+1}, vcc")
        e(f"v_add_u32 v{t}, s29, v{t}")
    e("s_waitcnt lgkmcnt(0)")
    for j in range(3): e(f"ds_read_b128 {vr(64+4*j,4)}, v{52+3*j}")
    e("s_waitcnt lgkmcnt(0)")
    for j in range(3): e(f"buffer_store_dwordx4 {vr(64+4*j,4)}, v{52+3*j+1}, s[8:11], s28 offen")
    e("s_waitcnt vmcnt(0)")
    e("s_barrier")
    e("s_endpgm")

def gen(e, name="attn_kernel"):
    kernel_header(e, name)
    e("s_cmp_ge_u32 s2, 256")
    e(f"s_cbranch_scc1 {name}_end")
    e("s_load_dwordx2 s[4:5], s[0:1], 88")
    ST.mark(e)
    e("v_lshrrev_b32 v1, 6, v0")
    e("v_and_b32 v2, 63, v0")
    e("s_mov_b32 s38, -1")
    e("v_readfirstlane_b32 s3, v1")
    e("s_mov_b32 s39, 0")
    e(f"v_lshlrev_b32 v{L16}, 4, v2")
    e(f"v_lshlrev_b32 v{L8}, 3, v2")
    e("s_waitcnt lgkmcnt(0)")
    make_srd(e, 8, 4, WS_BYTES)
    e("s_cmp_ge_u32 s3, 4")
    e(f"s_cbranch_scc1 {name}_helper")
    e(f"s_mov_b32 s18, {WS_KMAX}")
    e(f"buffer_load_dwordx2 v[{T0}:{T0+1}], v{L8}, s[8:11], s18 offen")
    e(f"s_mul_i32 s22, s3, {RING_W}"); e(f"s_add_u32 s21, s22, {RING_W}"); e("s_mov_b32 s20, s22")
    e(f"v_add_u32 v{A16}, s20, v{L16}"); e(f"v_add_u32 v{A8}, s20, v{L8}")
    for r in range(NA): e(f"v_accvgpr_write_b32 a{r}, 0")
    for r in range(8): e(f"v_mov_b32 v{P+r}, 0")
    for r in range(4): e(f"v_mov_b32 v{KV(1)[2]+r}, 0")
    e("s_waitcnt vmcnt(0)")
    k = T0
    e(f"v_max_f32 v{k}, v{k}, v{k+1}")
    for sh in ("row_shr:1", "row_shr:2", "row_shr:4", "row_shr:8", "row_bcast:15 row_mask:0xa", "row_bcast:31 row_mask:0xc"):
        e("s_nop 1")
        if "mask" in sh: e(f"v_max_f32_dpp v{k}, v{k}, v{k} {sh} bank_mask:0xf")
        else: e(f"v_max_f32_dpp v{k}, v{k}, v{k} {sh} row_mask:0xf bank_mask:0xf")
    e("s_nop 1")
    e(f"v_readlane_b32 s24, v{k}, 63")
    e(f"v_cmp_gt_u32 vcc, 32, v2")
    e("s_nop 1")
    e(f"v_mov_b32 v{k}, s24")
    e(f"v_sqrt_f32 v{k}, v{k}")
    e("s_nop 0")
    e(f"v_mul_f32 v{k}, 0x3f808312, v{k}")
    e("s_barrier")
    e(f"v_add_u32 v{T0+2}, {LDS_Q}, v{L16}"); e(f"v_add_u32 v{T0+3}, {LDS_Q+1024}, v{L8}")
    ldk(e, 0); ldv(e, 0)
    for u in range(8):
        e(f"ds_read_b128 {vr(QA(u),4)}, v{T0+2} offset:{u*QT_B}")
        e(f"ds_read_b64 {vr(QB(u),2)}, v{T0+3} offset:{u*QT_B}")
    adv(e)
    e("s_waitcnt lgkmcnt(0)")
    for u in range(8):
        t = T0 + 2 + (u % 2)
        e(f"v_mul_f32 v{t}, v{k}, v{QB(u)}")
        e(f"v_add_u32 v{t}, 0xffff, v{t}")
        e(f"v_lshrrev_b32 v{t}, 16, v{t}")
        e(f"v_or_b32 v{t}, 0x8000, v{t}")
        e(f"v_cndmask_b32 v{QB(u)}, v{t}, v{QB(u)}, vcc")
    ST.mark(e)
    e("s_nop 1")
    m1(e, 0); m2(e, 0)
    e("s_mov_b32 s25, 8")
    e("s_mov_b32 s46, 0x07060302")
    e(".p2align 6")
    e.label(f"{name}_loop")
    for n in range(16):
        u = n % 8; p = n // 8
        if u == 0 and p == 1:
            e("s_bitcmp1_b32 s25, 0")
            e(f"s_cbranch_scc1 {name}_nobar")
            e("s_barrier")
            e.label(f"{name}_nobar")
        if u == 7: e("s_waitcnt lgkmcnt(0)")
        m1(e, n+1)
        ex(e, n, 0, 4)
        pv(e, n-1, 1)
        ex(e, n, 4, 8)
        m2(e, n+1)
        cv(e, n, 0, 4)
        if u == 1:
            ldk(e, 1-p); ldv(e, 1-p)
        if u == 2:
            adv(e)
        ex(e, n, 8, 12)
        pv(e, n, 0)
        ex(e, n, 12, 16)
        cv(e, n, 4, 8)
    e("s_sub_u32 s25, s25, 1")
    e("s_cmp_lg_u32 s25, 0")
    e(f"s_cbranch_scc1 {name}_loop")
    ST.mark(e)
    e("s_nop 1")
    pv(e, 15, 1)
    e("s_nop 15"); e("s_nop 3")
    e("s_barrier")
    wa = 104
    e(f"s_mul_i32 s26, s3, {8*3*1024}")
    e(f"v_add_u32 v{wa}, s26, v{L16}")
    OWN = 4
    for w in range(4):
        e(f"s_cmp_lg_u32 s3, {w}")
        e(f"s_cbranch_scc1 {name}_own{w}")
        for u in range(8):
            if u // 2 == w: continue
            for i in range(3):
                e(f"ds_write_b128 v{wa}, a[{16*u+4*i}:{16*u+4*i+3}] offset:{(u*3+i)*1024}")
        for h in range(2):
            for r in range(12):
                e(f"v_accvgpr_read_b32 v{OWN+12*h+r}, a{16*(2*w+h)+r}")
        e.label(f"{name}_own{w}")
    RD = 28
    for d in range(1, 4):
        e(f"s_add_u32 s27, s3, {d}"); e("s_and_b32 s27, s27, 3")
        e(f"s_mul_i32 s27, s27, {8*3*1024}"); e(f"s_mul_i32 s28, s3, {2*3*1024}"); e("s_add_u32 s27, s27, s28")
        e(f"v_add_u32 v{104+d}, s27, v{L16}")
    e("v_and_b32 v3, 31, v2"); e("v_lshrrev_b32 v119, 5, v2")
    e("v_mul_u32_u24 v3, 320, v3"); e("v_lshl_add_u32 v3, v119, 3, v3")
    e(f"s_mul_i32 s27, s3, 80"); e(f"s_add_u32 s27, s27, {LDS_OUT}")
    oa = 108
    e(f"v_add_u32 v{oa}, s27, v3")
    e("s_waitcnt lgkmcnt(0)")
    e("s_barrier")
    for d in range(1, 4):
        for i in range(6):
            e(f"ds_read_b128 {vr(RD+24*(d-1)+4*i,4)}, v{104+d} offset:{i*1024}")
    for d in range(1, 4):
        e(f"s_waitcnt lgkmcnt({6*(3-d)})")
        for r in range(24):
            e(f"v_add_f32 v{OWN+r}, v{OWN+r}, v{RD+24*(d-1)+r}")
    for h in range(2):
        o = OWN + 12*h
        l = 110+2*h
        e(f"v_mov_b32 v{l}, v{o+8}"); e(f"v_mov_b32 v{l+1}, v{o+8}")
    e("s_nop 1")
    for h in range(2):
        l = 110+2*h
        e(f"v_permlane32_swap_b32 v{l}, v{l+1}")
    e("s_nop 1")
    for h in range(2):
        l = 110+2*h
        e(f"v_rcp_f32 v{l}, v{l+1}")
    e("s_nop 0")
    for h in range(2):
        o = OWN + 12*h; l = 110+2*h
        for r in range(12): e(f"v_mul_f32 v{o+r}, v{o+r}, v{l}")
        for i in range(6): e(f"v_cvt_pk_bf16_f32 v{RD+6*h+i}, v{o+2*i}, v{o+2*i+1}")
        e(f"ds_write_b64 v{oa}, {vr(RD+6*h,2)} offset:{40*h}")
        e(f"ds_write_b64 v{oa}, {vr(RD+6*h+2,2)} offset:{40*h+16}")
    e("s_mov_b64 exec, s[38:39]")
    for h in range(2):
        e(f"ds_write_b64 v{oa}, {vr(RD+6*h+4,2)} offset:{40*h+32}")
    e("s_mov_b64 exec, -1")
    e("s_lshr_b32 s12, s2, 2"); e(f"s_mul_i32 s12, s12, {32*1280}"); e("s_and_b32 s13, s2, 3"); e("s_mul_i32 s13, s13, 320"); e("s_add_u32 s12, s12, s13")
    e(f"s_add_u32 s12, s12, {WS_OA}")
    for j in range(3):
        t = 110+3*j
        e(f"s_mul_i32 s27, s3, 192"); e(f"s_add_u32 s27, s27, {64*j}")
        e(f"v_add_u32 v{t}, s27, v2")
        e(f"v_mul_u32_u24 v{t+2}, 3277, v{t}"); e(f"v_lshrrev_b32 v{t+2}, 16, v{t+2}")
        e(f"v_mul_u32_u24 v{t+1}, 20, v{t+2}"); e(f"v_sub_u32 v{t+1}, v{t}, v{t+1}")
        e(f"v_mul_u32_u24 v{t+2}, 1280, v{t+2}"); e(f"v_lshl_add_u32 v{t+2}, v{t+1}, 4, v{t+2}")
        e(f"v_lshlrev_b32 v{t+1}, 4, v{t}"); e(f"v_add_u32 v{t+1}, {LDS_OUT}, v{t+1}")
    e("s_waitcnt lgkmcnt(0)")
    e("s_barrier")
    for j in range(3):
        t = 110+3*j
        e(f"ds_read_b128 {vr(RD+4*j,4)}, v{t+1}")
        e(f"v_cmp_gt_u32 vcc, 640, v{t}")
        e("s_nop 1")
        e(f"v_cndmask_b32 v{t+2}, -1, v{t+2}, vcc") if False else None
        e(f"v_mov_b32 v3, 0x7f000000")
        e(f"v_cndmask_b32 v{t+2}, v3, v{t+2}, vcc")
    e("s_waitcnt lgkmcnt(0)")
    for j in range(3):
        t = 110+3*j
        e(f"buffer_store_dwordx4 {vr(RD+4*j,4)}, v{t+2}, s[8:11], s12 offen")
    e("s_waitcnt vmcnt(0)")
    ST.mark(e)
    ST.flush(e, 1, 100, 3)
    e("s_endpgm")
    e.label(f"{name}_helper")
    helper(e, name)
    e.label(f"{name}_end")
    e("s_endpgm")
    return (NV, NA), LDS_K2
```

```python
from common import *
from gemm2 import *
from stamp import Stamps
import os
ST = Stamps(os.environ.get("STAMP")=="1")
STG_B, NSTG = 53248, 3
W_OFF = 32768
LDS_K3 = NSTG*STG_B
L_RED = 0
L_ST = 40960

def gen(e, name="out_kernel"):
    G = Gemm(STG_B, NSTG, 5, 8)
    kernel_header(e, name)
    e("s_cmp_ge_u32 s2, 256")
    e(f"s_cbranch_scc1 {name}_end")
    e("s_load_dwordx2 s[32:33], s[0:1], 32")
    e("s_load_dwordx2 s[34:35], s[0:1], 64")
    e("s_load_dwordx2 s[36:37], s[0:1], 72")
    e("s_load_dwordx2 s[4:5], s[0:1], 88")
    ST.mark(e)
    e("v_lshrrev_b32 v2, 6, v0")
    e("v_and_b32 v1, 63, v0")
    e("s_and_b32 s40, s2, 1")
    e("v_readfirstlane_b32 s3, v2")
    e("s_lshr_b32 s41, s2, 1"); e("s_and_b32 s41, s41, 3"); e("s_lshl_b32 s41, s41, 2")
    e("s_lshr_b32 s42, s2, 3"); e("s_and_b32 s43, s42, 3"); e("s_add_u32 s41, s41, s43")
    e("s_lshr_b32 s42, s42, 2")
    e("s_movk_i32 s44, 1280")
    e("s_cmp_ge_u32 s3, 4")
    e(f"s_cbranch_scc1 {name}_loader")
    e("s_and_b32 s49, s3, 1"); e("s_lshl_b32 s50, s49, 14"); e("s_lshr_b32 s51, s3, 1"); e("s_lshl_b32 s51, s51, 13"); e("s_add_u32 s50, s50, s51")
    e("s_mul_i32 s51, s49, 10240"); e(f"s_add_u32 s51, s51, {W_OFF}")
    G.compute_setup(e, 50, 51)
    G.compute_main(e, name, ST)
    ST.mark(e)
    e("s_barrier")
    T = G.T
    e("s_waitcnt lgkmcnt(0)")
    e(f"v_lshlrev_b32 v{T}, 4, v1"); e("s_mul_i32 s52, s3, 10240"); e(f"v_add_u32 v{T+1}, s52, v{T}")
    e("s_xor_b32 s53, s3, 1"); e("s_mul_i32 s53, s53, 10240"); e(f"v_add_u32 v{T+2}, s53, v{T}")
    KEEP = 96
    e("s_cmp_eq_u32 s49, 0"); e(f"s_cbranch_scc0 {name}_k1")
    for kh in range(2):
        if kh == 1: e.label(f"{name}_k1")
        send = (2, 3) if kh == 0 else (0, 1); keep = (0, 1) if kh == 0 else (2, 3)
        for i, nt in enumerate(send):
            for mt in range(5):
                e(f"ds_write_b128 v{T+1}, {vr(G.acc(mt,nt),4)} offset:{L_RED + (i*5+mt)*1024}")
        for i, nt in enumerate(keep):
            for mt in range(5):
                for r in range(4): e(f"v_mov_b32 v{KEEP+(i*5+mt)*4+r}, v{G.acc(mt,nt)+r}")
        if kh == 0: e(f"s_branch {name}_kj")
    e.label(f"{name}_kj")
    e("s_waitcnt lgkmcnt(0)")
    e("s_barrier")
    RD = 16
    for j in range(10): e(f"ds_read_b128 {vr(RD+4*j,4)}, v{T+2} offset:{L_RED + j*1024}")
    e(f"v_and_b32 v{T+3}, 15, v1"); e(f"v_mul_u32_u24 v{T+3}, 160, v{T+3}"); e(f"v_lshrrev_b32 v{T+4}, 4, v1"); e(f"v_mul_u32_u24 v{T+4}, 40, v{T+4}")
    e(f"s_mul_i32 s52, s3, 5120"); e(f"s_add_u32 s52, s52, {L_ST}"); e(f"v_add3_u32 v{T+3}, v{T+3}, v{T+4}, s52")
    e("s_waitcnt lgkmcnt(0)")
    for r in range(40): e(f"v_add_f32 v{KEEP+r}, v{KEEP+r}, v{RD+r}")
    PK = 56
    for i in range(2):
        for j in range(10): e(f"v_cvt_pk_bf16_f32 v{PK+10*i+j}, v{KEEP+20*i+2*j}, v{KEEP+20*i+2*j+1}")
        for j in range(5): e(f"ds_write_b64 v{T+3}, {vr(PK+10*i+2*j,2)} offset:{i*2560 + 8*j}")
    make_srd(e, 16, 36, 2048*2560)
    e("s_lshl_b32 s53, s41, 7"); e("s_lshr_b32 s54, s3, 1"); e("s_lshl_b32 s54, s54, 6"); e("s_add_u32 s53, s53, s54"); e("s_lshl_b32 s54, s49, 5"); e("s_add_u32 s53, s53, s54")
    e("s_mul_i32 s53, s53, 2560"); e("s_mul_i32 s54, s40, 1280"); e("s_add_u32 s53, s53, s54"); e("s_mul_i32 s54, s42, 160"); e("s_add_u32 s53, s53, s54")
    for j in range(5):
        t = 76 + 2*j
        e(f"v_add_u32 v{t}, {64*j}, v1")
        e(f"v_mul_u32_u24 v{t+1}, 6554, v{t}"); e(f"v_lshrrev_b32 v{t+1}, 16, v{t+1}")
        e(f"v_mul_u32_u24 v{T+4}, 10, v{t+1}"); e(f"v_sub_u32 v{T+4}, v{t}, v{T+4}")
        e(f"v_mul_u32_u24 v{t+1}, 2560, v{t+1}"); e(f"v_lshl_add_u32 v{t+1}, v{T+4}, 4, v{t+1}")
        e(f"v_lshlrev_b32 v{t}, 4, v{t}"); e(f"v_add_u32 v{t}, s52, v{t}")
    e("s_waitcnt lgkmcnt(0)")
    for j in range(5): e(f"ds_read_b128 {vr(96+4*j,4)}, v{76+2*j}")
    for j in range(5):
        e(f"s_waitcnt lgkmcnt({4-j})")
        e(f"buffer_store_dwordx4 {vr(96+4*j,4)}, v{76+2*j+1}, s[16:19], s53 offen")
    e("s_waitcnt vmcnt(0)")
    ST.mark(e)
    if ST.en:
        make_srd(e, 16, 4, WS_BYTES)
    ST.flush(e, 2, T, 3, "s[16:19]")
    e("s_endpgm")
    e.label(f"{name}_loader")
    e("s_sub_u32 s3, s3, 4")
    G.loader_setup(e, 44)
    e("s_lshr_b32 s45, s3, 1"); e("s_and_b32 s46, s3, 1")
    e("s_lshl_b32 s20, s41, 7"); e("s_lshl_b32 s49, s46, 6"); e("s_add_u32 s20, s20, s49"); e("s_mul_i32 s20, s20, 1280"); e("s_mul_i32 s49, s45, 640"); e("s_add_u32 s20, s20, s49")
    e(f"s_mov_b32 s49, {WS_OB}"); e("s_cmp_eq_u32 s40, 0"); e(f"s_cselect_b32 s49, {WS_OA}, s49"); e("s_add_u32 s20, s20, s49")
    e("s_mul_i32 s21, s45, 320"); e("s_lshl_b32 s49, s46, 5"); e("s_add_u32 s21, s21, s49"); e("s_mul_i32 s21, s21, 1280"); e("s_mul_i32 s49, s42, 160"); e("s_add_u32 s21, s21, s49")
    e(f"s_mov_b32 s22, {64*1280}")
    e("s_lshl_b32 s24, s45, 14"); e("s_lshl_b32 s49, s46, 13"); e("s_add_u32 s24, s24, s49")
    e("s_mul_i32 s25, s45, 10240"); e("s_mul_i32 s49, s46, 5120"); e("s_add_u32 s25, s25, s49"); e(f"s_add_u32 s25, s25, {W_OFF}")
    e("s_add_u32 s23, s42, s43"); e("s_mul_i32 s49, s23, 52"); e("s_lshr_b32 s49, s49, 8"); e("s_mul_i32 s49, s49, 5"); e("s_sub_u32 s23, s23, s49")
    e("s_waitcnt lgkmcnt(0)")
    make_srd(e, 8, 4, WS_BYTES)
    e("s_cmp_eq_u32 s40, 0")
    e("s_cselect_b32 s12, s32, s34"); e("s_cselect_b32 s13, s33, s35")
    e("s_and_b32 s13, s13, 0xffff"); e("s_mov_b32 s14, 819200"); e("s_mov_b32 s15, 0x20000")
    G.loader_main(e, name, 5)
    e.label(f"{name}_end")
    e("s_endpgm")
    return G.NV, LDS_K3
```

```python
from common import *
class Stamps:
    def __init__(self, enabled, base=60, maxn=8):
        self.en = enabled; self.base = base; self.n = 0; self.maxn = maxn
    def mark(self, e):
        if not self.en: return
        b = self.base + 4*self.n
        e(f"s_memrealtime s[{b}:{b+1}]")
        e(f"s_memtime s[{b+2}:{b+3}]")
        self.n += 1
    def flush(self, e, kidx, vtmp, s_wave, srd="s[8:11]"):
        if not self.en: return
        e("s_waitcnt lgkmcnt(0)")
        e("s_mov_b64 exec, 1")
        e(f"s_lshl_b32 s96, s2, 4")
        e(f"s_add_u32 s96, s96, s{s_wave}")
        e(f"s_lshl_b32 s96, s96, 6")
        e(f"s_add_u32 s96, s96, {WS_STAMP + kidx*0x40000}")
        e(f"v_mov_b32 v{vtmp}, 0")
        for i in range(self.n):
            b = self.base + 4*i
            e(f"v_mov_b32 v{vtmp+2}, s{b}")
            e(f"v_mov_b32 v{vtmp+3}, s{b+2}")
            e(f"buffer_store_dwordx2 v[{vtmp+2}:{vtmp+3}], v{vtmp}, {srd}, s96 offen offset:{8*i}")
            e("s_nop 1")
        e("s_waitcnt vmcnt(0)")
def read_stamps(ctx, kidx, nwg, nwave, n):
    import numpy as np
    a = ctx.ws_read(WS_STAMP + kidx*0x40000, nwg*16*64, np.uint32).reshape(nwg,16,8,2)
    return a[:, :nwave, :n, :]
```

```python
import sys
from common import *
def build(kernels, path, launches):
    hdr = open("cdna_kernels/%s.s.ref" % NAME).read().split("\n")
    top = [l for l in hdr if l.startswith(";") and "@launch" not in l and "Override launch" not in l and "grid=ceil" not in l]
    out = top[:]
    for (k, g, b, lds) in launches:
        out.append(f"; @launch kernel={k} grid=({g},1,1) block=({b},1,1) lds={lds}")
    out.append('.amdgcn_target "amdgcn-amd-amdhsa--gfx950"')
    out.append(".text")
    descs = []
    for (name, fn) in kernels:
        e = E()
        nv, lds = fn(e, name)
        out.append(e.text())
        if isinstance(nv, tuple): descs.append(kernel_desc(name, nv[0], agprs=nv[1]))
        else: descs.append(kernel_desc(name, nv))
    out.append(".p2align 8\n.fill 4096, 4, 0xbf800000")
    out.append('.section .rodata,"a"')
    out += descs
    open(path, "w").write("\n".join(out))
if __name__ == "__main__":
    import k1, k2r, k3
    which = sys.argv[1] if len(sys.argv) > 1 else "all"
    if which == "k2":
        build([("attn_kernel", k2r.gen)], "k2test.s", [("attn_kernel", 256, 512, k2r.LDS_K2)])
    else:
        build([("proj_kernel", k1.gen), ("attn_kernel", k2r.gen), ("out_kernel", k3.gen)], sys.argv[2] if len(sys.argv) > 2 else "full.s",
              [("proj_kernel", 256, 512, k1.LDS_K1), ("attn_kernel", 256, 512, k2r.LDS_K2), ("out_kernel", 256, 512, k3.LDS_K3)])
```

```python
from common import *
from stamp import Stamps
import os
ST = Stamps(os.environ.get("STAMP")=="1")
VAR = os.environ.get("VAR","")
TILE_B = 3584
QT_B = 1536
NSL = 8
RING_W = NSL*TILE_B
LDS_RING = 0
LDS_Q = 4*RING_W
LDS_RED = 0
LDS_OUT = LDS_Q
LDS_B = LDS_Q + 8*QT_B
LDS_K2 = LDS_B + 20480
QA = lambda u: 4 + 4*u
QB = lambda u: 36 + 2*u
S = (52, 68)
P = 84
def KV(p):
    b = 92 + 14*p
    return b, b+4, b+8, b+12
L16, L8 = 120, 121
A16, A8 = 122, 123
T0 = 124
NV = 128
NA = 128

def m1(e, n):
    u = n % 8; p = (n // 8) % 2
    e(f"v_mfma_f32_32x32x16_bf16 {vr(S[n%2],16)}, {vr(KV(p)[0],4)}, {vr(QA(u),4)}, 0")
def m2(e, n):
    if "nom2" in VAR: return
    u = n % 8; p = (n // 8) % 2
    e(f"v_mfma_f32_32x32x8_bf16 {vr(S[n%2],16)}, {vr(KV(p)[3],2)}, {vr(QB(u),2)}, {vr(S[n%2],16)}")
def pv(e, n, h):
    u = n % 8; p = (n // 8) % 2
    if "nopv" in VAR: return
    if "pvswap" in VAR:
        e(f"v_mfma_f32_32x32x16_bf16 a[{16*u}:{16*u+15}], {vr(P+4*h,4)}, {vr(KV(p)[1+h],4)}, a[{16*u}:{16*u+15}]"); return
    e(f"v_mfma_f32_32x32x16_bf16 a[{16*u}:{16*u+15}], {vr(KV(p)[1+h],4)}, {vr(P+4*h,4)}, a[{16*u}:{16*u+15}]")
def ex(e, n, a, b):
    if "exp16" in VAR:
        for r in range(a, b): e(f"v_exp_f16 v{S[n%2]+r}, v{S[n%2]+r}")
        return
    if "noexp" in VAR:
        for r in range(a, b): e(f"v_mov_b32 v{S[n%2]+r}, v{S[n%2]+r}")
        return
    for r in range(a, b): e(f"v_exp_f32 v{S[n%2]+r}, v{S[n%2]+r}")
def cv(e, n, a, b):
    if "perm" in VAR:
        for i in range(a, b): e(f"v_perm_b32 v{P+i}, v{S[n%2]+2*i+1}, v{S[n%2]+2*i}, s46")
        return
    for i in range(a, b): e(f"v_cvt_pk_bf16_f32 v{P+i}, v{S[n%2]+2*i}, v{S[n%2]+2*i+1}")
def ldk(e, p):
    e(f"ds_read_b128 {vr(KV(p)[0],4)}, v{A16}")
    e(f"ds_read_b64 {vr(KV(p)[3],2)}, v{A8} offset:3072")
def ldv(e, p):
    e(f"ds_read_b128 {vr(KV(p)[1],4)}, v{A16} offset:1024")
    e(f"ds_read_b128 {vr(KV(p)[2],4)}, v{A16} offset:2048")
def adv(e):
    e(f"s_add_u32 s20, s20, {TILE_B}")
    e("s_cmp_ge_u32 s20, s21")
    e("s_cselect_b32 s20, s22, s20")
    e(f"v_add_u32 v{A16}, s20, v{L16}")
    e(f"v_add_u32 v{A8}, s20, v{L8}")

def dma_tile(e, s_g, s_l):
    e(f"s_mov_b32 m0, s{s_l}")
    e("s_nop 0")
    for o in (0, 1024, 2048):
        e(f"buffer_load_dwordx4 v{L16}, s[8:11], s{s_g} offen offset:{o} lds")
    e("s_mov_b64 exec, s[38:39]")
    e(f"buffer_load_dwordx4 v{L16}, s[8:11], s{s_g} offen offset:3072 lds")
    e("s_mov_b64 exec, -1")

L_KVF = LDS_B
L_BZ  = LDS_B + 7680
L_OB  = LDS_B + 9728

def helper(e, name):
    e("s_sub_u32 s3, s3, 4")
    if "noprio" not in VAR: e("s_setprio 2")
    e("s_load_dwordx2 s[6:7], s[0:1], 80")
    e("s_load_dwordx2 s[40:41], s[0:1], 32")
    e("s_load_dwordx2 s[42:43], s[0:1], 64")
    e(f"s_mul_i32 s20, s3, {16*TILE_B}"); e(f"s_add_u32 s20, s20, {WS_KV}")
    e(f"s_mul_i32 s22, s3, {RING_W}")
    e("s_mov_b32 s21, s22")
    def tiles(n):
        for j in range(n):
            dma_tile(e, 20, 21)
            e(f"s_add_u32 s20, s20, {TILE_B}"); e(f"s_add_u32 s21, s21, {TILE_B}")
    tiles(1)
    e("s_lshr_b32 s12, s2, 2"); e("s_lshl_b32 s12, s12, 5"); e("s_and_b32 s13, s2, 3"); e("s_lshl_b32 s13, s13, 3"); e("s_add_u32 s12, s12, s13")
    e(f"s_mul_i32 s12, s12, {QT_B}"); e(f"s_add_u32 s12, s12, {WS_Q}"); e("s_mul_i32 s13, s3, 3072"); e("s_add_u32 s12, s12, s13")
    e(f"s_add_u32 s13, s13, {LDS_Q}"); e("s_mov_b32 m0, s13"); e("s_nop 0")
    for o in (0, 1024, 2048): e(f"buffer_load_dwordx4 v{L16}, s[8:11], s12 offen offset:{o} lds")
    tiles(1)
    e("s_mov_b32 s25, 6")
    e.label(f"{name}_hl0")
    tiles(1)
    e("s_sub_u32 s25, s25, 1"); e("s_cmp_lg_u32 s25, 0"); e(f"s_cbranch_scc1 {name}_hl0")
    e("s_and_b32 s26, s2, 7"); e("s_lshr_b32 s27, s2, 3")
    e(f"s_mul_i32 s28, s26, {16*15360}"); e("s_mul_i32 s29, s27, 480"); e("s_add_u32 s28, s28, s29"); e("s_mul_i32 s29, s3, 120"); e("s_add_u32 s28, s28, s29")
    e(f"s_add_u32 s28, s28, {WS_KVP}")
    e("v_mov_b32 v3, 0x7f000000"); e("v_cmp_gt_u32 vcc, 15, v2"); e("s_nop 1"); e(f"v_cndmask_b32 v3, v3, v{L8}, vcc")
    for p in range(16):
        e(f"buffer_load_dwordx2 v[{8+2*p}:{9+2*p}], v3, s[8:11], s28 offen")
        if p < 15: e("s_add_u32 s28, s28, 15360")
    for r in range(4): e(f"v_mov_b32 v{4+r}, 0")
    e(f"s_lshl_b32 s29, s3, 9"); e(f"s_add_u32 s29, s29, {L_BZ}"); e(f"v_add_u32 v40, s29, v{L8}"); e("ds_write_b64 v40, v[4:5]")
    e("s_waitcnt vmcnt(40) lgkmcnt(0)")
    e("s_barrier")
    e("s_waitcnt vmcnt(24)")
    e("s_barrier")
    e("s_mov_b32 s21, s22"); tiles(2)
    e("s_lshl_b32 s28, s27, 2"); e("s_add_u32 s28, s28, s3"); e("s_lshl_b32 s28, s28, 3"); e("s_add_u32 s28, s28, s26"); e("s_mul_i32 s28, s28, 2560")
    e(f"s_add_u32 s28, s28, {WS_PQ}")
    e(f"buffer_load_dwordx4 v[48:51], v{L16}, s[8:11], s28 offen")
    e(f"buffer_load_dwordx4 v[52:55], v{L16}, s[8:11], s28 offen offset:1024")
    e(f"buffer_load_dwordx2 v[56:57], v{L8}, s[8:11], s28 offen offset:2048")
    e("s_waitcnt vmcnt(11)")
    for p in range(1, 16):
        e(f"v_add_f32 v8, v8, v{8+2*p}"); e(f"v_add_f32 v9, v9, v{9+2*p}")
    e("v_cvt_pk_bf16_f32 v8, v8, v9")
    e("s_mul_i32 s28, s26, 7680"); e("s_mul_i32 s29, s27, 240"); e("s_add_u32 s28, s28, s29"); e("s_mul_i32 s29, s3, 60"); e("s_add_u32 s28, s28, s29")
    e(f"s_add_u32 s28, s28, {WS_KVF}")
    e("v_mov_b32 v3, 0x7f000000"); e("v_lshlrev_b32 v4, 2, v2"); e("v_cmp_gt_u32 vcc, 15, v2"); e("s_nop 1"); e("v_cndmask_b32 v3, v3, v4, vcc")
    e("buffer_store_dword v8, v3, s[8:11], s28 offen sc0 sc1")
    e("s_waitcnt vmcnt(0)")
    make_srd(e, 44, 6, 256)
    e("s_lshl_b32 s29, s26, 5")
    e("s_mov_b64 exec, 1"); e("v_mov_b32 v4, 1"); e("v_mov_b32 v5, s29")
    e("buffer_atomic_add v4, v5, s[44:47], 0 offen sc1")
    e("s_mov_b64 exec, -1")
    e("s_barrier")
    tiles(4)
    Pq, EM, FT = 20, 40, 60
    for i in range(10):
        e(f"v_lshlrev_b32 v{Pq+2*i}, 16, v{48+i}"); e(f"v_and_b32 v{Pq+2*i+1}, 0xffff0000, v{48+i}")
    e(f"s_mov_b32 s98, {f2h(LOG2E)}")
    features(e, Pq, Pq, EM, FT)
    PH = 68
    for j in range(10): e(f"v_cvt_pk_bf16_f32 v{PH+j}, v{Pq+2*j}, v{Pq+2*j+1}")
    for j in range(10): e(f"v_cvt_pk_bf16_f32 v{PH+10+j}, v{EM+2*j}, v{EM+2*j+1}")
    e("s_mov_b32 s30, 0")
    e("s_mov_b64 exec, 1")
    e.label(f"{name}_poll")
    e("buffer_load_dword v4, v5, s[44:47], 0 offen sc0 sc1")
    e("s_waitcnt vmcnt(0)")
    e("v_readfirstlane_b32 s31, v4")
    e("s_add_u32 s30, s30, 1")
    e("s_cmp_ge_u32 s31, 128"); e(f"s_cbranch_scc1 {name}_pdone")
    e("s_cmp_gt_u32 s30, 2000000"); e(f"s_cbranch_scc1 {name}_pdone")
    e("s_sleep 8"); e(f"s_branch {name}_poll")
    e.label(f"{name}_pdone")
    e("s_mov_b64 exec, -1")
    e("s_mul_i32 s28, s26, 7680"); e("s_lshl_b32 s29, s3, 11"); e("s_add_u32 s28, s28, s29"); e(f"s_add_u32 s28, s28, {WS_KVF}")
    e(f"buffer_load_dwordx4 v[8:11], v{L16}, s[8:11], s28 offen sc0 sc1")
    e(f"buffer_load_dwordx4 v[12:15], v{L16}, s[8:11], s28 offen offset:1024 sc0 sc1")
    e(f"s_add_u32 s29, s29, {L_KVF}"); e(f"v_add_u32 v4, s29, v{L16}")
    e("s_waitcnt vmcnt(0)")
    e("ds_write_b128 v4, v[8:11]")
    e("s_cmp_eq_u32 s3, 3"); e("s_cselect_b32 s30, -1, -1"); e("s_cselect_b32 s31, 0, -1"); e("s_mov_b64 exec, s[30:31]")
    e("ds_write_b128 v4, v[12:15] offset:1024")
    e("s_mov_b64 exec, -1")
    e("s_waitcnt lgkmcnt(0)")
    e("s_barrier")
    tiles(2)
    e("v_lshrrev_b32 v3, 4, v2"); e("v_and_b32 v4, 3, v2"); e("v_cmp_eq_u32 vcc, v3, v4")
    e("v_mul_u32_u24 v3, 1920, v3"); e("v_bfe_u32 v4, v2, 2, 2"); e("v_mul_u32_u24 v4, 48, v4"); e("v_add_u32 v3, v3, v4"); e(f"v_add_u32 v3, {L_KVF}, v3")
    e(f"v_mov_b32 v4, {L_BZ}"); e("v_cndmask_b32 v3, v4, v3, vcc")
    ACC, FA = 8, (32, 88)
    def rd(ks):
        for mt in range(6):
            for b in range(2):
                d = FA[ks % 2] + 4*mt + 2*b
                e(f"ds_read_b64_tr_b16 v[{d}:{d+1}], v3 offset:{(8*ks+4*b)*48 + 8*mt}")
    rd(0)
    for ks in range(5):
        if ks < 4: rd(ks+1); e("s_waitcnt lgkmcnt(12)")
        else: e("s_waitcnt lgkmcnt(0)")
        for mt in range(6):
            c = "0" if ks == 0 else vr(ACC+4*mt, 4)
            e(f"v_mfma_f32_16x16x32_bf16 {vr(ACC+4*mt,4)}, {vr(FA[ks%2]+4*mt,4)}, {vr(PH+4*ks,4)}, {c}")
        e("s_nop 3")
    e("s_nop 7")
    e(f"v_add_f32 v{ACC+20}, {f2h(1e-6)}, v{ACC+20}")
    e(f"v_rcp_f32 v{ACC+20}, v{ACC+20}")
    e("s_nop 0")
    for r in range(20): e(f"v_mul_f32 v{ACC+r}, v{ACC+r}, v{ACC+20}")
    for j in range(10): e(f"v_cvt_pk_bf16_f32 v{40+j}, v{ACC+2*j}, v{ACC+2*j+1}")
    e("v_and_b32 v3, 15, v2"); e("v_mul_u32_u24 v3, 160, v3"); e("v_lshrrev_b32 v4, 4, v2"); e("v_mul_u32_u24 v4, 40, v4"); e("v_add_u32 v3, v3, v4")
    e(f"s_mul_i32 s29, s3, 2560"); e(f"s_add_u32 s29, s29, {L_OB}"); e("v_add_u32 v3, s29, v3")
    for j in range(5): e(f"ds_write_b64 v3, {vr(40+2*j,2)} offset:{8*j}")
    e("s_lshl_b32 s28, s27, 6"); e("s_lshl_b32 s30, s3, 4"); e("s_add_u32 s28, s28, s30"); e("s_mul_i32 s28, s28, 1280"); e("s_mul_i32 s30, s26, 160"); e("s_add_u32 s28, s28, s30")
    e(f"s_add_u32 s28, s28, {WS_OB}")
    for j in range(3):
        t = 52 + 3*j
        e(f"v_add_u32 v{t}, {64*j}, v2")
        e(f"v_mul_u32_u24 v{t+1}, 6554, v{t}"); e(f"v_lshrrev_b32 v{t+1}, 16, v{t+1}")
        e(f"v_mul_u32_u24 v{t+2}, 10, v{t+1}"); e(f"v_sub_u32 v{t+2}, v{t}, v{t+2}")
        e(f"v_mul_u32_u24 v{t+1}, 1280, v{t+1}"); e(f"v_lshl_add_u32 v{t+1}, v{t+2}, 4, v{t+1}")
        e(f"v_cmp_gt_u32 vcc, 160, v{t}"); e("v_mov_b32 v4, 0x7f000000"); e(f"v_lshlrev_b32 v{t}, 4, v{t}"); e(f"v_cndmask_b32 v{t+1}, v4, v{t+1}, vcc")
        e(f"v_add_u32 v{t}, s29, v{t}")
    e("s_waitcnt lgkmcnt(0)")
    for j in range(3): e(f"ds_read_b128 {vr(64+4*j,4)}, v{52+3*j}")
    e("s_waitcnt lgkmcnt(0)")
    for j in range(3): e(f"buffer_store_dwordx4 {vr(64+4*j,4)}, v{52+3*j+1}, s[8:11], s28 offen")
    e("s_waitcnt vmcnt(3)")
    e("s_barrier")
    e("s_cmp_lg_u32 s3, 0"); e(f"s_cbranch_scc1 {name}_notouch")
    make_srd(e, 48, 40, 819200); make_srd(e, 52, 42, 819200)
    e("s_mul_i32 s29, s2, 3200"); e("v_lshlrev_b32 v3, 7, v2"); e("v_mov_b32 v4, 0x7f000000"); e("v_cmp_gt_u32 vcc, 25, v2"); e("s_nop 1"); e("v_cndmask_b32 v3, v4, v3, vcc")
    e("buffer_load_dword v18, v3, s[48:51], s29 offen"); e("buffer_load_dword v19, v3, s[52:55], s29 offen")
    e.label(f"{name}_notouch")
    e("s_endpgm")

def gen(e, name="attn_kernel"):
    kernel_header(e, name)
    e("s_cmp_ge_u32 s2, 256")
    e(f"s_cbranch_scc1 {name}_end")
    e("s_load_dwordx2 s[4:5], s[0:1], 88")
    ST.mark(e)
    e("v_lshrrev_b32 v1, 6, v0")
    e("v_and_b32 v2, 63, v0")
    e("s_mov_b32 s38, -1")
    e("v_readfirstlane_b32 s3, v1")
    e("s_mov_b32 s39, 0")
    e(f"v_lshlrev_b32 v{L16}, 4, v2")
    e(f"v_lshlrev_b32 v{L8}, 3, v2")
    e("s_waitcnt lgkmcnt(0)")
    make_srd(e, 8, 4, WS_BYTES)
    e("s_cmp_ge_u32 s3, 4")
    e(f"s_cbranch_scc1 {name}_helper")
    e(f"s_mov_b32 s18, {WS_KMAX}")
    e(f"buffer_load_dwordx2 v[{T0}:{T0+1}], v{L8}, s[8:11], s18 offen")
    e(f"s_mul_i32 s22, s3, {RING_W}"); e(f"s_add_u32 s21, s22, {RING_W}"); e("s_mov_b32 s20, s22")
    e(f"v_add_u32 v{A16}, s20, v{L16}"); e(f"v_add_u32 v{A8}, s20, v{L8}")
    for r in range(NA): e(f"v_accvgpr_write_b32 a{r}, 0")
    for r in range(8): e(f"v_mov_b32 v{P+r}, 0")
    for r in range(4): e(f"v_mov_b32 v{KV(1)[2]+r}, 0")
    e("s_waitcnt vmcnt(0)")
    k = T0
    e(f"v_max_f32 v{k}, v{k}, v{k+1}")
    for sh in ("row_shr:1", "row_shr:2", "row_shr:4", "row_shr:8", "row_bcast:15 row_mask:0xa", "row_bcast:31 row_mask:0xc"):
        e("s_nop 1")
        if "mask" in sh: e(f"v_max_f32_dpp v{k}, v{k}, v{k} {sh} bank_mask:0xf")
        else: e(f"v_max_f32_dpp v{k}, v{k}, v{k} {sh} row_mask:0xf bank_mask:0xf")
    e("s_nop 1")
    e(f"v_readlane_b32 s24, v{k}, 63")
    e(f"v_cmp_gt_u32 vcc, 32, v2")
    e("s_nop 1")
    e(f"v_mov_b32 v{k}, s24")
    e(f"v_sqrt_f32 v{k}, v{k}")
    e("s_nop 0")
    e(f"v_mul_f32 v{k}, 0x3f808312, v{k}")
    e("s_barrier")
    e(f"v_add_u32 v{T0+2}, {LDS_Q}, v{L16}"); e(f"v_add_u32 v{T0+3}, {LDS_Q+1024}, v{L8}")
    ldk(e, 0); ldv(e, 0)
    for u in range(8):
        e(f"ds_read_b128 {vr(QA(u),4)}, v{T0+2} offset:{u*QT_B}")
        e(f"ds_read_b64 {vr(QB(u),2)}, v{T0+3} offset:{u*QT_B}")
    adv(e)
    e("s_waitcnt lgkmcnt(0)")
    for u in range(8):
        t = T0 + 2 + (u % 2)
        e(f"v_mul_f32 v{t}, v{k}, v{QB(u)}")
        e(f"v_add_u32 v{t}, 0xffff, v{t}")
        e(f"v_lshrrev_b32 v{t}, 16, v{t}")
        e(f"v_or_b32 v{t}, 0x8000, v{t}")
        e(f"v_cndmask_b32 v{QB(u)}, v{t}, v{QB(u)}, vcc")
    ST.mark(e)
    e("s_nop 1")
    m1(e, 0); m2(e, 0)
    e("s_mov_b32 s25, 8")
    e("s_mov_b32 s46, 0x07060302")
    e(".p2align 6")
    e.label(f"{name}_loop")
    for n in range(16):
        u = n % 8; p = n // 8
        if u == 0 and p == 1:
            e("s_bitcmp1_b32 s25, 0")
            e(f"s_cbranch_scc1 {name}_nobar")
            e("s_barrier")
            e.label(f"{name}_nobar")
        if u == 7: e("s_waitcnt lgkmcnt(0)")
        m1(e, n+1)
        ex(e, n, 0, 4)
        pv(e, n-1, 1)
        ex(e, n, 4, 8)
        m2(e, n+1)
        cv(e, n, 0, 4)
        if u == 1:
            ldk(e, 1-p); ldv(e, 1-p)
        if u == 2:
            adv(e)
        ex(e, n, 8, 12)
        pv(e, n, 0)
        ex(e, n, 12, 16)
        cv(e, n, 4, 8)
    e("s_sub_u32 s25, s25, 1")
    e("s_cmp_lg_u32 s25, 0")
    e(f"s_cbranch_scc1 {name}_loop")
    ST.mark(e)
    e("s_nop 1")
    pv(e, 15, 1)
    e("s_nop 15"); e("s_nop 3")
    e("s_barrier")
    wa = 104
    e(f"s_mul_i32 s26, s3, {8*3*1024}")
    e(f"v_add_u32 v{wa}, s26, v{L16}")
    OWN = 4
    for w in range(4):
        e(f"s_cmp_lg_u32 s3, {w}")
        e(f"s_cbranch_scc1 {name}_own{w}")
        for u in range(8):
            if u // 2 == w: continue
            for i in range(3):
                e(f"ds_write_b128 v{wa}, a[{16*u+4*i}:{16*u+4*i+3}] offset:{(u*3+i)*1024}")
        for h in range(2):
            for r in range(12):
                e(f"v_accvgpr_read_b32 v{OWN+12*h+r}, a{16*(2*w+h)+r}")
        e.label(f"{name}_own{w}")
    RD = 28
    for d in range(1, 4):
        e(f"s_add_u32 s27, s3, {d}"); e("s_and_b32 s27, s27, 3")
        e(f"s_mul_i32 s27, s27, {8*3*1024}"); e(f"s_mul_i32 s28, s3, {2*3*1024}"); e("s_add_u32 s27, s27, s28")
        e(f"v_add_u32 v{104+d}, s27, v{L16}")
    e("v_and_b32 v3, 31, v2"); e("v_lshrrev_b32 v119, 5, v2")
    e("v_mul_u32_u24 v3, 320, v3"); e("v_lshl_add_u32 v3, v119, 3, v3")
    e(f"s_mul_i32 s27, s3, 80"); e(f"s_add_u32 s27, s27, {LDS_OUT}")
    oa = 108
    e(f"v_add_u32 v{oa}, s27, v3")
    e("s_waitcnt lgkmcnt(0)")
    e("s_barrier")
    for d in range(1, 4):
        for i in range(6):
            e(f"ds_read_b128 {vr(RD+24*(d-1)+4*i,4)}, v{104+d} offset:{i*1024}")
    for d in range(1, 4):
        e(f"s_waitcnt lgkmcnt({6*(3-d)})")
        for r in range(24):
            e(f"v_add_f32 v{OWN+r}, v{OWN+r}, v{RD+24*(d-1)+r}")
    for h in range(2):
        o = OWN + 12*h
        l = 110+2*h
        e(f"v_mov_b32 v{l}, v{o+8}"); e(f"v_mov_b32 v{l+1}, v{o+8}")
    e("s_nop 1")
    for h in range(2):
        l = 110+2*h
        e(f"v_permlane32_swap_b32 v{l}, v{l+1}")
    e("s_nop 1")
    for h in range(2):
        l = 110+2*h
        e(f"v_rcp_f32 v{l}, v{l+1}")
    e("s_nop 0")
    for h in range(2):
        o = OWN + 12*h; l = 110+2*h
        for r in range(12): e(f"v_mul_f32 v{o+r}, v{o+r}, v{l}")
        for i in range(6): e(f"v_cvt_pk_bf16_f32 v{RD+6*h+i}, v{o+2*i}, v{o+2*i+1}")
        e(f"ds_write_b64 v{oa}, {vr(RD+6*h,2)} offset:{40*h}")
        e(f"ds_write_b64 v{oa}, {vr(RD+6*h+2,2)} offset:{40*h+16}")
    e("s_mov_b64 exec, s[38:39]")
    for h in range(2):
        e(f"ds_write_b64 v{oa}, {vr(RD+6*h+4,2)} offset:{40*h+32}")
    e("s_mov_b64 exec, -1")
    e("s_lshr_b32 s12, s2, 2"); e(f"s_mul_i32 s12, s12, {32*1280}"); e("s_and_b32 s13, s2, 3"); e("s_mul_i32 s13, s13, 320"); e("s_add_u32 s12, s12, s13")
    e(f"s_add_u32 s12, s12, {WS_OA}")
    for j in range(3):
        t = 110+3*j
        e(f"s_mul_i32 s27, s3, 192"); e(f"s_add_u32 s27, s27, {64*j}")
        e(f"v_add_u32 v{t}, s27, v2")
        e(f"v_mul_u32_u24 v{t+2}, 3277, v{t}"); e(f"v_lshrrev_b32 v{t+2}, 16, v{t+2}")
        e(f"v_mul_u32_u24 v{t+1}, 20, v{t+2}"); e(f"v_sub_u32 v{t+1}, v{t}, v{t+1}")
        e(f"v_mul_u32_u24 v{t+2}, 1280, v{t+2}"); e(f"v_lshl_add_u32 v{t+2}, v{t+1}, 4, v{t+2}")
        e(f"v_lshlrev_b32 v{t+1}, 4, v{t}"); e(f"v_add_u32 v{t+1}, {LDS_OUT}, v{t+1}")
    e("s_waitcnt lgkmcnt(0)")
    e("s_barrier")
    for j in range(3):
        t = 110+3*j
        e(f"ds_read_b128 {vr(RD+4*j,4)}, v{t+1}")
        e(f"v_cmp_gt_u32 vcc, 640, v{t}")
        e("s_nop 1")
        e(f"v_cndmask_b32 v{t+2}, -1, v{t+2}, vcc") if False else None
        e(f"v_mov_b32 v3, 0x7f000000")
        e(f"v_cndmask_b32 v{t+2}, v3, v{t+2}, vcc")
    e("s_waitcnt lgkmcnt(0)")
    for j in range(3):
        t = 110+3*j
        e(f"buffer_store_dwordx4 {vr(RD+4*j,4)}, v{t+2}, s[8:11], s12 offen")
    e("s_waitcnt vmcnt(0)")
    ST.mark(e)
    ST.flush(e, 1, 100, 3)
    e("s_endpgm")
    e.label(f"{name}_helper")
    helper(e, name)
    e.label(f"{name}_end")
    e("s_endpgm")
    return (NV, NA), LDS_K2
```

```python
NAME = "concat_heads__grouped_kv_mqa__linear_kernel_hedgehog__prompt"

WS_Q    = 0x000000
WS_KV   = 0x300000
WS_KMAX = 0x340000
WS_OA   = 0x400000
WS_OB   = 0x700000
WS_PQ   = 0xA00000
WS_PHIQ = 0xA00000
WS_KVP  = 0x1000000
WS_KVF  = 0x1200000
WS_WOI  = 0x1400000
WS_CNT  = 0x1300000
WS_BYTES = 268435456

import os as _os
STFLAG = _os.environ.get("STFLAG", "")
class E:
    def __init__(self):
        self.l = []
        self.sf = STFLAG
    def __call__(self, s):
        for x in s.split("\n"):
            x = x.strip()
            if x.startswith("buffer_store") and self.sf and " sc" not in x and "s96" not in x:
                x = x + " " + self.sf
            if x:
                self.l.append("  " + x)
    def label(self, n):
        self.l.append(n + ":")
    def c(self, s):
        self.l.append("  ; " + s)
    def raw(self, s):
        self.l.append(s)
    def text(self):
        return "\n".join(self.l) + "\n"

def vr(a, n):
    return f"v[{a}:{a+n-1}]" if n > 1 else f"v{a}"
def sr(a, n):
    return f"s[{a}:{a+n-1}]" if n > 1 else f"s{a}"

def kernel_header(e, name):
    e.raw(f".globl {name}")
    e.raw(".p2align 8")
    e.raw(f".type {name},@function")
    e.raw(f"{name}:")

def kernel_desc(name, vgprs, sgprs=102, agprs=0):
    acc = (vgprs + 3) // 4 * 4
    return f""".p2align 6
.amdhsa_kernel {name}
  .amdhsa_next_free_vgpr {acc + agprs}
  .amdhsa_next_free_sgpr {sgprs}
  .amdhsa_accum_offset {acc}
  .amdhsa_group_segment_fixed_size 0
  .amdhsa_kernarg_size 96
  .amdhsa_user_sgpr_count 2
  .amdhsa_user_sgpr_kernarg_segment_ptr 1
  .amdhsa_system_sgpr_workgroup_id_x 1
  .amdhsa_float_denorm_mode_32 3
.end_amdhsa_kernel
"""

def make_srd(e, d, base, nbytes):
    e(f"s_mov_b32 s{d}, s{base}")
    e(f"s_and_b32 s{d+1}, s{base+1}, 0xffff")
    e(f"s_mov_b32 s{d+2}, {nbytes}")
    e(f"s_mov_b32 s{d+3}, 0x00020000")

WS_STAMP = 0x2000000
def stamp(e, idx, sreg_ws=4, tmp=90):
    pass

import struct
def f2h(x): return "0x%08x" % struct.unpack("<I", struct.pack("<f", x))[0]
LOG2E = 1.4426950408889634

def features(e, p, ep, em, t):
    mx, mn = t, t+1
    e(f"v_max3_f32 v{mx}, v{p}, v{p+1}, v{p+2}")
    e(f"v_min3_f32 v{mn}, v{p}, v{p+1}, v{p+2}")
    for i in range(3, 19, 2):
        e(f"v_max3_f32 v{mx}, v{mx}, v{p+i}, v{p+i+1}")
        e(f"v_min3_f32 v{mn}, v{mn}, v{p+i}, v{p+i+1}")
    e(f"v_max_f32 v{mx}, v{mx}, v{p+19}")
    e(f"v_min_f32 v{mn}, v{mn}, v{p+19}")
    e(f"v_mul_f32 v{mx}, {f2h(-LOG2E)}, v{mx}")
    e(f"v_mul_f32 v{mn}, {f2h(LOG2E)}, v{mn}")
    for i in range(20):
        e(f"v_fma_f32 v{em+i}, -v{p+i}, s98, v{mn}")
        e(f"v_fma_f32 v{ep+i}, v{p+i}, s98, v{mx}")
    for i in range(20):
        e(f"v_exp_f32 v{ep+i}, v{ep+i}")
        e(f"v_exp_f32 v{em+i}, v{em+i}")
    sp, sm = t+2, t+4
    e(f"v_pk_add_f32 v[{sp}:{sp+1}], v[{ep}:{ep+1}], v[{ep+2}:{ep+3}]")
    e(f"v_pk_add_f32 v[{sm}:{sm+1}], v[{em}:{em+1}], v[{em+2}:{em+3}]")
    for i in range(4, 20, 2):
        e(f"v_pk_add_f32 v[{sp}:{sp+1}], v[{sp}:{sp+1}], v[{ep+i}:{ep+i+1}]")
        e(f"v_pk_add_f32 v[{sm}:{sm+1}], v[{sm}:{sm+1}], v[{em+i}:{em+i+1}]")
    e(f"v_add_f32 v{sp}, v{sp}, v{sp+1}")
    e(f"v_add_f32 v{sm}, v{sm}, v{sm+1}")
    e(f"v_rcp_f32 v{sp}, v{sp}")
    e(f"v_rcp_f32 v{sm}, v{sm}")
    e("s_nop 0")
    for i in range(0, 20, 2):
        e(f"v_pk_mul_f32 v[{ep+i}:{ep+i+1}], v[{ep+i}:{ep+i+1}], v[{sp}:{sp+1}] op_sel_hi:[1,0]")
        e(f"v_pk_mul_f32 v[{em+i}:{em+i+1}], v[{em+i}:{em+i+1}], v[{sm}:{sm+1}] op_sel_hi:[1,0]")
```

```python
from common import *
import os
VAR = os.environ.get("VAR","")

def merge(a, b):
    out = []
    na, nb = len(a), len(b)
    j = 0
    for i, x in enumerate(a):
        out.append(x)
        want = max(i + 1, -(-(i + 1) * nb // na))
        while j < min(want, nb):
            out.append(b[j]); j += 1
    out += b[j:]
    return out

class Gemm:
    def __init__(self, stg_b, nstg, nch, nx, pf=2, acc=16, xf=(96,112), wf=(128,148), misc=168):
        self.STG_B, self.NSTG, self.NCH, self.NX = stg_b, nstg, nch, nx
        self.ACC = acc; self.XF = xf; self.WF = wf
        self.PF = pf
        self.WLIN = False
        m = misc
        self.XA0b, self.XA1b, self.WAb = m, m + 1, m + 2
        self.XA0, self.XA1, self.WA = m + 3, m + 4, m + 5
        self.T = m + 6
        self.NV = m + 16
        self.VOX = 16
        self.VOW = 24
        self.LT = 32
    def acc(self, mt, nt): return self.ACC + (mt*4 + nt)*4
    def reads(self, ks, buf):
        r = []
        if "nolds" in VAR: return ["s_nop 0"]
        xa = self.XA0 if ks == 0 else self.XA1
        for nt in range(4):
            r.append(f"ds_read_b128 {vr(self.XF[buf]+4*nt,4)}, v{xa} offset:{nt*2048}")
        for mt in range(5):
            for b in range(2):
                r.append(f"ds_read_b64_tr_b16 {vr(self.WF[buf]+4*mt+2*b,2)}, v{self.WA} offset:{(32*ks+8*b)*160 + 8*mt}")
        return r
    def mfmas(self, buf):
        r = []
        if "nomfma" in VAR: return ["s_nop 0"]*20
        for mt in range(5):
            for nt in range(4):
                a = self.acc(mt, nt)
                r.append(f"v_mfma_f32_16x16x32_bf16 {vr(a,4)}, {vr(self.WF[buf]+4*mt,4)}, {vr(self.XF[buf]+4*nt,4)}, {vr(a,4)}")
        return r
    def loader_setup(self, e, s_wstride, xstride=1280, lane=1):
        T = self.LT
        e(f"v_lshrrev_b32 v{T}, 3, v{lane}")
        e(f"v_and_b32 v{T+1}, 7, v{lane}")
        e(f"v_xor_b32 v{T+1}, v{T+1}, v{T}")
        e(f"v_lshlrev_b32 v{T+1}, 4, v{T+1}")
        e(f"v_mul_u32_u24 v{T}, {xstride}, v{T}")
        e(f"v_add_u32 v{self.VOX}, v{T}, v{T+1}")
        for j in range(1, self.NX):
            e(f"v_add_u32 v{self.VOX+j}, {8*xstride*j}, v{self.VOX}")
        if self.WLIN:
            e(f"v_lshlrev_b32 v{self.VOW}, 4, v{lane}"); e(f"v_add_u32 v{self.VOW+1}, 4096, v{self.VOW}")
            return
        for j in range(5):
            e(f"v_add_u32 v{T}, {64*j}, v{lane}")
            e(f"v_mul_u32_u24 v{T+1}, 6554, v{T}")
            e(f"v_lshrrev_b32 v{T+1}, 16, v{T+1}")
            e(f"v_mul_u32_u24 v{T+2}, 10, v{T+1}")
            e(f"v_sub_u32 v{T+2}, v{T}, v{T+2}")
            e(f"v_and_b32 v{T+3}, 0x33, v{T+1}")
            e(f"v_and_b32 v{T+4}, 4, v{T+1}")
            e(f"v_lshlrev_b32 v{T+4}, 1, v{T+4}")
            e(f"v_and_b32 v{T+5}, 8, v{T+1}")
            e(f"v_lshrrev_b32 v{T+5}, 1, v{T+5}")
            e(f"v_or3_b32 v{T+3}, v{T+3}, v{T+4}, v{T+5}")
            e(f"v_mul_lo_u32 v{T+3}, v{T+3}, s{s_wstride}")
            e(f"v_lshl_add_u32 v{self.VOW+j}, v{T+2}, 4, v{T+3}")
    def dma_wlin(self, e, s_w, s_ldsw, srdw):
        e(f"s_mov_b32 m0, s{s_ldsw}")
        e("s_nop 0")
        for j in range(4):
            e(f"buffer_load_dwordx4 v{self.VOW}, {srdw}, s{s_w} offen offset:{1024*j} lds")
        e("s_add_u32 m0, m0, 4096"); e("s_nop 0")
        e(f"buffer_load_dwordx4 v{self.VOW+1}, {srdw}, s{s_w} offen lds")
    def dma(self, e, s_x, s_w, s_ldsx, s_ldsw, srdx="s[8:11]", srdw="s[12:15]"):
        e(f"s_mov_b32 m0, s{s_ldsx}")
        for j in range(self.NX):
            e("s_nop 0" if j == 0 else "s_add_u32 m0, m0, 1024")
            if j: e("s_nop 0")
            e(f"buffer_load_dwordx4 v{self.VOX+j}, {srdx}, s{s_x} offen lds")
        if self.WLIN:
            self.dma_wlin(e, s_w, s_ldsw, srdw); return
        e(f"s_mov_b32 m0, s{s_ldsw}")
        for j in range(5):
            e("s_nop 0" if j == 0 else "s_add_u32 m0, m0, 1024")
            if j: e("s_nop 0")
            e(f"buffer_load_dwordx4 v{self.VOW+j}, {srdw}, s{s_w} offen lds")
    def loader_main(self, e, name, kmod, tail_hook=None, st=None):
        per = self.NX + 5
        NS, NCH = self.NSTG, self.NCH
        def advance():
            e("s_lshl_b32 s28, s23, 7"); e("s_add_u32 s28, s28, s20")
            e("s_mul_i32 s29, s23, s22"); e("s_add_u32 s29, s29, s21")
            e("s_add_u32 s23, s23, 1"); e(f"s_cmp_ge_u32 s23, {kmod}"); e("s_cselect_b32 s23, 0, s23")
        def slotadv():
            e(f"s_add_u32 s24, s24, {self.STG_B}"); e(f"s_add_u32 s25, s25, {self.STG_B}")
            e("s_add_u32 s26, s26, 1"); e(f"s_cmp_ge_u32 s26, {NS}")
            e(f"s_cselect_b32 s30, {NS*self.STG_B}, 0"); e("s_cselect_b32 s26, 0, s26")
            e("s_sub_u32 s24, s24, s30"); e("s_sub_u32 s25, s25, s30")
        e("s_mov_b32 s26, 0")
        PF = self.PF
        e(f"s_mov_b32 s27, {PF}")
        e("s_mov_b32 s31, 0")
        e.label(f"{name}_lpro")
        advance(); self.dma(e, 28, 29, 24, 25); slotadv()
        e("s_sub_u32 s27, s27, 1"); e("s_cmp_lg_u32 s27, 0"); e(f"s_cbranch_scc1 {name}_lpro")
        e("s_cmp_lg_u32 s31, 0"); e(f"s_cbranch_scc1 {name}_lpro2")
        if st: st.mark(e)
        e(f"s_waitcnt vmcnt({per*(PF-1)})")
        if st: st.mark(e)
        e("s_barrier")
        if NS > PF:
            e("s_mov_b32 s31, 1"); e(f"s_mov_b32 s27, {NS-PF}"); e(f"s_branch {name}_lpro")
        e.label(f"{name}_lpro2")
        e(f"s_mov_b32 s27, {NCH-NS}")
        e.label(f"{name}_lloop")
        e(f"s_waitcnt vmcnt({per*(NS-2)})")
        e("s_barrier")
        advance()
        if "nodma" not in VAR: self.dma(e, 28, 29, 24, 25)
        slotadv()
        e("s_sub_u32 s27, s27, 1"); e("s_cmp_lg_u32 s27, 0"); e(f"s_cbranch_scc1 {name}_lloop")
        for c in range(NCH-NS, NCH):
            rem = max(NCH - 1 - (c + 1), 0)
            if tail_hook and c > NCH-NS:
                ex = tail_hook.extra(c) if hasattr(tail_hook, "extra") else 0
                if ex and c < NCH-1:
                    e("s_cmp_eq_u32 s40, 0"); e(f"s_cbranch_scc1 {name}_tw{c}a")
                    e(f"s_waitcnt vmcnt({per*rem})"); e(f"s_branch {name}_tw{c}b")
                    e.label(f"{name}_tw{c}a"); e(f"s_waitcnt vmcnt({per*rem + ex})"); e.label(f"{name}_tw{c}b")
                else:
                    e(f"s_waitcnt vmcnt({per*rem})")
            else:
                e(f"s_waitcnt vmcnt({per*rem})")
            e("s_barrier")
            if tail_hook: tail_hook(e, c, "issue")
    def compute_setup(self, e, s_xbase, s_wbase, lane=1):
        T = self.T
        e(f"v_and_b32 v{T}, 15, v{lane}")
        e(f"v_lshrrev_b32 v{T+1}, 4, v{lane}")
        e(f"v_and_b32 v{T+2}, 7, v{T}")
        e(f"v_xor_b32 v{T+2}, v{T+2}, v{T+1}")
        e(f"v_lshlrev_b32 v{T+2}, 4, v{T+2}")
        e(f"v_lshl_add_u32 v{T+2}, v{T}, 7, v{T+2}")
        e(f"v_add_u32 v{self.XA0b}, s{s_xbase}, v{T+2}")
        e(f"v_xor_b32 v{self.XA1b}, 64, v{self.XA0b}")
        e(f"v_lshrrev_b32 v{T+3}, 1, v{T+1}")
        e(f"v_lshlrev_b32 v{T+3}, 4, v{T+3}")
        e(f"v_and_b32 v{T+4}, 1, v{T+1}")
        e(f"v_lshl_add_u32 v{T+3}, v{T+4}, 2, v{T+3}")
        e(f"v_lshrrev_b32 v{T+4}, 2, v{T}")
        e(f"v_add_u32 v{T+3}, v{T+3}, v{T+4}")
        e(f"v_mul_u32_u24 v{T+3}, 160, v{T+3}")
        e(f"v_and_b32 v{T+4}, 3, v{lane}")
        e(f"v_mul_u32_u24 v{T+4}, 40, v{T+4}")
        e(f"v_add_u32 v{T+3}, v{T+3}, v{T+4}")
        e(f"v_add_u32 v{self.WAb}, s{s_wbase}, v{T+3}")
    def set_read_stage(self, s_stage):
        return [f"v_add_u32 v{self.XA0}, s{s_stage}, v{self.XA0b}",
                f"v_add_u32 v{self.XA1}, s{s_stage}, v{self.XA1b}",
                f"v_add_u32 v{self.WA}, s{s_stage}, v{self.WAb}"]
    def compute_main(self, e, name, st=None, pre=None):
        for mt in range(5):
            for nt in range(4):
                for r in range(4): e(f"v_mov_b32 v{self.acc(mt,nt)+r}, 0")
        e("s_mov_b32 s26, 0")
        for x in self.set_read_stage(26): e(x)
        e(f"s_mov_b32 s27, {self.NCH}")
        e("s_barrier")
        if st: st.mark(e)
        for x in self.reads(0, 0): e(x)
        if pre: pre(e)
        e(".p2align 6")
        e.label(f"{name}_kloop")
        e("s_waitcnt lgkmcnt(0)")
        for x in merge(self.mfmas(0), self.reads(1, 1)): e(x)
        e("s_waitcnt lgkmcnt(0)")
        e("s_barrier")
        other = [f"s_add_u32 s26, s26, {self.STG_B}", f"s_cmp_ge_u32 s26, {self.NSTG*self.STG_B}", "s_cselect_b32 s26, 0, s26"]
        other += self.set_read_stage(26)
        other += self.reads(0, 0)
        other.append("s_sub_u32 s27, s27, 1")
        for x in merge(self.mfmas(1), other): e(x)
        e("s_cmp_lg_u32 s27, 0")
        e(f"s_cbranch_scc1 {name}_kloop")
        e("s_waitcnt lgkmcnt(0)")
```

```python
from common import *
from gemm2 import *
from stamp import Stamps
import os
ST = Stamps(os.environ.get("STAMP")=="1")
VAR = os.environ.get("VAR","")
ST2 = Stamps(os.environ.get("STAMP")=="1")
DIAG = os.environ.get("K1DIAG")=="1"
def dmark(e, i):
    if DIAG:
        b = 60+4*i
        e(f"s_memrealtime s[{b}:{b+1}]"); e(f"s_memtime s[{b+2}:{b+3}]"); ST.n = max(ST.n, i+1)
C_SCALE = (20 ** -0.5) * LOG2E
STG_B, NSTG = 36864, 4
W_OFF = 16384
L_PHI = NSTG*STG_B
L_ZERO = L_PHI + 8192
LDS_K1 = L_ZERO + 1024
L_V = 0
VROW = 208
PROW = 336
L_KH = 26624
L_PK = 36864
L_WK = 2*STG_B
L_WV = 3*STG_B
L_RED = 0
QT_B = 1536
TILE_B = 3584

def phi_addr(e, G, dst, s_hbase, lane=1):
    T = G.T
    e(f"v_lshrrev_b32 v{T}, 4, v{lane}")
    e(f"v_and_b32 v{T+1}, 3, v{lane}")
    e(f"v_cmp_eq_u32 vcc, v{T}, v{T+1}")
    e(f"v_add_u32 v{T}, s{s_hbase}, v{T}")
    e(f"v_mul_u32_u24 v{T}, 800, v{T}")
    e(f"v_bfe_u32 v{T+1}, v{lane}, 2, 2")
    e(f"v_mul_u32_u24 v{T+1}, 40, v{T+1}")
    e(f"v_add3_u32 v{T}, v{T}, v{T+1}, s99")
    e(f"v_mov_b32 v{T+1}, {L_ZERO}")
    e(f"v_cndmask_b32 v{dst}, v{T+1}, v{T}, vcc")

def phi_frags(e, addr, base):
    for mt in range(5):
        for ks in range(3):
            d = base + (mt*3+ks)*4
            e(f"ds_read_b64_tr_b16 v[{d}:{d+1}], v{addr} offset:{(8*ks)*40 + 8*mt}")
            if ks < 2:
                e(f"ds_read_b64_tr_b16 v[{d+2}:{d+3}], v{addr} offset:{(8*ks+4)*40 + 8*mt}")
            else:
                e(f"v_mov_b32 v{d+2}, 0"); e(f"v_mov_b32 v{d+3}, 0")

def phi_mfma(e, fr, kp, out):
    for ks in range(3):
        for mt in range(5):
            c = "0" if ks == 0 else vr(out+4*mt, 4)
            e(f"v_mfma_f32_16x16x32_bf16 {vr(out+4*mt,4)}, {vr(fr+(mt*3+ks)*4,4)}, {vr(kp+4*ks,4)}, {c}")

def pack_nt(e, G, nt, dst, scale=None):
    for mt in range(5):
        a = G.acc(mt, nt)
        if scale:
            for r in range(4): e(f"v_mul_f32 v{a+r}, {scale}, v{a+r}")
    for mt in range(5):
        a = G.acc(mt, nt)
        e(f"v_cvt_pk_bf16_f32 v{dst+2*mt}, v{a}, v{a+1}")
        e(f"v_cvt_pk_bf16_f32 v{dst+2*mt+1}, v{a+2}, v{a+3}")

XK = 196
def role_a_pre(e, G):
    T = G.T
    e("s_mov_b32 s8, s32"); e("s_and_b32 s9, s33, 0xffff"); e("s_mov_b32 s10, %d" % (2048*640*2)); e("s_mov_b32 s11, 0x20000")
    e("s_lshl_b32 s50, s41, 7"); e("s_lshl_b32 s51, s42, 5"); e("s_add_u32 s50, s50, s51")
    e("s_mul_i32 s51, s50, 1280"); e("s_mul_i32 s52, s3, 320"); e("s_add_u32 s51, s51, s52")
    e(f"v_and_b32 v{T}, 15, v1"); e(f"v_mul_u32_u24 v{T}, 1280, v{T}"); e(f"v_lshrrev_b32 v{T+1}, 4, v1"); e(f"v_lshl_add_u32 v{T}, v{T+1}, 4, v{T}")
    for nt2 in range(2):
        for ks in range(5):
            e(f"buffer_load_dwordx4 {vr(XK+(nt2*5+ks)*4,4)}, v{T}, s[8:11], s51 offen offset:{64*ks}")
        if nt2 == 0: e(f"s_add_u32 s51, s51, {16*1280}")

def role_a(e, G, name):
    T = G.T
    e(f"v_lshrrev_b32 v{T}, 4, v1"); e(f"v_lshlrev_b32 v{T}, 3, v{T}"); e(f"v_bfe_u32 v{T+1}, v1, 2, 2"); e(f"v_add_u32 v{T}, v{T}, v{T+1}")
    e(f"v_mul_u32_u24 v{T}, 40, v{T}"); e("s_mul_i32 s57, s3, 6400"); e(f"v_add_u32 v{T}, s57, v{T}")
    e(f"v_and_b32 v{T+1}, 3, v1")
    e(f"v_lshlrev_b32 v{T+2}, 4, v{T+1}")
    e(f"v_cmp_gt_u32 vcc, 3, v{T+1}"); e("s_nop 1"); e(f"v_cndmask_b32 v{T+5}, 0, v{T+2}, vcc"); e(f"v_add3_u32 v180, v{T}, v{T+5}, s99")
    e(f"v_cmp_gt_u32 vcc, 2, v{T+1}"); e("s_nop 1"); e(f"v_cndmask_b32 v{T+5}, 0, v{T+2}, vcc"); e(f"v_add3_u32 v181, v{T}, v{T+5}, s99"); e("v_add_u32 v181, 8, v181")
    e(f"v_lshlrev_b32 v{T+5}, 3, v{T+1}"); e(f"v_add3_u32 v182, v{T}, v{T+5}, s97")
    e(f"v_add_u32 v183, s97, v{T}"); e("v_add_u32 v183, 32, v183")
    WF5 = 96
    for ks in range(4):
        for b in range(2):
            o = (32*ks + 4*b)*40
            for t in range(4):
                d = WF5 + ks*16 + 4*t + 2*b
                e(f"ds_read_b64_tr_b16 v[{d}:{d+1}], v{180+t} offset:{o}")
    for b in range(2):
        o = (32*4 + 4*b)*40
        for t in range(4):
            d = 236 + 4*t + 2*b
            e(f"ds_read_b64_tr_b16 v[{d}:{d+1}], v{180+t} offset:{o}")
    e("s_lshr_b32 s52, s3, 1"); e("s_and_b32 s53, s3, 1")
    e("s_lshl_b32 s54, s41, 2"); e("s_lshl_b32 s55, s52, 1"); e("s_add_u32 s54, s54, s55")
    e("s_lshl_b32 s54, s54, 5"); e("s_lshl_b32 s55, s42, 3"); e("s_add_u32 s54, s54, s55"); e("s_lshl_b32 s55, s53, 2"); e("s_add_u32 s54, s54, s55")
    e(f"s_mul_i32 s54, s54, {QT_B}"); e(f"s_add_u32 s54, s54, {WS_Q}")
    e(f"v_lshrrev_b32 v{T+1}, 4, v1"); e(f"v_mul_u32_u24 v{T+1}, {QT_B}, v{T+1}"); e(f"v_and_b32 v{T+2}, 15, v1")
    e(f"v_lshl_add_u32 v{T+3}, v{T+2}, 4, v{T+1}")
    e(f"s_mov_b32 s56, {f2h(C_SCALE)}"); e("s_mov_b32 s57, s56")
    for nt in range(4):
        b = 160 if nt % 2 == 0 else 184
        for mt in range(5):
            a_ = G.acc(mt, nt)
            e(f"v_pk_mul_f32 v[{a_}:{a_+1}], v[{a_}:{a_+1}], s[56:57]"); e(f"v_pk_mul_f32 v[{a_+2}:{a_+3}], v[{a_+2}:{a_+3}], s[56:57]")
        for mt in range(5):
            a_ = G.acc(mt, nt)
            e(f"v_cvt_pk_bf16_f32 v{b+2*mt}, v{a_}, v{a_+1}"); e(f"v_cvt_pk_bf16_f32 v{b+2*mt+1}, v{a_+2}, v{a_+3}")
        e(f"v_mov_b32 v{b+10}, 0")
        for i in range(10): e(f"v_dot2c_f32_bf16 v{b+10}, v{b+i}, v{b+i}")
        e(f"v_mov_b32 v{b+11}, 0")
        o = 256*(nt % 2)
        e(f"buffer_store_dwordx4 {vr(b,4)}, v{T+3}, s[16:19], s54 offen offset:{o}")
        e("s_nop 0")
        e(f"v_sqrt_f32 v{b+10}, v{b+10}")
        e(f"buffer_store_dwordx4 {vr(b+4,4)}, v{T+3}, s[16:19], s54 offen offset:{o+512}")
        e(f"buffer_store_dwordx4 {vr(b+8,4)}, v{T+3}, s[16:19], s54 offen offset:{o+1024}")
        if nt == 1: e(f"s_add_u32 s54, s54, {32*QT_B}")
    dmark(e, 1)
    e("s_waitcnt vmcnt(12) lgkmcnt(0)")
    for ks in range(5):
        wb = WF5 + ks*16 if ks < 4 else 236
        for nt2 in range(2):
            x = XK + (nt2*5+ks)*4
            for mt in range(2):
                a_ = 16+(mt*2+nt2)*4
                c = "0" if ks == 0 else vr(a_,4)
                e(f"v_mfma_f32_16x16x32_bf16 {vr(a_,4)}, {vr(wb+4*mt,4)}, {vr(x,4)}, {c}")
            for dt in range(2):
                a_ = 32+(nt2*2+dt)*4
                c = "0" if ks == 0 else vr(a_,4)
                e(f"v_mfma_f32_16x16x32_bf16 {vr(a_,4)}, {vr(x,4)}, {vr(wb+8+4*dt,4)}, {c}")
    e("s_nop 7")
    e(f"v_lshlrev_b32 v{T}, 4, v1"); e("s_lshl_b32 s57, s3, 13"); e(f"v_add_u32 v{T+1}, s57, v{T}")
    for t in range(8): e(f"ds_write_b128 v{T+1}, {vr(16+4*t,4)} offset:{L_RED + t*1024}")
    e("s_waitcnt lgkmcnt(0)")
    e("s_barrier")
    e("s_cmp_lt_u32 s3, 2")
    e("s_lshl_b32 s57, s3, 10")
    e("s_sub_u32 s58, s3, 2"); e("s_lshl_b32 s58, s58, 11"); e("s_add_u32 s58, s58, 4096")
    e("s_cmp_lt_u32 s3, 2")
    e("s_cselect_b32 s57, s57, s58"); e("s_cselect_b32 s58, 2048, 1024") if False else None
    e("s_cmp_lt_u32 s3, 2")
    e("s_movk_i32 s58, 1024"); e("s_cselect_b32 s58, 2048, s58")
    e(f"v_add_u32 v{T+1}, s57, v{T}"); e(f"v_add_u32 v{T+2}, s58, v{T+1}")
    for w in range(4):
        e(f"ds_read_b128 {vr(64+8*w,4)}, v{T+1} offset:{L_RED + w*8192}")
        e(f"ds_read_b128 {vr(68+8*w,4)}, v{T+2} offset:{L_RED + w*8192}")
    e("s_waitcnt lgkmcnt(0)")
    for r in range(8):
        e(f"v_add_f32 v{64+r}, v{64+r}, v{72+r}"); e(f"v_add_f32 v{80+r}, v{80+r}, v{88+r}")
    for r in range(8): e(f"v_add_f32 v{64+r}, v{64+r}, v{80+r}")
    for i in range(4): e(f"v_cvt_pk_bf16_f32 v{72+i}, v{64+2*i}, v{64+2*i+1}")
    dmark(e, 3)
    e("s_lshl_b32 s50, s41, 2"); e("s_add_u32 s50, s50, s42")
    e(f"s_mul_i32 s51, s50, {TILE_B}"); e(f"s_add_u32 s51, s51, {WS_KV}")
    e("s_cmp_ge_u32 s3, 2")
    e(f"s_cbranch_scc1 {name}_vfin")
    e(f"v_and_b32 v{T}, 15, v1"); e("s_lshl_b32 s52, s3, 4"); e(f"v_add_u32 v{T}, s52, v{T}")
    e(f"v_lshrrev_b32 v{T+1}, 4, v1")
    e(f"v_cmp_gt_u32 vcc, 2, v{T+1}"); e("s_nop 1")
    e("v_cndmask_b32 v76, 0, v74, vcc"); e("v_cndmask_b32 v77, 0, v75, vcc")
    e(f"v_cmp_gt_u32 vcc, 3, v{T+1}"); e("s_nop 1")
    e("v_cndmask_b32 v78, 0, v72, vcc"); e("v_cndmask_b32 v79, 0, v73, vcc")
    e("v_mov_b32 v80, 0")
    for r in (76, 77, 78, 79): e(f"v_dot2c_f32_bf16 v80, v{r}, v{r}")
    e("s_nop 2")
    e("v_mov_b32 v81, v80"); e("s_nop 1"); e("v_permlane16_swap_b32 v80, v81"); e("s_nop 1"); e("v_add_f32 v80, v80, v81")
    e("v_mov_b32 v81, v80"); e("s_nop 1"); e("v_permlane32_swap_b32 v80, v81"); e("s_nop 1"); e("v_add_f32 v80, v80, v81")
    for sh in ("row_shr:1", "row_shr:2", "row_shr:4", "row_shr:8"):
        e("s_nop 1"); e(f"v_max_f32_dpp v80, v80, v80 {sh} row_mask:0xf bank_mask:0xf")
    e(f"v_lshlrev_b32 v{T+2}, 5, v{T+1}"); e(f"v_add_u32 v{T+2}, v{T+2}, v{T}"); e(f"v_lshlrev_b32 v{T+2}, 4, v{T+2}")
    e(f"v_cmp_gt_u32 vcc, 2, v{T+1}")
    e("s_and_saveexec_b64 s[60:61], vcc") if not ST.en else e("s_and_saveexec_b64 s[54:55], vcc")
    sv = "s[60:61]" if not ST.en else "s[54:55]"
    e(f"buffer_store_dwordx4 v[72:75], v{T+2}, s[16:19], s51 offen")
    e(f"s_andn2_b64 exec, {sv}, exec")
    e(f"v_cmp_eq_u32 vcc, 3, v{T+1}"); e("s_nop 1")
    e("v_mov_b32 v82, 0x3f80"); e("v_mov_b32 v83, 0")
    e("v_cndmask_b32 v72, v72, v82, vcc"); e("v_cndmask_b32 v73, v73, v83, vcc")
    e(f"v_subrev_u32 v{T+3}, 2, v{T+1}"); e(f"v_lshlrev_b32 v{T+3}, 5, v{T+3}"); e(f"v_add_u32 v{T+3}, v{T+3}, v{T}"); e(f"v_lshlrev_b32 v{T+3}, 3, v{T+3}")
    e(f"buffer_store_dwordx2 v[72:73], v{T+3}, s[16:19], s51 offen offset:3072")
    e(f"s_mov_b64 exec, {sv}")
    e("s_lshl_b32 s52, s50, 1"); e("s_add_u32 s52, s52, s3"); e("s_lshl_b32 s52, s52, 2"); e(f"s_add_u32 s52, s52, {WS_KMAX}")
    e("s_mov_b64 exec, 0x8000"); e("v_mov_b32 v81, 0")
    e("buffer_store_dword v80, v81, s[16:19], s52 offen")
    e("s_mov_b64 exec, -1")
    e(f"s_branch {name}_adone")
    e.label(f"{name}_vfin")
    e(f"v_and_b32 v{T}, 15, v1"); e(f"v_lshrrev_b32 v{T+1}, 4, v1")
    e(f"v_cmp_gt_u32 vcc, 4, v{T}"); e("s_nop 1")
    e("v_cndmask_b32 v74, 0, v74, vcc"); e("v_cndmask_b32 v75, 0, v75, vcc")
    e(f"v_cmp_eq_u32 vcc, 4, v{T}"); e("v_mov_b32 v82, 0x3f803f80"); e("s_nop 0")
    e("v_cndmask_b32 v74, v74, v82, vcc"); e("v_cndmask_b32 v75, v75, v82, vcc")
    e(f"v_and_b32 v{T+2}, 1, v{T+1}"); e(f"v_lshlrev_b32 v{T+2}, 5, v{T+2}"); e(f"v_add_u32 v{T+2}, v{T+2}, v{T}"); e(f"v_lshlrev_b32 v{T+2}, 4, v{T+2}")
    e(f"v_lshrrev_b32 v{T+3}, 1, v{T+1}"); e(f"v_lshl_add_u32 v{T+2}, v{T+3}, 3, v{T+2}")
    e("s_sub_u32 s52, s3, 2"); e("s_lshl_b32 s52, s52, 10"); e("s_add_u32 s52, s52, s51")
    e(f"buffer_store_dwordx2 v[72:73], v{T+2}, s[16:19], s52 offen offset:1024")
    e(f"buffer_store_dwordx2 v[74:75], v{T+2}, s[16:19], s52 offen offset:{1024+256}")
    e.label(f"{name}_adone")

PKB = lambda nt: 96 + 12*nt
FRB = 196

def pack_all(e, G):
    for nt in range(4):
        pack_nt(e, G, nt, PKB(nt))
        e(f"v_mov_b32 v{PKB(nt)+10}, 0"); e(f"v_mov_b32 v{PKB(nt)+11}, 0")

def phi_chain(e, kp, out):
    for ks in range(3):
        for mt in range(5):
            c = "0" if ks == 0 else vr(out+4*mt, 4)
            e(f"v_mfma_f32_16x16x32_bf16 {vr(out+4*mt,4)}, {vr(FRB+(mt*3+ks)*4,4)}, {vr(kp+4*ks,4)}, {c}")

def role_bq(e, G, name):
    T = G.T
    e("s_and_b32 s53, s3, 1")
    pack_all(e, G)
    e("s_lshr_b32 s52, s3, 1"); e("s_lshl_b32 s54, s41, 3"); e("s_lshl_b32 s55, s52, 2"); e("s_add_u32 s54, s54, s55")
    e("s_lshl_b32 s54, s54, 3"); e("s_lshl_b32 s55, s42, 1"); e("s_add_u32 s54, s54, s55"); e("s_add_u32 s54, s54, s53")
    e("s_mul_i32 s54, s54, 2560"); e(f"s_add_u32 s54, s54, {WS_PQ}")
    e(f"v_lshlrev_b32 v{T}, 4, v1"); e(f"v_lshlrev_b32 v{T+1}, 3, v1")
    e("s_waitcnt lgkmcnt(0)")
    dmark(e, 1); dmark(e, 2); dmark(e, 3)
    OUT = (76, 144)
    phi_chain(e, PKB(0), OUT[0])
    for nt in range(4):
        if nt < 3: phi_chain(e, PKB(nt+1), OUT[(nt+1) % 2])
        else: e("s_nop 7")
        o = OUT[nt % 2]; b = PKB(nt)
        e("s_nop 1")
        for i in range(10): e(f"v_cvt_pk_bf16_f32 v{b+i}, v{o+2*i}, v{o+2*i+1}")
        e(f"buffer_store_dwordx4 {vr(b,4)}, v{T}, s[16:19], s54 offen")
        e(f"buffer_store_dwordx4 {vr(b+4,4)}, v{T}, s[16:19], s54 offen offset:1024")
        e(f"buffer_store_dwordx2 {vr(b+8,2)}, v{T+1}, s[16:19], s54 offen offset:2048")
        if nt < 3: e(f"s_add_u32 s54, s54, {8*2560}")

def role_bkv(e, G, name):
    T = G.T
    e("s_lshr_b32 s52, s3, 1"); e("s_and_b32 s53, s3, 1")
    pack_all(e, G)
    e("s_cmp_eq_u32 s53, 0")
    e(f"s_cbranch_scc0 {name}_vw")
    e("s_mul_i32 s54, s52, 5120")
    e(f"v_lshlrev_b32 v{T}, 4, v1"); e(f"v_add_u32 v{T}, s54, v{T}")
    e(f"v_lshlrev_b32 v{T+1}, 3, v1"); e(f"v_add_u32 v{T+1}, s54, v{T+1}")
    for nt in (2, 3):
        o = L_KH + (nt-2)*2560
        e(f"ds_write_b128 v{T}, {vr(PKB(nt),4)} offset:{o}")
        e(f"ds_write_b128 v{T}, {vr(PKB(nt)+4,4)} offset:{o+1024}")
        e(f"ds_write_b64 v{T+1}, {vr(PKB(nt)+8,2)} offset:{o+2048}")
    e("s_waitcnt lgkmcnt(0)")
    e("s_barrier")
    e(f"s_branch {name}_go")
    e.label(f"{name}_vw")
    e(f"v_and_b32 v{T}, 15, v1"); e(f"v_mul_u32_u24 v{T}, {VROW}, v{T}"); e(f"v_lshrrev_b32 v{T+1}, 4, v1"); e(f"v_mul_u32_u24 v{T+1}, 48, v{T+1}")
    e(f"v_add_u32 v{T}, v{T}, v{T+1}"); e("s_mul_i32 s54, s52, %d" % (64*VROW)); e(f"v_add_u32 v{T}, s54, v{T}")
    e(f"v_mov_b32 v{T+2}, 0x3f80"); e(f"v_mov_b32 v{T+3}, 0")
    for nt in range(4):
        o = L_V + nt*16*VROW
        e(f"ds_write_b128 v{T}, {vr(PKB(nt),4)} offset:{o}")
        e(f"ds_write_b128 v{T}, {vr(PKB(nt)+4,4)} offset:{o+16}")
        e(f"ds_write_b64 v{T}, {vr(PKB(nt)+8,2)} offset:{o+32}")
        e(f"ds_write_b64 v{T}, {vr(T+2,2)} offset:{o+40}")
    e("s_waitcnt lgkmcnt(0)")
    e("s_barrier")
    e("s_mul_i32 s54, s52, 5120")
    e(f"v_lshlrev_b32 v{T}, 4, v1"); e(f"v_add_u32 v{T}, s54, v{T}")
    e(f"v_lshlrev_b32 v{T+1}, 3, v1"); e(f"v_add_u32 v{T+1}, s54, v{T+1}")
    for i in range(2):
        o = L_KH + i*2560
        e(f"ds_read_b128 {vr(PKB(i),4)}, v{T} offset:{o}"); e(f"ds_read_b128 {vr(PKB(i)+4,4)}, v{T} offset:{o+1024}"); e(f"ds_read_b64 {vr(PKB(i)+8,2)}, v{T+1} offset:{o+2048}")
    e("s_waitcnt lgkmcnt(0)")
    e.label(f"{name}_go")
    dmark(e, 1)
    e(f"v_and_b32 v{T}, 15, v1"); e(f"v_mul_u32_u24 v{T}, {PROW}, v{T}"); e(f"v_lshrrev_b32 v{T+1}, 4, v1"); e(f"v_mul_u32_u24 v{T+1}, 80, v{T+1}")
    e(f"v_add_u32 v{T}, v{T}, v{T+1}")
    e("s_lshl_b32 s54, s52, 6"); e("s_lshl_b32 s55, s53, 5"); e("s_add_u32 s54, s54, s55"); e(f"s_mul_i32 s54, s54, {PROW}"); e(f"s_add_u32 s54, s54, {L_PK}")
    e(f"v_add_u32 v{T}, s54, v{T}")
    e(f"s_mov_b32 s98, {f2h(LOG2E)}")
    EM, FT = 144, 164
    PKO = PKB(2)
    OUTS = (56, 76)
    phi_chain(e, PKB(0), OUTS[0]); phi_chain(e, PKB(1), OUTS[1])
    for i in range(2):
        OUT = OUTS[i]
        if i == 0: e("s_nop 0")
        features(e, OUT, OUT, EM, FT)
        for j in range(10):
            e(f"v_cvt_pk_bf16_f32 v{PKO+j}, v{OUT+2*j}, v{OUT+2*j+1}")
        for j in range(10):
            e(f"v_cvt_pk_bf16_f32 v{PKO+10+j}, v{EM+2*j}, v{EM+2*j+1}")
        for j in range(5):
            e(f"ds_write_b128 v{T}, {vr(PKO+4*j,4)} offset:{i*16*PROW + 16*j}")
        e("s_nop 1")
    dmark(e, 2)
    e("s_waitcnt lgkmcnt(0)")
    e("s_barrier")
    e(f"v_lshrrev_b32 v{T}, 4, v1"); e(f"v_lshlrev_b32 v{T}, 3, v{T}"); e(f"v_bfe_u32 v{T+1}, v1, 2, 2"); e(f"v_add_u32 v{T}, v{T}, v{T+1}")
    e(f"v_and_b32 v{T+1}, 3, v1"); e(f"v_lshlrev_b32 v{T+1}, 3, v{T+1}")
    e(f"v_mul_u32_u24 v{T+2}, {VROW}, v{T}"); e(f"v_add_u32 v{T+2}, v{T+2}, v{T+1}"); e("s_mul_i32 s54, s3, 48"); e(f"v_add_u32 v{T+2}, s54, v{T+2}")
    e(f"v_mul_u32_u24 v{T+3}, {PROW}, v{T}"); e(f"v_add_u32 v{T+3}, v{T+3}, v{T+1}"); e("s_mul_i32 s54, s3, 80"); e(f"s_add_u32 s54, s54, {L_PK}"); e(f"v_add_u32 v{T+3}, s54, v{T+3}")
    ACC = 16
    AF, BF = 40, 56
    def rd(ks):
        for mt in range(2):
            for b in range(2):
                e(f"ds_read_b64_tr_b16 v[{AF+(ks%2)*8+4*mt+2*b}:{AF+(ks%2)*8+4*mt+2*b+1}], v{T+2} offset:{L_V + (32*ks+4*b)*VROW + 32*mt}")
        for nt in range(3):
            for b in range(2):
                e(f"ds_read_b64_tr_b16 v[{BF+(ks%2)*12+4*nt+2*b}:{BF+(ks%2)*12+4*nt+2*b+1}], v{T+3} offset:{(32*ks+4*b)*PROW + 32*nt}")
    rd(0)
    for ks in range(4):
        if ks < 3: rd(ks+1); e("s_waitcnt lgkmcnt(10)")
        else: e("s_waitcnt lgkmcnt(0)")
        for mt in range(2):
            for nt in range(3):
                a = ACC + (mt*3+nt)*4
                c = "0" if ks == 0 else vr(a,4)
                e(f"v_mfma_f32_16x16x32_bf16 {vr(a,4)}, {vr(AF+(ks%2)*8+4*mt,4)}, {vr(BF+(ks%2)*12+4*nt,4)}, {c}")
    dmark(e, 3)
    e("s_sub_u32 s54, s40, 2"); e("s_lshl_b32 s54, s54, 2"); e("s_add_u32 s54, s54, s42")
    e("s_lshl_b32 s54, s54, 4"); e("s_add_u32 s54, s54, s41"); e("s_lshl_b32 s54, s54, 2"); e("s_add_u32 s54, s54, s3")
    e("s_mul_i32 s54, s54, 3840"); e(f"s_add_u32 s54, s54, {WS_KVP}")
    e(f"v_and_b32 v{T}, 15, v1"); e(f"v_lshrrev_b32 v{T+1}, 4, v1")
    e(f"v_mul_u32_u24 v{T+2}, 96, v{T}"); e(f"v_lshl_add_u32 v{T+2}, v{T+1}, 4, v{T+2}")
    e(f"v_mov_b32 v{T+3}, 0x7f000000")
    e(f"v_cmp_gt_u32 vcc, 2, v{T+1}"); e("s_nop 1"); e(f"v_cndmask_b32 v{T+4}, v{T+3}, v{T+2}, vcc")
    e(f"v_cmp_gt_u32 vcc, 8, v{T}"); e("s_nop 1"); e(f"v_cndmask_b32 v{T+5}, v{T+3}, v{T+2}, vcc"); e(f"v_cndmask_b32 v{T+6}, v{T+3}, v{T+4}, vcc")
    e("s_nop 4")
    for mt in range(2):
        for nt in range(3):
            a = ACC + (mt*3+nt)*4
            va = {(0,0):T+2,(0,1):T+2,(0,2):T+5,(1,0):T+4,(1,1):T+4,(1,2):T+6}[(mt,nt)]
            e(f"buffer_store_dwordx4 {vr(a,4)}, v{va}, s[16:19], s54 offen offset:{nt*16*96 + mt*64}")

def xw_srds(e):
    e("s_cmp_eq_u32 s40, 0")
    e("s_cselect_b32 s8, s32, s36"); e("s_cselect_b32 s9, s33, s37")
    e("s_cselect_b32 s12, s34, s38"); e("s_cselect_b32 s13, s35, s39")
    e("s_mov_b32 s14, %d" % (640*1920*2))
    e("s_cselect_b32 s14, %d, s14" % (640*640*2))
    e("s_and_b32 s9, s9, 0xffff"); e("s_mov_b32 s10, %d" % (2048*640*2)); e("s_mov_b32 s11, 0x20000")
    e("s_and_b32 s13, s13, 0xffff"); e("s_mov_b32 s15, 0x20000")

def touch_setup(e):
    e("s_waitcnt lgkmcnt(0)")
    xw_srds(e)
    e("s_lshr_b32 s52, s2, 3")
    e("s_mul_i32 s53, s52, 20"); e("v_add_u32 v186, s53, v1")
    e("v_mul_u32_u24 v187, 6554, v186"); e("v_lshrrev_b32 v187, 16, v187"); e("v_mul_u32_u24 v188, 10, v187"); e("v_sub_u32 v186, v186, v188")
    e("v_mul_lo_u32 v187, v187, s44")
    e("s_sub_u32 s54, s40, 2"); e("s_mul_i32 s54, s54, 640"); e("s_add_u32 s55, s54, 1280"); e("s_add_u32 s54, s54, 1920")
    e("s_cmp_ge_u32 s40, 2"); e("s_cselect_b32 s55, s55, 0"); e("s_cselect_b32 s54, s54, 0")
    e("v_cmp_gt_u32 vcc, 5, v186"); e("v_mov_b32 v188, s54"); e("v_mov_b32 v189, s55"); e("v_cndmask_b32 v188, v188, v189, vcc")
    e("v_lshl_add_u32 v186, v186, 7, v188"); e("v_add_u32 v186, v186, v187")
    e("v_cmp_gt_u32 vcc, 20, v1"); e("v_mov_b32 v187, 0x7f000000"); e("s_nop 0"); e("v_cndmask_b32 v186, v187, v186, vcc")
    e("s_lshr_b32 s53, s2, 2"); e("s_and_b32 s53, s53, 1"); e("s_lshl_b32 s53, s53, 10"); e("s_lshl_b32 s54, s52, 5"); e("s_add_u32 s53, s53, s54"); e("s_mul_i32 s53, s53, 1280")
    e("v_mul_u32_u24 v188, 1280, v1"); e("v_cmp_gt_u32 vcc, 32, v1"); e("s_nop 1"); e("v_cndmask_b32 v188, v187, v188, vcc")

def gen(e, name="proj_kernel"):
    G = Gemm(STG_B, NSTG, 10, 4)
    kernel_header(e, name)
    e("s_cmp_ge_u32 s2, 256")
    e(f"s_cbranch_scc1 {name}_end")
    e("s_load_dwordx4 s[32:35], s[0:1], 0")
    e("s_load_dwordx4 s[36:39], s[0:1], 40")
    e("s_load_dwordx4 s[84:87], s[0:1], 16")
    e("s_load_dwordx2 s[88:89], s[0:1], 56")
    e("s_load_dwordx2 s[4:5], s[0:1], 88")
    if not DIAG: ST.mark(e)
    e("v_lshrrev_b32 v2, 6, v0")
    e("v_and_b32 v1, 63, v0")
    e("s_and_b32 s40, s2, 3")
    e("v_readfirstlane_b32 s3, v2")
    e("s_lshr_b32 s41, s2, 2"); e("s_and_b32 s41, s41, 1")
    e("s_lshr_b32 s42, s2, 3")
    e("s_and_b32 s43, s42, 7"); e("s_lshl_b32 s41, s41, 3"); e("s_add_u32 s41, s41, s43")
    e("s_lshr_b32 s42, s42, 3")
    e("s_cmp_eq_u32 s40, 0")
    e("s_movk_i32 s44, 3840")
    e("s_cselect_b32 s44, 1280, s44")
    if "touch" in VAR: touch_setup(e)
    e("s_cmp_lt_u32 s3, 4")
    e(f"s_cbranch_scc1 {name}_compute")
    e("s_sub_u32 s3, s3, 4")
    if "touch" in VAR:
        e("s_and_b32 s54, s3, 1"); e("s_lshl_b32 s55, s54, 7"); e("s_add_u32 s55, s55, s53"); e("s_lshl_b32 s56, s44, 6"); e("s_mul_i32 s54, s54, s56")
        e("buffer_load_dword v190, v188, s[8:11], s55 offen"); e("buffer_load_dword v191, v186, s[12:15], s54 offen")
    G.loader_setup(e, 44)
    e(f"v_lshlrev_b32 v{G.LT+8}, 4, v1")
    e("s_lshr_b32 s45, s3, 1")
    e("s_mul_i32 s46, s42, 160"); e("s_mul_i32 s47, s45, 80"); e("s_add_u32 s46, s46, s47")
    e("s_sub_u32 s47, s40, 2"); e("s_lshl_b32 s47, s47, 2"); e("s_add_u32 s47, s47, s42"); e("s_mov_b32 s59, s47"); e("s_mul_i32 s47, s47, 80")
    e("s_mul_i32 s48, s45, 640"); e("s_add_u32 s47, s47, s48"); e("s_add_u32 s47, s47, 640")
    e("s_cmp_ge_u32 s40, 2")
    e("s_cselect_b32 s46, s47, s46")
    e("s_lshl_b32 s20, s41, 7"); e("s_lshl_b32 s49, s3, 5"); e("s_add_u32 s20, s20, s49"); e("s_mul_i32 s20, s20, 1280")
    e("s_and_b32 s49, s3, 1"); e("s_lshl_b32 s49, s49, 5"); e("s_mul_i32 s21, s49, s44"); e("s_lshl_b32 s49, s46, 1"); e("s_add_u32 s21, s21, s49")
    e("s_lshl_b32 s22, s44, 6")
    e("s_lshl_b32 s24, s3, 12")
    e("s_lshr_b32 s49, s3, 1"); e("s_mul_i32 s25, s49, 10240"); e("s_and_b32 s49, s3, 1"); e("s_mul_i32 s49, s49, 5120")
    e("s_add_u32 s25, s25, s49"); e(f"s_add_u32 s25, s25, {W_OFF}")
    if "norot" not in VAR:
        e("s_mul_i32 s23, s42, 3"); e("s_add_u32 s23, s23, s43"); e("s_cmp_ge_u32 s23, 10"); e("s_cselect_b32 s49, 10, 0"); e("s_sub_u32 s23, s23, s49")
    else:
        e("s_mov_b32 s23, 0")
    e("s_mul_i32 s57, s42, 6400"); e("s_mul_i32 s58, s59, 3200"); e("s_cmp_ge_u32 s40, 2"); e("s_cselect_b32 s57, s58, s57")
    e("s_lshl_b32 s58, s3, 11"); e("s_add_u32 s57, s57, s58"); e(f"s_add_u32 s58, s58, {L_PHI}")
    e("s_waitcnt lgkmcnt(0)")
    xw_srds(e)
    ST2.n = 0
    ST2.mark(e)
    if "touch" in VAR and "nol0" not in VAR: e("s_waitcnt vmcnt(0)")
    ST2.mark(e)
    make_srd(e, 16, 88, 25600)
    e("s_mov_b32 m0, s58"); e("s_nop 0")
    e(f"buffer_load_dwordx4 v{G.LT+8}, s[16:19], s57 offen lds")
    e(f"buffer_load_dwordx4 v{G.LT+8}, s[16:19], s57 offen offset:1024 lds")
    def tail(e, c, what):
        if what == "count":
            return None
        if c in (6, 7):
            lab = f"{name}_tx{c}"
            e("s_cmp_lg_u32 s40, 0"); e(f"s_cbranch_scc1 {lab}")
            make_srd(e, 16, 84 if c == 6 else 86, 25600)
            e("s_mul_i32 s57, s3, 7168"); e(f"s_add_u32 s58, s57, {L_WK if c == 6 else L_WV}")
            for j in range(7):
                e("s_mov_b32 m0, s58"); e("s_add_u32 s58, s58, 1024")
                e(f"buffer_load_dwordx4 v{G.LT+8}, s[16:19], s57 offen lds"); e("s_add_u32 s57, s57, 1024")
            e.label(lab)
    tail.extra = lambda c: {7: 7, 8: 14}.get(c, 0)
    G.loader_main(e, name, 10, tail, ST2)
    if ST2.en:
        make_srd(e, 76, 4, WS_BYTES)
        e("s_add_u32 s3, s3, 4")
        ST2.flush(e, 0, 40, 3, "s[76:79]")
    e("s_endpgm")
    e.label(f"{name}_compute")
    if "codepf" in VAR:
        e("s_cmp_lg_u32 s3, 0"); e(f"s_cbranch_scc1 {name}_nocp")
        e("s_getpc_b64 s[52:53]")
        e.label(f"{name}_pc")
        e(f"s_sub_u32 s52, s52, ({name}_pc - {name})"); e("s_subb_u32 s53, s53, 0")
        e("s_lshr_b32 s54, s2, 3"); e("s_lshl_b32 s54, s54, 10")
        e("v_lshlrev_b32 v186, 7, v1"); e("v_add_u32 v186, s54, v186")
        e("v_mov_b32 v187, s53"); e("v_add_co_u32 v186, vcc, s52, v186"); e("s_nop 1"); e("v_addc_co_u32 v187, vcc, 0, v187, vcc")
        e("s_mov_b64 exec, 0xff")
        e("global_load_dword v188, v[186:187], off")
        e("s_mov_b64 exec, -1")
        e.label(f"{name}_nocp")
    e("s_lshr_b32 s49, s3, 1"); e("s_lshl_b32 s50, s49, 13")
    e("s_and_b32 s49, s3, 1"); e("s_mul_i32 s51, s49, 10240"); e(f"s_add_u32 s51, s51, {W_OFF}")
    if "touch" in VAR:
        e("s_add_u32 s54, s3, 2"); e("s_lshl_b32 s55, s54, 7"); e("s_add_u32 s55, s55, s53"); e("s_lshl_b32 s56, s44, 6"); e("s_mul_i32 s54, s54, s56")
        e("s_sleep %d" % int(os.environ.get("SLP", "8")))
        for i in range(2):
            e(f"buffer_load_dword v{190+2*i}, v188, s[8:11], s55 offen"); e(f"buffer_load_dword v{191+2*i}, v186, s[12:15], s54 offen")
            if i == 0: e("s_add_u32 s55, s55, 512"); e("s_lshl_b32 s57, s56, 2"); e("s_add_u32 s54, s54, s57")
    if not DIAG: ST.mark(e)
    G.compute_setup(e, 50, 51)
    e(f"v_lshlrev_b32 v{G.T}, 4, v1"); e(f"v_add_u32 v{G.T}, {L_ZERO}, v{G.T}")
    for r in range(4): e(f"v_mov_b32 v{96+r}, 0")
    e(f"ds_write_b128 v{G.T}, v[96:99]")
    e("s_waitcnt lgkmcnt(0)")
    def pre(e):
        e("s_cmp_eq_u32 s40, 0"); e(f"s_cbranch_scc1 {name}_prea")
        e("s_and_b32 s50, s3, 1"); e("s_lshl_b32 s50, s50, 2"); e("s_cmp_ge_u32 s40, 2"); e("s_cselect_b32 s50, 0, s50"); e(f"s_mov_b32 s99, {L_PHI}")
        phi_addr(e, G, G.T+6, 50)
        phi_frags(e, G.T+6, FRB)
        e(f"s_branch {name}_prej")
        e.label(f"{name}_prea")
        role_a_pre(e, G)
        e.label(f"{name}_prej")
    G.compute_main(e, name, None if DIAG else ST, pre)
    if DIAG: dmark(e, 0)
    else: ST.mark(e)
    e("s_barrier")
    make_srd(e, 16, 4, WS_BYTES)
    e("s_nop 4")
    e("s_or_b32 s50, s2, s3"); e("s_cmp_lg_u32 s50, 0"); e(f"s_cbranch_scc1 {name}_nz")
    e("v_lshlrev_b32 v184, 4, v1"); e("v_mov_b32 v186, 0"); e("v_mov_b32 v187, 0"); e("v_mov_b32 v188, 0"); e("v_mov_b32 v189, 0")
    e(f"s_mov_b32 s50, {WS_CNT}")
    e("buffer_store_dwordx4 v[186:189], v184, s[16:19], s50 offen")
    e.label(f"{name}_nz")
    e("s_cmp_eq_u32 s40, 1"); e(f"s_cbranch_scc1 {name}_rbq")
    e("s_cmp_eq_u32 s40, 0"); e(f"s_cbranch_scc1 {name}_ra")
    role_bkv(e, G, name)
    e(f"s_branch {name}_fin")
    e.label(f"{name}_ra")
    e(f"s_mov_b32 s99, {L_WK}"); e(f"s_mov_b32 s97, {L_WV}")
    role_a(e, G, name)
    e(f"s_branch {name}_fin")
    e.label(f"{name}_rbq")
    role_bq(e, G, name)
    e.label(f"{name}_fin")
    e("s_waitcnt vmcnt(0)")
    if DIAG: dmark(e, 4)
    else: ST.mark(e)
    ST.flush(e, 0, G.T, 3, "s[16:19]")
    e("s_endpgm")
    e.label(f"{name}_end")
    e("s_endpgm")
    return 256, LDS_K1
if __name__ == "__main__":
    import build
    build.build([("proj_kernel", gen)], "k1test.s", [("proj_kernel", 256, 512, LDS_K1)])
```

```python
from common import *
from stamp import Stamps
import os
ST = Stamps(os.environ.get("STAMP")=="1")
VAR = os.environ.get("VAR","")
TILE_B = 3584
QT_B = 1536
NSL = 8
RING_W = NSL*TILE_B
LDS_RING = 0
LDS_Q = 4*RING_W
LDS_RED = 0
LDS_OUT = LDS_Q
LDS_B = LDS_Q + 8*QT_B
LDS_K2 = LDS_B + 20480
QA = lambda u: 4 + 4*u
QB = lambda u: 36 + 2*u
S = (52, 68)
P = 84
def KV(p):
    b = 92 + 14*p
    return b, b+4, b+8, b+12
L16, L8 = 120, 121
A16, A8 = 122, 123
T0 = 124
USE_A = os.environ.get("ACC","v")=="a"
OREG = lambda u: 128 + 16*u
def oreg(u, off=0, n=16):
    return f"a[{16*u+off}:{16*u+off+n-1}]" if USE_A else vr(128+16*u+off, n)
NV = 256
NA = 0

def m1(e, n):
    u = n % 8; p = (n // 8) % 2
    e(f"v_mfma_f32_32x32x16_bf16 {vr(S[n%2],16)}, {vr(KV(p)[0],4)}, {vr(QA(u),4)}, 0")
def m2(e, n):
    if "nom2" in VAR: return
    u = n % 8; p = (n // 8) % 2
    e(f"v_mfma_f32_32x32x8_bf16 {vr(S[n%2],16)}, {vr(KV(p)[3],2)}, {vr(QB(u),2)}, {vr(S[n%2],16)}")
def pv(e, n, h):
    u = n % 8; p = (n // 8) % 2
    if "nopv" in VAR: return
    if "pvswap" in VAR:
        return
    e(f"v_mfma_f32_32x32x16_bf16 {oreg(u)}, {vr(KV(p)[1+h],4)}, {vr(P+4*h,4)}, {oreg(u)}")
def ex(e, n, a, b):
    if "exp16" in VAR:
        for r in range(a, b): e(f"v_exp_f16 v{S[n%2]+r}, v{S[n%2]+r}")
        return
    if "noexp" in VAR:
        for r in range(a, b): e(f"v_mov_b32 v{S[n%2]+r}, v{S[n%2]+r}")
        return
    for r in range(a, b): e(f"v_exp_f32 v{S[n%2]+r}, v{S[n%2]+r}")
def cv(e, n, a, b):
    if "perm" in VAR:
        for i in range(a, b): e(f"v_perm_b32 v{P+i}, v{S[n%2]+2*i+1}, v{S[n%2]+2*i}, s46")
        return
    for i in range(a, b): e(f"v_cvt_pk_bf16_f32 v{P+i}, v{S[n%2]+2*i}, v{S[n%2]+2*i+1}")
def ldk(e, p):
    e(f"ds_read_b128 {vr(KV(p)[0],4)}, v{A16}")
    e(f"ds_read_b64 {vr(KV(p)[3],2)}, v{A8} offset:3072")
def ldv(e, p):
    e(f"ds_read_b128 {vr(KV(p)[1],4)}, v{A16} offset:1024")
    e(f"ds_read_b128 {vr(KV(p)[2],4)}, v{A16} offset:2048")
def adv(e):
    e(f"s_add_u32 s20, s20, {TILE_B}")
    e("s_cmp_ge_u32 s20, s21")
    e("s_cselect_b32 s20, s22, s20")
    e(f"v_add_u32 v{A16}, s20, v{L16}")
    e(f"v_add_u32 v{A8}, s20, v{L8}")

def dma_tile(e, s_g, s_l):
    e(f"s_mov_b32 m0, s{s_l}")
    e("s_nop 0")
    for o in (0, 1024, 2048):
        e(f"buffer_load_dwordx4 v{L16}, s[8:11], s{s_g} offen offset:{o} lds")
    e("s_mov_b64 exec, s[38:39]")
    e(f"buffer_load_dwordx4 v{L16}, s[8:11], s{s_g} offen offset:3072 lds")
    e("s_mov_b64 exec, -1")

L_KVF = LDS_B
L_BZ  = LDS_B + 7680
L_OB  = LDS_B + 9728

def helper_start(e, name):
    e("s_sub_u32 s3, s3, 4")
    if "noprio" not in VAR: e("s_setprio 2")
    e("s_load_dwordx2 s[40:41], s[0:1], 32")
    e("s_load_dwordx2 s[42:43], s[0:1], 64")
    e(f"s_mul_i32 s20, s3, {16*TILE_B}"); e(f"s_add_u32 s20, s20, {WS_KV}")
    e(f"s_mul_i32 s22, s3, {RING_W}")
    e("s_mov_b32 s21, s22")
    def tiles(n):
        for j in range(n):
            dma_tile(e, 20, 21)
            e(f"s_add_u32 s20, s20, {TILE_B}"); e(f"s_add_u32 s21, s21, {TILE_B}")
    tiles(1)
    e("s_lshr_b32 s12, s2, 2"); e("s_lshl_b32 s12, s12, 5"); e("s_and_b32 s13, s2, 3"); e("s_lshl_b32 s13, s13, 3"); e("s_add_u32 s12, s12, s13")
    e(f"s_mul_i32 s12, s12, {QT_B}"); e(f"s_add_u32 s12, s12, {WS_Q}"); e("s_mul_i32 s13, s3, 3072"); e("s_add_u32 s12, s12, s13")
    e(f"s_add_u32 s13, s13, {LDS_Q}"); e("s_mov_b32 m0, s13"); e("s_nop 0")
    for o in (0, 1024, 2048): e(f"buffer_load_dwordx4 v{L16}, s[8:11], s12 offen offset:{o} lds")
    tiles(1)
    e("s_waitcnt vmcnt(0)")
    e("s_barrier")
    e("s_mov_b32 s25, 6")
    e.label(f"{name}_hl0")
    tiles(1)
    e("s_sub_u32 s25, s25, 1"); e("s_cmp_lg_u32 s25, 0"); e(f"s_cbranch_scc1 {name}_hl0")

def helper(e, name):
    def tiles(n):
        for j in range(n):
            dma_tile(e, 20, 21)
            e(f"s_add_u32 s20, s20, {TILE_B}"); e(f"s_add_u32 s21, s21, {TILE_B}")
    if "noB" in VAR:
        e("s_waitcnt vmcnt(8) lgkmcnt(0)"); e("s_barrier"); e("s_mov_b32 s21, s22"); tiles(2); e("s_waitcnt vmcnt(0)"); e("s_barrier"); tiles(4); e("s_waitcnt vmcnt(0)"); e("s_barrier"); tiles(2); e("s_waitcnt vmcnt(0)"); e("s_barrier"); e("s_endpgm"); return
    e("s_and_b32 s26, s2, 7"); e("s_lshr_b32 s27, s2, 3")
    e(f"s_mul_i32 s28, s26, {16*15360}"); e("s_mul_i32 s29, s27, 480"); e("s_add_u32 s28, s28, s29"); e("s_mul_i32 s29, s3, 120"); e("s_add_u32 s28, s28, s29")
    e(f"s_add_u32 s28, s28, {WS_KVP}")
    e("v_mov_b32 v3, 0x7f000000"); e("v_cmp_gt_u32 vcc, 15, v2"); e("s_nop 1"); e(f"v_cndmask_b32 v3, v3, v{L8}, vcc")
    for p in range(16):
        e(f"buffer_load_dwordx2 v[{8+2*p}:{9+2*p}], v3, s[8:11], s28 offen")
        if p < 15: e("s_add_u32 s28, s28, 15360")
    for r in range(4): e(f"v_mov_b32 v{4+r}, 0")
    e(f"s_lshl_b32 s29, s3, 9"); e(f"s_add_u32 s29, s29, {L_BZ}"); e(f"v_add_u32 v40, s29, v{L8}"); e("ds_write_b64 v40, v[4:5]")
    e("s_waitcnt vmcnt(24) lgkmcnt(0)")
    e("s_barrier")
    e("s_mov_b32 s21, s22"); tiles(2)
    e("s_lshl_b32 s28, s27, 2"); e("s_add_u32 s28, s28, s3"); e("s_lshl_b32 s28, s28, 3"); e("s_add_u32 s28, s28, s26"); e("s_mul_i32 s28, s28, 2560")
    e(f"s_add_u32 s28, s28, {WS_PQ}")
    e(f"buffer_load_dwordx4 v[48:51], v{L16}, s[8:11], s28 offen")
    e(f"buffer_load_dwordx4 v[52:55], v{L16}, s[8:11], s28 offen offset:1024")
    e(f"buffer_load_dwordx2 v[56:57], v{L8}, s[8:11], s28 offen offset:2048")
    e("s_waitcnt vmcnt(11)")
    for p in range(1, 16):
        e(f"v_add_f32 v8, v8, v{8+2*p}"); e(f"v_add_f32 v9, v9, v{9+2*p}")
    e("v_cvt_pk_bf16_f32 v8, v8, v9")
    e("s_mul_i32 s28, s26, 7680"); e("s_mul_i32 s29, s27, 240"); e("s_add_u32 s28, s28, s29"); e("s_mul_i32 s29, s3, 60"); e("s_add_u32 s28, s28, s29")
    e(f"s_add_u32 s28, s28, {WS_KVF}")
    e("v_mov_b32 v3, 0x7f000000"); e("v_lshlrev_b32 v4, 2, v2"); e("v_cmp_gt_u32 vcc, 15, v2"); e("s_nop 1"); e("v_cndmask_b32 v3, v3, v4, vcc")
    e("buffer_store_dword v8, v3, s[8:11], s28 offen sc0 sc1")
    e("s_waitcnt vmcnt(0)")
    e("s_barrier")
    e("s_lshl_b32 s29, s26, 7"); e(f"s_add_u32 s29, s29, {WS_CNT}")
    e("v_mov_b32 v5, s29")
    e("s_cmp_lg_u32 s3, 0"); e(f"s_cbranch_scc1 {name}_noat")
    e("s_mov_b64 exec, 1"); e("v_mov_b32 v4, 1")
    e("buffer_atomic_add v4, v5, s[8:11], 0 offen sc1")
    e("s_mov_b64 exec, -1")
    e.label(f"{name}_noat")
    tiles(4)
    Pq, EM, FT = 20, 40, 60
    for i in range(10):
        e(f"v_lshlrev_b32 v{Pq+2*i}, 16, v{48+i}"); e(f"v_and_b32 v{Pq+2*i+1}, 0xffff0000, v{48+i}")
    e(f"s_mov_b32 s98, {f2h(LOG2E)}")
    features(e, Pq, Pq, EM, FT)
    PH = 68
    for j in range(10): e(f"v_cvt_pk_bf16_f32 v{PH+j}, v{Pq+2*j}, v{Pq+2*j+1}")
    for j in range(10): e(f"v_cvt_pk_bf16_f32 v{PH+10+j}, v{EM+2*j}, v{EM+2*j+1}")
    e("s_mov_b32 s30, 0")
    e("s_mov_b64 exec, 1")
    e.label(f"{name}_poll")
    e("buffer_load_dword v4, v5, s[8:11], 0 offen sc0 sc1")
    e("s_waitcnt vmcnt(0)")
    e("v_readfirstlane_b32 s31, v4")
    e("s_add_u32 s30, s30, 1")
    e("s_cmp_ge_u32 s31, 32"); e(f"s_cbranch_scc1 {name}_pdone")
    e("s_cmp_gt_u32 s30, 2000000"); e(f"s_cbranch_scc1 {name}_pdone")
    e("s_sleep 8"); e(f"s_branch {name}_poll")
    e.label(f"{name}_pdone")
    e("s_mov_b64 exec, -1")
    e("s_mul_i32 s28, s26, 7680"); e("s_lshl_b32 s29, s3, 11"); e("s_add_u32 s28, s28, s29"); e(f"s_add_u32 s28, s28, {WS_KVF}")
    e(f"buffer_load_dwordx4 v[8:11], v{L16}, s[8:11], s28 offen sc0 sc1")
    e(f"buffer_load_dwordx4 v[12:15], v{L16}, s[8:11], s28 offen offset:1024 sc0 sc1")
    e(f"s_add_u32 s29, s29, {L_KVF}"); e(f"v_add_u32 v4, s29, v{L16}")
    e("s_waitcnt vmcnt(0)")
    e("ds_write_b128 v4, v[8:11]")
    e("s_cmp_eq_u32 s3, 3"); e("s_cselect_b32 s30, -1, -1"); e("s_cselect_b32 s31, 0, -1"); e("s_mov_b64 exec, s[30:31]")
    e("ds_write_b128 v4, v[12:15] offset:1024")
    e("s_mov_b64 exec, -1")
    e("s_waitcnt lgkmcnt(0)")
    e("s_barrier")
    tiles(2)
    e("v_lshrrev_b32 v3, 4, v2"); e("v_and_b32 v4, 3, v2"); e("v_cmp_eq_u32 vcc, v3, v4")
    e("v_mul_u32_u24 v3, 1920, v3"); e("v_bfe_u32 v4, v2, 2, 2"); e("v_mul_u32_u24 v4, 48, v4"); e("v_add_u32 v3, v3, v4"); e(f"v_add_u32 v3, {L_KVF}, v3")
    e(f"v_mov_b32 v4, {L_BZ}"); e("v_cndmask_b32 v3, v4, v3, vcc")
    ACC, FA = 8, (32, 88)
    def rd(ks):
        for mt in range(6):
            for b in range(2):
                d = FA[ks % 2] + 4*mt + 2*b
                e(f"ds_read_b64_tr_b16 v[{d}:{d+1}], v3 offset:{(8*ks+4*b)*48 + 8*mt}")
    rd(0)
    for ks in range(5):
        if ks < 4: rd(ks+1); e("s_waitcnt lgkmcnt(12)")
        else: e("s_waitcnt lgkmcnt(0)")
        for mt in range(6):
            c = "0" if ks == 0 else vr(ACC+4*mt, 4)
            e(f"v_mfma_f32_16x16x32_bf16 {vr(ACC+4*mt,4)}, {vr(FA[ks%2]+4*mt,4)}, {vr(PH+4*ks,4)}, {c}")
        e("s_nop 3")
    e("s_nop 7")
    e(f"v_add_f32 v{ACC+20}, {f2h(1e-6)}, v{ACC+20}")
    e(f"v_rcp_f32 v{ACC+20}, v{ACC+20}")
    e("s_nop 0")
    for r in range(20): e(f"v_mul_f32 v{ACC+r}, v{ACC+r}, v{ACC+20}")
    for j in range(10): e(f"v_cvt_pk_bf16_f32 v{40+j}, v{ACC+2*j}, v{ACC+2*j+1}")
    e("v_and_b32 v3, 15, v2"); e("v_mul_u32_u24 v3, 160, v3"); e("v_lshrrev_b32 v4, 4, v2"); e("v_mul_u32_u24 v4, 40, v4"); e("v_add_u32 v3, v3, v4")
    e(f"s_mul_i32 s29, s3, 2560"); e(f"s_add_u32 s29, s29, {L_OB}"); e("v_add_u32 v3, s29, v3")
    for j in range(5): e(f"ds_write_b64 v3, {vr(40+2*j,2)} offset:{8*j}")
    e("s_lshl_b32 s28, s27, 6"); e("s_lshl_b32 s30, s3, 4"); e("s_add_u32 s28, s28, s30"); e("s_mul_i32 s28, s28, 1280"); e("s_mul_i32 s30, s26, 160"); e("s_add_u32 s28, s28, s30")
    e(f"s_add_u32 s28, s28, {WS_OB}")
    for j in range(3):
        t = 52 + 3*j
        e(f"v_add_u32 v{t}, {64*j}, v2")
        e(f"v_mul_u32_u24 v{t+1}, 6554, v{t}"); e(f"v_lshrrev_b32 v{t+1}, 16, v{t+1}")
        e(f"v_mul_u32_u24 v{t+2}, 10, v{t+1}"); e(f"v_sub_u32 v{t+2}, v{t}, v{t+2}")
        e(f"v_mul_u32_u24 v{t+1}, 1280, v{t+1}"); e(f"v_lshl_add_u32 v{t+1}, v{t+2}, 4, v{t+1}")
        e(f"v_cmp_gt_u32 vcc, 160, v{t}"); e("v_mov_b32 v4, 0x7f000000"); e(f"v_lshlrev_b32 v{t}, 4, v{t}"); e(f"v_cndmask_b32 v{t+1}, v4, v{t+1}, vcc")
        e(f"v_add_u32 v{t}, s29, v{t}")
    e("s_waitcnt lgkmcnt(0)")
    for j in range(3): e(f"ds_read_b128 {vr(64+4*j,4)}, v{52+3*j}")
    e("s_waitcnt lgkmcnt(0)")
    for j in range(3): e(f"buffer_store_dwordx4 {vr(64+4*j,4)}, v{52+3*j+1}, s[8:11], s28 offen")
    e("s_waitcnt vmcnt(3)")
    e("s_barrier")
    e("s_and_b32 s26, s2, 1"); e("s_lshr_b32 s27, s2, 1"); e("s_and_b32 s27, s27, 7"); e("s_lshr_b32 s28, s2, 4")
    e("s_cmp_eq_u32 s26, 0"); e("s_cselect_b32 s48, s40, s42"); e("s_cselect_b32 s49, s41, s43"); e("s_and_b32 s49, s49, 0xffff"); e("s_mov_b32 s50, 819200"); e("s_mov_b32 s51, 0x20000")
    e("s_mul_i32 s28, s28, 400"); e("s_mul_i32 s29, s3, 100"); e("s_add_u32 s28, s28, s29")
    e("s_mul_i32 s29, s27, 160")
    e("s_lshl_b32 s30, s26, 3"); e("s_add_u32 s30, s30, s27"); e("s_mul_i32 s30, s30, 102400"); e(f"s_add_u32 s30, s30, {WS_WOI}")
    for j in range(2):
        t = 8 + 8*j
        e(f"v_add_u32 v{t}, s28, v2");
        if j: e(f"v_add_u32 v{t}, 64, v{t}")
        e(f"v_mul_u32_u24 v{t+1}, 6554, v{t}"); e(f"v_lshrrev_b32 v{t+1}, 16, v{t+1}")
        e(f"v_mul_u32_u24 v{t+2}, 10, v{t+1}"); e(f"v_sub_u32 v{t+2}, v{t}, v{t+2}")
        e(f"v_and_b32 v{t+3}, 0xfffffff3, v{t+1}"); e(f"v_and_b32 v{t+4}, 4, v{t+1}"); e(f"v_lshlrev_b32 v{t+4}, 1, v{t+4}")
        e(f"v_and_b32 v{t+5}, 8, v{t+1}"); e(f"v_lshrrev_b32 v{t+5}, 1, v{t+5}"); e(f"v_or3_b32 v{t+3}, v{t+3}, v{t+4}, v{t+5}")
        e(f"v_mul_u32_u24 v{t+3}, 1280, v{t+3}"); e(f"v_lshl_add_u32 v{t+3}, v{t+2}, 4, v{t+3}")
        e(f"v_lshlrev_b32 v{t}, 4, v{t}")
        if j:
            e("v_cmp_gt_u32 vcc, 36, v2"); e("v_mov_b32 v7, 0x7f000000"); e("s_nop 0")
            e(f"v_cndmask_b32 v{t+3}, v7, v{t+3}, vcc"); e(f"v_cndmask_b32 v{t}, v7, v{t}, vcc")
        e(f"buffer_load_dwordx4 v[{24+4*j}:{27+4*j}], v{t+3}, s[48:51], s29 offen")
    e("s_waitcnt vmcnt(0)")
    for j in range(2):
        e(f"buffer_store_dwordx4 v[{24+4*j}:{27+4*j}], v{8+8*j}, s[8:11], s30 offen sc0 sc1")
    e("s_endpgm")

def gen(e, name="attn_kernel"):
    kernel_header(e, name)
    e("s_cmp_ge_u32 s2, 256")
    e(f"s_cbranch_scc1 {name}_end")
    e("s_load_dwordx2 s[4:5], s[0:1], 88")
    ST.mark(e)
    e("v_lshrrev_b32 v1, 6, v0")
    e("v_and_b32 v2, 63, v0")
    e("s_mov_b32 s38, -1")
    e("v_readfirstlane_b32 s3, v1")
    e("s_mov_b32 s39, 0")
    e(f"v_lshlrev_b32 v{L16}, 4, v2")
    e(f"v_lshlrev_b32 v{L8}, 3, v2")
    e("s_waitcnt lgkmcnt(0)")
    make_srd(e, 8, 4, WS_BYTES)
    e("s_cmp_lt_u32 s3, 4")
    e(f"s_cbranch_scc1 {name}_compute")
    helper_start(e, name)
    e(f"s_branch {name}_helper")
    e.label(f"{name}_compute")
    e(f"s_mov_b32 s18, {WS_KMAX}")
    e(f"buffer_load_dwordx2 v[{T0}:{T0+1}], v{L8}, s[8:11], s18 offen")
    e(f"s_mul_i32 s22, s3, {RING_W}"); e(f"s_add_u32 s21, s22, {RING_W}"); e("s_mov_b32 s20, s22")
    e(f"v_add_u32 v{A16}, s20, v{L16}"); e(f"v_add_u32 v{A8}, s20, v{L8}")
    for r in range(128): e(f"v_accvgpr_write_b32 a{r}, 0" if USE_A else f"v_mov_b32 v{128+r}, 0")
    for r in range(8): e(f"v_mov_b32 v{P+r}, 0")
    for r in range(4): e(f"v_mov_b32 v{KV(1)[2]+r}, 0")
    e("s_waitcnt vmcnt(0)")
    k = T0
    e(f"v_max_f32 v{k}, v{k}, v{k+1}")
    for sh in ("row_shr:1", "row_shr:2", "row_shr:4", "row_shr:8", "row_bcast:15 row_mask:0xa", "row_bcast:31 row_mask:0xc"):
        e("s_nop 1")
        if "mask" in sh: e(f"v_max_f32_dpp v{k}, v{k}, v{k} {sh} bank_mask:0xf")
        else: e(f"v_max_f32_dpp v{k}, v{k}, v{k} {sh} row_mask:0xf bank_mask:0xf")
    e("s_nop 1")
    e(f"v_readlane_b32 s24, v{k}, 63")
    e(f"v_cmp_gt_u32 vcc, 32, v2")
    e("s_nop 1")
    e(f"v_mov_b32 v{k}, s24")
    e(f"v_sqrt_f32 v{k}, v{k}")
    e("s_nop 0")
    e(f"v_mul_f32 v{k}, 0x3f808312, v{k}")
    e("s_barrier")
    e(f"v_add_u32 v{T0+2}, {LDS_Q}, v{L16}")
    e(f"v_and_b32 v{T0+3}, 31, v2"); e(f"v_lshlrev_b32 v{T0+3}, 4, v{T0+3}"); e("v_lshrrev_b32 v3, 5, v2"); e(f"v_lshl_add_u32 v{T0+3}, v3, 3, v{T0+3}"); e(f"v_add_u32 v{T0+3}, {LDS_Q+1024}, v{T0+3}")
    ldk(e, 0); ldv(e, 0)
    for u in range(8):
        e(f"ds_read_b128 {vr(QA(u),4)}, v{T0+2} offset:{u*QT_B}")
        e(f"ds_read_b64 {vr(QB(u),2)}, v{T0+3} offset:{u*QT_B}")
    adv(e)
    e("s_waitcnt lgkmcnt(0)")
    for u in range(8):
        t = T0 + 2 + (u % 2)
        e(f"v_mul_f32 v{t}, v{k}, v{QB(u)}")
        e(f"v_add_u32 v{t}, 0xffff, v{t}")
        e(f"v_lshrrev_b32 v{t}, 16, v{t}")
        e(f"v_or_b32 v{t}, 0x8000, v{t}")
        e(f"v_cndmask_b32 v{QB(u)}, v{t}, v{QB(u)}, vcc")
    ST.mark(e)
    e("s_nop 1")
    m1(e, 0); m2(e, 0)
    e("s_mov_b32 s25, 8")
    e("s_mov_b32 s46, 0x07060302")
    e(".p2align 6")
    e.label(f"{name}_loop")
    for n in range(16):
        u = n % 8; p = n // 8
        if u == 0 and p == 1:
            e("s_bitcmp1_b32 s25, 0")
            e(f"s_cbranch_scc1 {name}_nobar")
            e("s_barrier")
            e.label(f"{name}_nobar")
        if u == 7: e("s_waitcnt lgkmcnt(0)")
        m1(e, n+1)
        ex(e, n, 0, 4)
        pv(e, n-1, 1)
        ex(e, n, 4, 8)
        m2(e, n+1)
        cv(e, n, 0, 4)
        if u == 1:
            ldk(e, 1-p); ldv(e, 1-p)
        if u == 2:
            adv(e)
        ex(e, n, 8, 12)
        pv(e, n, 0)
        ex(e, n, 12, 16)
        cv(e, n, 4, 8)
    e("s_sub_u32 s25, s25, 1")
    e("s_cmp_lg_u32 s25, 0")
    e(f"s_cbranch_scc1 {name}_loop")
    ST.mark(e)
    e("s_nop 1")
    pv(e, 15, 1)
    e("s_nop 15"); e("s_nop 3")
    wa = 104
    e(f"s_mul_i32 s26, s3, {RING_W}")
    e(f"v_add_u32 v{wa}, s26, v{L16}")
    OWN = 4
    for w in range(4):
        e(f"s_cmp_lg_u32 s3, {w}")
        e(f"s_cbranch_scc1 {name}_own{w}")
        for u in range(8):
            if u // 2 == w: continue
            for i in range(3):
                e(f"ds_write_b128 v{wa}, {oreg(u,4*i,4)} offset:{(u*3+i)*1024}")
        for h in range(2):
            for r in range(12):
                e(f"v_accvgpr_read_b32 v{OWN+12*h+r}, a{16*(2*w+h)+r}" if USE_A else f"v_mov_b32 v{OWN+12*h+r}, v{OREG(2*w+h)+r}")
        e.label(f"{name}_own{w}")
    RD = 28
    for d in range(1, 4):
        e(f"s_add_u32 s27, s3, {d}"); e("s_and_b32 s27, s27, 3")
        e(f"s_mul_i32 s27, s27, {RING_W}"); e(f"s_mul_i32 s28, s3, {2*3*1024}"); e("s_add_u32 s27, s27, s28")
        e(f"v_add_u32 v{104+d}, s27, v{L16}")
    e("v_and_b32 v3, 31, v2"); e("v_lshrrev_b32 v119, 5, v2")
    e("v_mul_u32_u24 v3, 320, v3"); e("v_lshl_add_u32 v3, v119, 3, v3")
    e(f"s_mul_i32 s27, s3, 80"); e(f"s_add_u32 s27, s27, {LDS_OUT}")
    oa = 108
    e(f"v_add_u32 v{oa}, s27, v3")
    e("s_waitcnt lgkmcnt(0)")
    e("s_barrier")
    for d in range(1, 4):
        for i in range(6):
            e(f"ds_read_b128 {vr(RD+24*(d-1)+4*i,4)}, v{104+d} offset:{i*1024}")
    for d in range(1, 4):
        e(f"s_waitcnt lgkmcnt({6*(3-d)})")
        for r in range(24):
            e(f"v_add_f32 v{OWN+r}, v{OWN+r}, v{RD+24*(d-1)+r}")
    for h in range(2):
        o = OWN + 12*h
        l = 110+2*h
        e(f"v_mov_b32 v{l}, v{o+8}"); e(f"v_mov_b32 v{l+1}, v{o+8}")
    e("s_nop 1")
    for h in range(2):
        l = 110+2*h
        e(f"v_permlane32_swap_b32 v{l}, v{l+1}")
    e("s_nop 1")
    for h in range(2):
        l = 110+2*h
        e(f"v_rcp_f32 v{l}, v{l+1}")
    e("s_nop 0")
    for h in range(2):
        o = OWN + 12*h; l = 110+2*h
        for r in range(12): e(f"v_mul_f32 v{o+r}, v{o+r}, v{l}")
        for i in range(6): e(f"v_cvt_pk_bf16_f32 v{RD+6*h+i}, v{o+2*i}, v{o+2*i+1}")
        e(f"ds_write_b64 v{oa}, {vr(RD+6*h,2)} offset:{40*h}")
        e(f"ds_write_b64 v{oa}, {vr(RD+6*h+2,2)} offset:{40*h+16}")
    e("s_mov_b64 exec, s[38:39]")
    for h in range(2):
        e(f"ds_write_b64 v{oa}, {vr(RD+6*h+4,2)} offset:{40*h+32}")
    e("s_mov_b64 exec, -1")
    e("s_lshr_b32 s12, s2, 2"); e(f"s_mul_i32 s12, s12, {32*1280}"); e("s_and_b32 s13, s2, 3"); e("s_mul_i32 s13, s13, 320"); e("s_add_u32 s12, s12, s13")
    e(f"s_add_u32 s12, s12, {WS_OA}")
    for j in range(3):
        t = 110+3*j
        e(f"s_mul_i32 s27, s3, 192"); e(f"s_add_u32 s27, s27, {64*j}")
        e(f"v_add_u32 v{t}, s27, v2")
        e(f"v_mul_u32_u24 v{t+2}, 3277, v{t}"); e(f"v_lshrrev_b32 v{t+2}, 16, v{t+2}")
        e(f"v_mul_u32_u24 v{t+1}, 20, v{t+2}"); e(f"v_sub_u32 v{t+1}, v{t}, v{t+1}")
        e(f"v_mul_u32_u24 v{t+2}, 1280, v{t+2}"); e(f"v_lshl_add_u32 v{t+2}, v{t+1}, 4, v{t+2}")
        e(f"v_lshlrev_b32 v{t+1}, 4, v{t}"); e(f"v_add_u32 v{t+1}, {LDS_OUT}, v{t+1}")
    e("s_waitcnt lgkmcnt(0)")
    e("s_barrier")
    for j in range(3):
        t = 110+3*j
        e(f"ds_read_b128 {vr(RD+4*j,4)}, v{t+1}")
        e(f"v_cmp_gt_u32 vcc, 640, v{t}")
        e("s_nop 1")
        e(f"v_cndmask_b32 v{t+2}, -1, v{t+2}, vcc") if False else None
        e(f"v_mov_b32 v3, 0x7f000000")
        e(f"v_cndmask_b32 v{t+2}, v3, v{t+2}, vcc")
    e("s_waitcnt lgkmcnt(0)")
    for j in range(3):
        t = 110+3*j
        e(f"buffer_store_dwordx4 {vr(RD+4*j,4)}, v{t+2}, s[8:11], s12 offen")
    e("s_waitcnt vmcnt(0)")
    ST.mark(e)
    ST.flush(e, 1, 100, 3)
    e("s_endpgm")
    e.label(f"{name}_helper")
    helper(e, name)
    e.label(f"{name}_end")
    e("s_endpgm")
    return ((128, 128) if USE_A else NV), LDS_K2
```

```python
from common import *
from gemm2 import *
from stamp import Stamps
import os
ST = Stamps(os.environ.get("STAMP")=="1")
ST2 = Stamps(os.environ.get("STAMP")=="1")
STG_B, NSTG = 53248, 3
W_OFF = 32768
LDS_K3 = NSTG*STG_B
L_RED = 0
L_ST = 40960

def gen(e, name="out_kernel"):
    G = Gemm(STG_B, NSTG, 5, 8, pf=int(os.environ.get("PF3","1")))
    G.WLIN = True
    kernel_header(e, name)
    e("s_cmp_ge_u32 s2, 256")
    e(f"s_cbranch_scc1 {name}_end")
    e("s_load_dwordx2 s[36:37], s[0:1], 72")
    e("s_load_dwordx2 s[4:5], s[0:1], 88")
    ST.mark(e)
    e("v_lshrrev_b32 v2, 6, v0")
    e("v_and_b32 v1, 63, v0")
    e("s_and_b32 s40, s2, 1")
    e("v_readfirstlane_b32 s3, v2")
    e("s_lshr_b32 s41, s2, 1"); e("s_and_b32 s41, s41, 3"); e("s_lshl_b32 s41, s41, 2")
    e("s_lshr_b32 s42, s2, 3"); e("s_and_b32 s43, s42, 3"); e("s_add_u32 s41, s41, s43")
    e("s_lshr_b32 s42, s42, 2")
    e("s_movk_i32 s44, 1280")
    e("s_cmp_lt_u32 s3, 4")
    e(f"s_cbranch_scc1 {name}_compute")
    e("s_sub_u32 s3, s3, 4")
    ST2.n = 0
    ST2.mark(e)
    G.loader_setup(e, 44)
    e("s_lshr_b32 s45, s3, 1"); e("s_and_b32 s46, s3, 1")
    e("s_lshl_b32 s20, s41, 7"); e("s_lshl_b32 s49, s46, 6"); e("s_add_u32 s20, s20, s49"); e("s_mul_i32 s20, s20, 1280"); e("s_mul_i32 s49, s45, 640"); e("s_add_u32 s20, s20, s49")
    e(f"s_mov_b32 s49, {WS_OB}"); e("s_cmp_eq_u32 s40, 0"); e(f"s_cselect_b32 s49, {WS_OA}, s49"); e("s_add_u32 s20, s20, s49")
    e("s_mul_i32 s21, s45, 320"); e("s_lshl_b32 s49, s46, 5"); e("s_add_u32 s21, s21, s49"); e("s_mul_i32 s21, s21, 160")
    e("s_lshl_b32 s49, s40, 3"); e("s_add_u32 s49, s49, s42"); e("s_mul_i32 s49, s49, 102400"); e("s_add_u32 s21, s21, s49"); e(f"s_add_u32 s21, s21, {WS_WOI}")
    e(f"s_mov_b32 s22, {64*160}")
    e("s_lshl_b32 s24, s45, 14"); e("s_lshl_b32 s49, s46, 13"); e("s_add_u32 s24, s24, s49")
    e("s_mul_i32 s25, s45, 10240"); e("s_mul_i32 s49, s46, 5120"); e("s_add_u32 s25, s25, s49"); e(f"s_add_u32 s25, s25, {W_OFF}")
    e("s_add_u32 s23, s42, s43"); e("s_mul_i32 s49, s23, 52"); e("s_lshr_b32 s49, s49, 8"); e("s_mul_i32 s49, s49, 5"); e("s_sub_u32 s23, s23, s49")
    e("s_waitcnt lgkmcnt(0)")
    make_srd(e, 8, 4, WS_BYTES)
    make_srd(e, 12, 4, WS_BYTES)
    ST2.mark(e)
    G.loader_main(e, name, 5, None, ST2)
    if ST2.en:
        e("s_add_u32 s3, s3, 4")
        ST2.flush(e, 2, 40, 3, "s[8:11]")
    e("s_endpgm")
    e.label(f"{name}_compute")
    e("s_and_b32 s49, s3, 1"); e("s_lshl_b32 s50, s49, 14"); e("s_lshr_b32 s51, s3, 1"); e("s_lshl_b32 s51, s51, 13"); e("s_add_u32 s50, s50, s51")
    e("s_mul_i32 s51, s49, 10240"); e(f"s_add_u32 s51, s51, {W_OFF}")
    G.compute_setup(e, 50, 51)
    G.compute_main(e, name, ST)
    ST.mark(e)
    e("s_barrier")
    T = G.T
    e("s_waitcnt lgkmcnt(0)")
    e(f"v_lshlrev_b32 v{T}, 4, v1"); e("s_mul_i32 s52, s3, 10240"); e(f"v_add_u32 v{T+1}, s52, v{T}")
    e("s_xor_b32 s53, s3, 1"); e("s_mul_i32 s53, s53, 10240"); e(f"v_add_u32 v{T+2}, s53, v{T}")
    KEEP = 96
    e("s_cmp_eq_u32 s49, 0"); e(f"s_cbranch_scc0 {name}_k1")
    for kh in range(2):
        if kh == 1: e.label(f"{name}_k1")
        send = (2, 3) if kh == 0 else (0, 1); keep = (0, 1) if kh == 0 else (2, 3)
        for i, nt in enumerate(send):
            for mt in range(5):
                e(f"ds_write_b128 v{T+1}, {vr(G.acc(mt,nt),4)} offset:{L_RED + (i*5+mt)*1024}")
        for i, nt in enumerate(keep):
            for mt in range(5):
                for r in range(4): e(f"v_mov_b32 v{KEEP+(i*5+mt)*4+r}, v{G.acc(mt,nt)+r}")
        if kh == 0: e(f"s_branch {name}_kj")
    e.label(f"{name}_kj")
    e("s_waitcnt lgkmcnt(0)")
    e("s_barrier")
    RD = 16
    for j in range(10): e(f"ds_read_b128 {vr(RD+4*j,4)}, v{T+2} offset:{L_RED + j*1024}")
    e(f"v_and_b32 v{T+3}, 15, v1"); e(f"v_mul_u32_u24 v{T+3}, 160, v{T+3}"); e(f"v_lshrrev_b32 v{T+4}, 4, v1"); e(f"v_mul_u32_u24 v{T+4}, 40, v{T+4}")
    e(f"s_mul_i32 s52, s3, 5120"); e(f"s_add_u32 s52, s52, {L_ST}"); e(f"v_add3_u32 v{T+3}, v{T+3}, v{T+4}, s52")
    e("s_waitcnt lgkmcnt(0)")
    for r in range(40): e(f"v_add_f32 v{KEEP+r}, v{KEEP+r}, v{RD+r}")
    PK = 56
    for i in range(2):
        for j in range(10): e(f"v_cvt_pk_bf16_f32 v{PK+10*i+j}, v{KEEP+20*i+2*j}, v{KEEP+20*i+2*j+1}")
        for j in range(5): e(f"ds_write_b64 v{T+3}, {vr(PK+10*i+2*j,2)} offset:{i*2560 + 8*j}")
    make_srd(e, 16, 36, 2048*2560)
    e("s_lshl_b32 s53, s41, 7"); e("s_lshr_b32 s54, s3, 1"); e("s_lshl_b32 s54, s54, 6"); e("s_add_u32 s53, s53, s54"); e("s_lshl_b32 s54, s49, 5"); e("s_add_u32 s53, s53, s54")
    e("s_mul_i32 s53, s53, 2560"); e("s_mul_i32 s54, s40, 1280"); e("s_add_u32 s53, s53, s54"); e("s_mul_i32 s54, s42, 160"); e("s_add_u32 s53, s53, s54")
    for j in range(5):
        t = 76 + 2*j
        e(f"v_add_u32 v{t}, {64*j}, v1")
        e(f"v_mul_u32_u24 v{t+1}, 6554, v{t}"); e(f"v_lshrrev_b32 v{t+1}, 16, v{t+1}")
        e(f"v_mul_u32_u24 v{T+4}, 10, v{t+1}"); e(f"v_sub_u32 v{T+4}, v{t}, v{T+4}")
        e(f"v_mul_u32_u24 v{t+1}, 2560, v{t+1}"); e(f"v_lshl_add_u32 v{t+1}, v{T+4}, 4, v{t+1}")
        e(f"v_lshlrev_b32 v{t}, 4, v{t}"); e(f"v_add_u32 v{t}, s52, v{t}")
    e("s_waitcnt lgkmcnt(0)")
    for j in range(5): e(f"ds_read_b128 {vr(96+4*j,4)}, v{76+2*j}")
    for j in range(5):
        e(f"s_waitcnt lgkmcnt({4-j})")
        e(f"buffer_store_dwordx4 {vr(96+4*j,4)}, v{76+2*j+1}, s[16:19], s53 offen")
    e("s_waitcnt vmcnt(0)")
    ST.mark(e)
    if ST.en:
        make_srd(e, 16, 4, WS_BYTES)
    ST.flush(e, 2, T, 3, "s[16:19]")
    e("s_endpgm")
    e.label(f"{name}_end")
    e("s_endpgm")
    return G.NV, LDS_K3
```

```python
from common import *
import os
VAR = os.environ.get("VAR","")

def merge(a, b):
    out = []
    na, nb = len(a), len(b)
    j = 0
    for i, x in enumerate(a):
        out.append(x)
        want = max(i + 1, -(-(i + 1) * nb // na))
        while j < min(want, nb):
            out.append(b[j]); j += 1
    out += b[j:]
    return out

class Gemm:
    def __init__(self, stg_b, nstg, nch, nx, pf=2, acc=16, xf=(96,112), wf=(128,148), misc=168):
        self.STG_B, self.NSTG, self.NCH, self.NX = stg_b, nstg, nch, nx
        self.ACC = acc; self.XF = xf; self.WF = wf
        self.PF = pf
        self.WLIN = False
        self.XROLE = 0
        m = misc
        self.XA0b, self.XA1b, self.WAb = m, m + 1, m + 2
        self.XA0, self.XA1, self.WA = m + 3, m + 4, m + 5
        self.T = m + 6
        self.NV = m + 16
        self.VOX = 16
        self.VOW = 24
        self.LT = 32
    def acc(self, mt, nt): return self.ACC + (mt*4 + nt)*4
    def reads(self, ks, buf):
        r = []
        if "nolds" in VAR: return ["s_nop 0"]
        xa = self.XA0 if ks == 0 else self.XA1
        for nt in range(4):
            r.append(f"ds_read_b128 {vr(self.XF[buf]+4*nt,4)}, v{xa} offset:{nt*2048}")
        for mt in range(5):
            for b in range(2):
                r.append(f"ds_read_b64_tr_b16 {vr(self.WF[buf]+4*mt+2*b,2)}, v{self.WA} offset:{(32*ks+8*b)*160 + 8*mt}")
        return r
    def mfmas(self, buf):
        r = []
        if "nomfma" in VAR: return ["s_nop 0"]*20
        for mt in range(5):
            for nt in range(4):
                a = self.acc(mt, nt)
                r.append(f"v_mfma_f32_16x16x32_bf16 {vr(a,4)}, {vr(self.WF[buf]+4*mt,4)}, {vr(self.XF[buf]+4*nt,4)}, {vr(a,4)}")
        return r
    def loader_setup(self, e, s_wstride, xstride=1280, lane=1):
        T = self.LT
        e(f"v_lshrrev_b32 v{T}, 3, v{lane}")
        e(f"v_and_b32 v{T+1}, 7, v{lane}")
        e(f"v_xor_b32 v{T+1}, v{T+1}, v{T}")
        e(f"v_lshlrev_b32 v{T+1}, 4, v{T+1}")
        e(f"v_mul_u32_u24 v{T}, {xstride}, v{T}")
        e(f"v_add_u32 v{self.VOX}, v{T}, v{T+1}")
        for j in range(1, self.NX):
            e(f"v_add_u32 v{self.VOX+j}, {8*xstride*j}, v{self.VOX}")
        if self.WLIN:
            e(f"v_lshlrev_b32 v{self.VOW}, 4, v{lane}"); e(f"v_add_u32 v{self.VOW+1}, 4096, v{self.VOW}")
            return
        for j in range(5):
            e(f"v_add_u32 v{T}, {64*j}, v{lane}")
            e(f"v_mul_u32_u24 v{T+1}, 6554, v{T}")
            e(f"v_lshrrev_b32 v{T+1}, 16, v{T+1}")
            e(f"v_mul_u32_u24 v{T+2}, 10, v{T+1}")
            e(f"v_sub_u32 v{T+2}, v{T}, v{T+2}")
            e(f"v_and_b32 v{T+3}, 0x33, v{T+1}")
            e(f"v_and_b32 v{T+4}, 4, v{T+1}")
            e(f"v_lshlrev_b32 v{T+4}, 1, v{T+4}")
            e(f"v_and_b32 v{T+5}, 8, v{T+1}")
            e(f"v_lshrrev_b32 v{T+5}, 1, v{T+5}")
            e(f"v_or3_b32 v{T+3}, v{T+3}, v{T+4}, v{T+5}")
            e(f"v_mul_lo_u32 v{T+3}, v{T+3}, s{s_wstride}")
            e(f"v_lshl_add_u32 v{self.VOW+j}, v{T+2}, 4, v{T+3}")
    def dma_wlin(self, e, s_w, s_ldsw, srdw):
        e(f"s_mov_b32 m0, s{s_ldsw}")
        e("s_nop 0")
        for j in range(4):
            e(f"buffer_load_dwordx4 v{self.VOW}, {srdw}, s{s_w} offen offset:{1024*j} lds")
        e("s_add_u32 m0, m0, 4096"); e("s_nop 0")
        e(f"buffer_load_dwordx4 v{self.VOW+1}, {srdw}, s{s_w} offen lds")
    def dma(self, e, s_x, s_w, s_ldsx, s_ldsw, srdx="s[8:11]", srdw="s[12:15]"):
        e(f"s_mov_b32 m0, s{s_ldsx}")
        for j in range(self.NX):
            e("s_nop 0" if j == 0 else "s_add_u32 m0, m0, 1024")
            if j: e("s_nop 0")
            e(f"buffer_load_dwordx4 v{self.VOX+j}, {srdx}, s{s_x} offen lds")
        if self.WLIN:
            self.dma_wlin(e, s_w, s_ldsw, srdw); return
        e(f"s_mov_b32 m0, s{s_ldsw}")
        for j in range(5):
            e("s_nop 0" if j == 0 else "s_add_u32 m0, m0, 1024")
            if j: e("s_nop 0")
            e(f"buffer_load_dwordx4 v{self.VOW+j}, {srdw}, s{s_w} offen lds")
    def loader_main(self, e, name, kmod, tail_hook=None, st=None, after_first=None, in_steady=None):
        per = self.NX + 5
        NS, NCH = self.NSTG, self.NCH
        def advance():
            e("s_lshl_b32 s28, s23, 7"); e("s_add_u32 s28, s28, s20")
            e("s_mul_i32 s29, s23, s22"); e("s_add_u32 s29, s29, s21")
            e("s_add_u32 s23, s23, 1"); e(f"s_cmp_ge_u32 s23, {kmod}"); e("s_cselect_b32 s23, 0, s23")
        def slotadv():
            e(f"s_add_u32 s24, s24, {self.STG_B}"); e(f"s_add_u32 s25, s25, {self.STG_B}")
            e("s_add_u32 s26, s26, 1"); e(f"s_cmp_ge_u32 s26, {NS}")
            e(f"s_cselect_b32 s30, {NS*self.STG_B}, 0"); e("s_cselect_b32 s26, 0, s26")
            e("s_sub_u32 s24, s24, s30"); e("s_sub_u32 s25, s25, s30")
        e("s_mov_b32 s26, 0")
        PF = self.PF
        e(f"s_mov_b32 s27, {PF}")
        e("s_mov_b32 s31, 0")
        e.label(f"{name}_lpro")
        advance(); self.dma(e, 28, 29, 24, 25); slotadv()
        e("s_sub_u32 s27, s27, 1"); e("s_cmp_lg_u32 s27, 0"); e(f"s_cbranch_scc1 {name}_lpro")
        e("s_cmp_lg_u32 s31, 0"); e(f"s_cbranch_scc1 {name}_lpro2")
        if st: st.mark(e)
        e(f"s_waitcnt vmcnt({per*(PF-1)})")
        if st: st.mark(e)
        e("s_barrier")
        if after_first: after_first(e)
        if NS > PF:
            e("s_mov_b32 s31, 1"); e(f"s_mov_b32 s27, {NS-PF}"); e(f"s_branch {name}_lpro")
        e.label(f"{name}_lpro2")
        e(f"s_mov_b32 s27, {NCH-NS}")
        e.label(f"{name}_lloop")
        e(f"s_waitcnt vmcnt({per*(NS-2)})")
        e("s_barrier")
        if in_steady: in_steady(e)
        advance()
        if "nodma" not in VAR: self.dma(e, 28, 29, 24, 25)
        slotadv()
        e("s_sub_u32 s27, s27, 1"); e("s_cmp_lg_u32 s27, 0"); e(f"s_cbranch_scc1 {name}_lloop")
        for c in range(NCH-NS, NCH):
            rem = max(NCH - 1 - (c + 1), 0)
            if tail_hook and c > NCH-NS:
                ex = tail_hook.extra(c) if hasattr(tail_hook, "extra") else 0
                if ex and c < NCH-1:
                    e(f"s_cmp_eq_u32 s40, {self.XROLE}"); e(f"s_cbranch_scc1 {name}_tw{c}a")
                    e(f"s_waitcnt vmcnt({per*rem})"); e(f"s_branch {name}_tw{c}b")
                    e.label(f"{name}_tw{c}a"); e(f"s_waitcnt vmcnt({per*rem + ex})"); e.label(f"{name}_tw{c}b")
                elif c < NCH-1:
                    e(f"s_waitcnt vmcnt({per*rem})")
            else:
                e(f"s_waitcnt vmcnt({per*rem})")
            e("s_barrier")
            if tail_hook: tail_hook(e, c, "issue")
    def compute_setup(self, e, s_xbase, s_wbase, lane=1):
        T = self.T
        e(f"v_and_b32 v{T}, 15, v{lane}")
        e(f"v_lshrrev_b32 v{T+1}, 4, v{lane}")
        e(f"v_and_b32 v{T+2}, 7, v{T}")
        e(f"v_xor_b32 v{T+2}, v{T+2}, v{T+1}")
        e(f"v_lshlrev_b32 v{T+2}, 4, v{T+2}")
        e(f"v_lshl_add_u32 v{T+2}, v{T}, 7, v{T+2}")
        e(f"v_add_u32 v{self.XA0b}, s{s_xbase}, v{T+2}")
        e(f"v_xor_b32 v{self.XA1b}, 64, v{self.XA0b}")
        e(f"v_lshrrev_b32 v{T+3}, 1, v{T+1}")
        e(f"v_lshlrev_b32 v{T+3}, 4, v{T+3}")
        e(f"v_and_b32 v{T+4}, 1, v{T+1}")
        e(f"v_lshl_add_u32 v{T+3}, v{T+4}, 2, v{T+3}")
        e(f"v_lshrrev_b32 v{T+4}, 2, v{T}")
        e(f"v_add_u32 v{T+3}, v{T+3}, v{T+4}")
        e(f"v_mul_u32_u24 v{T+3}, 160, v{T+3}")
        e(f"v_and_b32 v{T+4}, 3, v{lane}")
        e(f"v_mul_u32_u24 v{T+4}, 40, v{T+4}")
        e(f"v_add_u32 v{T+3}, v{T+3}, v{T+4}")
        e(f"v_add_u32 v{self.WAb}, s{s_wbase}, v{T+3}")
    def set_read_stage(self, s_stage):
        return [f"v_add_u32 v{self.XA0}, s{s_stage}, v{self.XA0b}",
                f"v_add_u32 v{self.XA1}, s{s_stage}, v{self.XA1b}",
                f"v_add_u32 v{self.WA}, s{s_stage}, v{self.WAb}"]
    def compute_main(self, e, name, st=None, pre=None, pre0=None, inloop=None):
        for mt in range(5):
            for nt in range(4):
                for r in range(4): e(f"v_mov_b32 v{self.acc(mt,nt)+r}, 0")
        e("s_mov_b32 s26, 0")
        for x in self.set_read_stage(26): e(x)
        e(f"s_mov_b32 s27, {self.NCH}")
        e("s_barrier")
        if st: st.mark(e)
        if pre0: pre0(e)
        for x in self.reads(0, 0): e(x)
        if pre: pre(e)
        e(".p2align 6")
        e.label(f"{name}_kloop")
        e("s_waitcnt lgkmcnt(0)")
        for x in merge(self.mfmas(0), self.reads(1, 1)): e(x)
        if inloop: inloop(e)
        e("s_waitcnt lgkmcnt(0)")
        e("s_barrier")
        other = [f"s_add_u32 s26, s26, {self.STG_B}", f"s_cmp_ge_u32 s26, {self.NSTG*self.STG_B}", "s_cselect_b32 s26, 0, s26"]
        other += self.set_read_stage(26)
        other += self.reads(0, 0)
        other.append("s_sub_u32 s27, s27, 1")
        for x in merge(self.mfmas(1), other): e(x)
        e("s_cmp_lg_u32 s27, 0")
        e(f"s_cbranch_scc1 {name}_kloop")
        e("s_waitcnt lgkmcnt(0)")
```

```python
from common import *
from gemm2 import *
from stamp import Stamps
import os
ST = Stamps(os.environ.get("STAMP")=="1")
VAR = os.environ.get("VAR","")
ST2 = Stamps(os.environ.get("STAMP")=="1")
DIAG = os.environ.get("K1DIAG")=="1"
def dmark(e, i):
    if DIAG:
        b = 60+4*i
        e(f"s_memrealtime s[{b}:{b+1}]"); e(f"s_memtime s[{b+2}:{b+3}]"); ST.n = max(ST.n, i+1)
C_SCALE = (20 ** -0.5) * LOG2E
STG_B, NSTG = 36864, 4
W_OFF = 16384
L_PHI = NSTG*STG_B
L_ZERO = L_PHI + 8192
LDS_K1 = L_ZERO + 1024
L_V = 0
VROW = 208
PROW = 336
L_KH = 26624
L_PK = 36864
L_WK = 2*STG_B
L_WV = 3*STG_B
L_RED = 0
QT_B = 1536
TILE_B = 3584

def phi_addr(e, G, dst, s_hbase, lane=1):
    T = G.T
    e(f"v_lshrrev_b32 v{T}, 4, v{lane}")
    e(f"v_and_b32 v{T+1}, 3, v{lane}")
    e(f"v_cmp_eq_u32 vcc, v{T}, v{T+1}")
    e(f"v_add_u32 v{T}, s{s_hbase}, v{T}")
    e(f"v_mul_u32_u24 v{T}, 800, v{T}")
    e(f"v_bfe_u32 v{T+1}, v{lane}, 2, 2")
    e(f"v_mul_u32_u24 v{T+1}, 40, v{T+1}")
    e(f"v_add3_u32 v{T}, v{T}, v{T+1}, s99")
    e(f"v_mov_b32 v{T+1}, {L_ZERO}")
    e(f"v_cndmask_b32 v{dst}, v{T+1}, v{T}, vcc")

def phi_frags(e, addr, base):
    for mt in range(5):
        for ks in range(3):
            d = base + (mt*3+ks)*4
            e(f"ds_read_b64_tr_b16 v[{d}:{d+1}], v{addr} offset:{(8*ks)*40 + 8*mt}")
            if ks < 2:
                e(f"ds_read_b64_tr_b16 v[{d+2}:{d+3}], v{addr} offset:{(8*ks+4)*40 + 8*mt}")
            else:
                e(f"v_mov_b32 v{d+2}, 0"); e(f"v_mov_b32 v{d+3}, 0")

def phi_mfma(e, fr, kp, out):
    for ks in range(3):
        for mt in range(5):
            c = "0" if ks == 0 else vr(out+4*mt, 4)
            e(f"v_mfma_f32_16x16x32_bf16 {vr(out+4*mt,4)}, {vr(fr+(mt*3+ks)*4,4)}, {vr(kp+4*ks,4)}, {c}")

def pack_nt(e, G, nt, dst, scale=None):
    for mt in range(5):
        a = G.acc(mt, nt)
        if scale:
            for r in range(4): e(f"v_mul_f32 v{a+r}, {scale}, v{a+r}")
    for mt in range(5):
        a = G.acc(mt, nt)
        e(f"v_cvt_pk_bf16_f32 v{dst+2*mt}, v{a}, v{a+1}")
        e(f"v_cvt_pk_bf16_f32 v{dst+2*mt+1}, v{a+2}, v{a+3}")

def kv_x_loads(e, G, XK):
    T = G.T
    e("s_mov_b32 s8, s32"); e("s_and_b32 s9, s33, 0xffff"); e("s_mov_b32 s10, %d" % (2048*640*2)); e("s_mov_b32 s11, 0x20000")
    e("s_lshl_b32 s50, s41, 7"); e("s_lshl_b32 s51, s42, 5"); e("s_add_u32 s50, s50, s51")
    e("s_mul_i32 s51, s50, 1280"); e("s_mul_i32 s52, s3, 320"); e("s_add_u32 s51, s51, s52")
    e(f"v_and_b32 v{T}, 15, v1"); e(f"v_mul_u32_u24 v{T}, 1280, v{T}"); e(f"v_lshrrev_b32 v{T+1}, 4, v1"); e(f"v_lshl_add_u32 v{T}, v{T+1}, 4, v{T}")
    for nt2 in range(2):
        for ks in range(5):
            e(f"buffer_load_dwordx4 {vr(XK+(nt2*5+ks)*4,4)}, v{T}, s[8:11], s51 offen offset:{64*ks}")
        if nt2 == 0: e(f"s_add_u32 s51, s51, {16*1280}")

def q_part(e, G, mid=None):
    T = G.T
    e("s_lshr_b32 s52, s3, 1"); e("s_and_b32 s53, s3, 1")
    e("s_lshl_b32 s54, s41, 2"); e("s_lshl_b32 s55, s52, 1"); e("s_add_u32 s54, s54, s55")
    e("s_lshl_b32 s54, s54, 5"); e("s_lshl_b32 s55, s42, 3"); e("s_add_u32 s54, s54, s55"); e("s_lshl_b32 s55, s53, 2"); e("s_add_u32 s54, s54, s55")
    e(f"s_mul_i32 s54, s54, {QT_B}"); e(f"s_add_u32 s54, s54, {WS_Q}")
    e(f"v_lshrrev_b32 v{T+1}, 4, v1"); e(f"v_mul_u32_u24 v{T+1}, {QT_B}, v{T+1}"); e(f"v_and_b32 v{T+2}, 15, v1")
    e(f"v_lshl_add_u32 v{T+3}, v{T+2}, 4, v{T+1}")
    e(f"s_mov_b32 s56, {f2h(C_SCALE)}"); e("s_mov_b32 s57, s56")
    for nt in range(4):
        b = 160 if nt % 2 == 0 else 184
        for mt in range(5):
            a_ = G.acc(mt, nt)
            e(f"v_pk_mul_f32 v[{a_}:{a_+1}], v[{a_}:{a_+1}], s[56:57]"); e(f"v_pk_mul_f32 v[{a_+2}:{a_+3}], v[{a_+2}:{a_+3}], s[56:57]")
        for mt in range(5):
            a_ = G.acc(mt, nt)
            e(f"v_cvt_pk_bf16_f32 v{b+2*mt}, v{a_}, v{a_+1}"); e(f"v_cvt_pk_bf16_f32 v{b+2*mt+1}, v{a_+2}, v{a_+3}")
        e(f"v_mov_b32 v{b+10}, 0")
        for i in range(10): e(f"v_dot2c_f32_bf16 v{b+10}, v{b+i}, v{b+i}")
        e(f"v_mov_b32 v{b+11}, 0")
        o = 256*(nt % 2)
        e(f"buffer_store_dwordx4 {vr(b,4)}, v{T+3}, s[16:19], s54 offen offset:{o}")
        e("s_nop 0")
        e(f"v_sqrt_f32 v{b+10}, v{b+10}")
        e(f"buffer_store_dwordx4 {vr(b+4,4)}, v{T+3}, s[16:19], s54 offen offset:{o+512}")
        e(f"buffer_store_dwordx4 {vr(b+8,4)}, v{T+3}, s[16:19], s54 offen offset:{o+1024}")
        if nt == 1:
            e(f"s_add_u32 s54, s54, {32*QT_B}")
            if mid: mid(e)

def kv_part(e, G, name, XK, WF, A2, nyounger, RD):
    R = RD - 64
    T = G.T
    e(f"v_lshrrev_b32 v{T}, 4, v1"); e(f"v_lshlrev_b32 v{T}, 3, v{T}"); e(f"v_bfe_u32 v{T+1}, v1, 2, 2"); e(f"v_add_u32 v{T}, v{T}, v{T+1}")
    e(f"v_mul_u32_u24 v{T}, 40, v{T}"); e("s_mul_i32 s57, s3, 6400"); e(f"v_add_u32 v{T}, s57, v{T}")
    e(f"v_and_b32 v{T+1}, 3, v1")
    e(f"v_lshlrev_b32 v{T+2}, 4, v{T+1}")
    e(f"v_cmp_gt_u32 vcc, 3, v{T+1}"); e("s_nop 1"); e(f"v_cndmask_b32 v{T+5}, 0, v{T+2}, vcc"); e(f"v_add3_u32 v180, v{T}, v{T+5}, s99")
    e(f"v_cmp_gt_u32 vcc, 2, v{T+1}"); e("s_nop 1"); e(f"v_cndmask_b32 v{T+5}, 0, v{T+2}, vcc"); e(f"v_add3_u32 v181, v{T}, v{T+5}, s99"); e("v_add_u32 v181, 8, v181")
    e(f"v_lshlrev_b32 v{T+5}, 3, v{T+1}"); e(f"v_add3_u32 v182, v{T}, v{T+5}, s97")
    e(f"v_add_u32 v183, s97, v{T}"); e("v_add_u32 v183, 32, v183")
    def rdw(ks):
        for b in range(2):
            o = (32*ks + 4*b)*40
            for t in range(4):
                d = WF[ks] + 4*t + 2*b
                e(f"ds_read_b64_tr_b16 v[{d}:{d+1}], v{180+t} offset:{o}")
    first = set()
    def mm(ks):
        wb = WF[ks]
        for nt2 in range(2):
            x = XK + (nt2*5+ks)*4
            for mt in range(2):
                a_ = A2+(mt*2+nt2)*4
                c = vr(a_,4) if first else "0"
                e(f"v_mfma_f32_16x16x32_bf16 {vr(a_,4)}, {vr(wb+4*mt,4)}, {vr(x,4)}, {c}")
            for dt in range(2):
                a_ = A2+16+(nt2*2+dt)*4
                c = vr(a_,4) if first else "0"
                e(f"v_mfma_f32_16x16x32_bf16 {vr(a_,4)}, {vr(x,4)}, {vr(wb+8+4*dt,4)}, {c}")
        first.add(ks)
    for ks in (0, 1, 4): rdw(ks)
    e(f"s_waitcnt vmcnt({nyounger}) lgkmcnt(0)")
    for ks in (0, 1, 4): mm(ks)
    e("s_nop 3")
    for ks in (2, 3): rdw(ks)
    e("s_waitcnt lgkmcnt(0)")
    for ks in (2, 3): mm(ks)
    e("s_nop 7")
    e(f"v_lshlrev_b32 v{T}, 4, v1"); e("s_lshl_b32 s57, s3, 13"); e(f"v_add_u32 v{T+1}, s57, v{T}")
    for t in range(8): e(f"ds_write_b128 v{T+1}, {vr(A2+4*t,4)} offset:{L_RED + t*1024}")
    e("s_waitcnt lgkmcnt(0)")
    e("s_barrier")
    e("s_lshl_b32 s57, s3, 10")
    e("s_sub_u32 s58, s3, 2"); e("s_lshl_b32 s58, s58, 11"); e("s_add_u32 s58, s58, 4096")
    e("s_cmp_lt_u32 s3, 2")
    e("s_cselect_b32 s57, s57, s58")
    e("s_movk_i32 s58, 1024"); e("s_cselect_b32 s58, 2048, s58")
    e(f"v_add_u32 v{T+1}, s57, v{T}"); e(f"v_add_u32 v{T+2}, s58, v{T+1}")
    for w in range(4):
        e(f"ds_read_b128 {vr(R+64+8*w,4)}, v{T+1} offset:{L_RED + w*8192}")
        e(f"ds_read_b128 {vr(R+68+8*w,4)}, v{T+2} offset:{L_RED + w*8192}")
    e("s_waitcnt lgkmcnt(0)")
    for r in range(8):
        e(f"v_add_f32 v{R+64+r}, v{R+64+r}, v{R+72+r}"); e(f"v_add_f32 v{R+80+r}, v{R+80+r}, v{R+88+r}")
    for r in range(8): e(f"v_add_f32 v{R+64+r}, v{R+64+r}, v{R+80+r}")
    for i in range(4): e(f"v_cvt_pk_bf16_f32 v{R+72+i}, v{R+64+2*i}, v{R+64+2*i+1}")
    e("s_lshl_b32 s50, s41, 2"); e("s_add_u32 s50, s50, s42")
    e(f"s_mul_i32 s51, s50, {TILE_B}"); e(f"s_add_u32 s51, s51, {WS_KV}")
    e("s_cmp_ge_u32 s3, 2")
    e(f"s_cbranch_scc1 {name}_vfin")
    e(f"v_and_b32 v{T}, 15, v1"); e("s_lshl_b32 s52, s3, 4"); e(f"v_add_u32 v{T}, s52, v{T}")
    e(f"v_lshrrev_b32 v{T+1}, 4, v1")
    e(f"v_cmp_gt_u32 vcc, 2, v{T+1}"); e("s_nop 1")
    e(f"v_cndmask_b32 v{R+76}, 0, v{R+74}, vcc"); e(f"v_cndmask_b32 v{R+77}, 0, v{R+75}, vcc")
    e(f"v_cmp_gt_u32 vcc, 3, v{T+1}"); e("s_nop 1")
    e(f"v_cndmask_b32 v{R+78}, 0, v{R+72}, vcc"); e(f"v_cndmask_b32 v{R+79}, 0, v{R+73}, vcc")
    e(f"v_mov_b32 v{R+80}, 0")
    for r in (76, 77, 78, 79): e(f"v_dot2c_f32_bf16 v{R+80}, v{R+r}, v{R+r}")
    e("s_nop 2")
    e(f"v_mov_b32 v{R+81}, v{R+80}"); e("s_nop 1"); e(f"v_permlane16_swap_b32 v{R+80}, v{R+81}"); e("s_nop 1"); e(f"v_add_f32 v{R+80}, v{R+80}, v{R+81}")
    e(f"v_mov_b32 v{R+81}, v{R+80}"); e("s_nop 1"); e(f"v_permlane32_swap_b32 v{R+80}, v{R+81}"); e("s_nop 1"); e(f"v_add_f32 v{R+80}, v{R+80}, v{R+81}")
    for sh in ("row_shr:1", "row_shr:2", "row_shr:4", "row_shr:8"):
        e("s_nop 1"); e(f"v_max_f32_dpp v{R+80}, v{R+80}, v{R+80} {sh} row_mask:0xf bank_mask:0xf")
    e(f"v_lshlrev_b32 v{T+2}, 5, v{T+1}"); e(f"v_add_u32 v{T+2}, v{T+2}, v{T}"); e(f"v_lshlrev_b32 v{T+2}, 4, v{T+2}")
    e(f"v_cmp_gt_u32 vcc, 2, v{T+1}")
    sv = "s[54:55]"
    e(f"s_and_saveexec_b64 {sv}, vcc")
    e(f"buffer_store_dwordx4 v[{R+72}:{R+75}], v{T+2}, s[16:19], s51 offen")
    e(f"s_andn2_b64 exec, {sv}, exec")
    e(f"v_cmp_eq_u32 vcc, 3, v{T+1}"); e("s_nop 1")
    e(f"v_mov_b32 v{R+82}, 0x3f803f80"); e(f"v_mov_b32 v{R+83}, 0")
    e(f"v_cndmask_b32 v{R+72}, v{R+72}, v{R+82}, vcc"); e(f"v_cndmask_b32 v{R+73}, v{R+73}, v{R+83}, vcc")
    e(f"v_subrev_u32 v{T+3}, 2, v{T+1}"); e(f"v_lshlrev_b32 v{T+3}, 5, v{T+3}"); e(f"v_add_u32 v{T+3}, v{T+3}, v{T}"); e(f"v_lshlrev_b32 v{T+3}, 3, v{T+3}")
    e(f"buffer_store_dwordx2 v[{R+72}:{R+73}], v{T+3}, s[16:19], s51 offen offset:3072")
    e(f"s_mov_b64 exec, {sv}")
    e("s_lshl_b32 s52, s50, 1"); e("s_add_u32 s52, s52, s3"); e("s_lshl_b32 s52, s52, 2"); e(f"s_add_u32 s52, s52, {WS_KMAX}")
    e("s_mov_b64 exec, 0x8000"); e(f"v_mov_b32 v{R+81}, 0")
    e(f"buffer_store_dword v{R+80}, v{R+81}, s[16:19], s52 offen")
    e("s_mov_b64 exec, -1")
    e(f"s_branch {name}_adone")
    e.label(f"{name}_vfin")
    e(f"v_and_b32 v{T}, 15, v1"); e(f"v_lshrrev_b32 v{T+1}, 4, v1")
    e(f"v_cmp_gt_u32 vcc, 4, v{T}"); e("s_nop 1")
    e(f"v_cndmask_b32 v{R+74}, 0, v{R+74}, vcc"); e(f"v_cndmask_b32 v{R+75}, 0, v{R+75}, vcc")
    e(f"v_cmp_eq_u32 vcc, 4, v{T}"); e(f"v_mov_b32 v{R+82}, 0x3f803f80"); e("s_nop 0")
    e(f"v_cndmask_b32 v{R+74}, v{R+74}, v{R+82}, vcc"); e(f"v_cndmask_b32 v{R+75}, v{R+75}, v{R+82}, vcc")
    e(f"v_and_b32 v{T+2}, 1, v{T+1}"); e(f"v_lshlrev_b32 v{T+2}, 5, v{T+2}"); e(f"v_add_u32 v{T+2}, v{T+2}, v{T}"); e(f"v_lshlrev_b32 v{T+2}, 4, v{T+2}")
    e(f"v_lshrrev_b32 v{T+3}, 1, v{T+1}"); e(f"v_lshl_add_u32 v{T+2}, v{T+3}, 3, v{T+2}")
    e("s_sub_u32 s52, s3, 2"); e("s_lshl_b32 s52, s52, 10"); e("s_add_u32 s52, s52, s51")
    e(f"buffer_store_dwordx2 v[{R+72}:{R+73}], v{T+2}, s[16:19], s52 offen offset:1024")
    e(f"buffer_store_dwordx2 v[{R+74}:{R+75}], v{T+2}, s[16:19], s52 offen offset:{1024+256}")
    e.label(f"{name}_adone")

PKB = lambda nt: 96 + 12*nt
FRB = 196

def pack_all(e, G):
    for nt in range(4):
        pack_nt(e, G, nt, PKB(nt))
        e(f"v_mov_b32 v{PKB(nt)+10}, 0"); e(f"v_mov_b32 v{PKB(nt)+11}, 0")

def phi_chain(e, kp, out):
    for ks in range(3):
        for mt in range(5):
            c = "0" if ks == 0 else vr(out+4*mt, 4)
            e(f"v_mfma_f32_16x16x32_bf16 {vr(out+4*mt,4)}, {vr(FRB+(mt*3+ks)*4,4)}, {vr(kp+4*ks,4)}, {c}")

def role_bq(e, G, name):
    T = G.T
    e("s_and_b32 s53, s3, 1")
    pack_all(e, G)
    e("s_lshr_b32 s52, s3, 1"); e("s_lshl_b32 s54, s41, 3"); e("s_lshl_b32 s55, s52, 2"); e("s_add_u32 s54, s54, s55")
    e("s_lshl_b32 s54, s54, 3"); e("s_lshl_b32 s55, s42, 1"); e("s_add_u32 s54, s54, s55"); e("s_add_u32 s54, s54, s53")
    e("s_mul_i32 s54, s54, 2560"); e(f"s_add_u32 s54, s54, {WS_PQ}")
    e(f"v_lshlrev_b32 v{T+2}, 4, v1"); e(f"v_lshlrev_b32 v{T+3}, 3, v1")
    OUT = (56, 76)
    phi_chain(e, PKB(0), OUT[0])
    for nt in range(4):
        if nt < 3: phi_chain(e, PKB(nt+1), OUT[(nt+1) % 2])
        else: e("s_nop 7")
        o = OUT[nt % 2]; b = PKB(nt)
        e("s_nop 1")
        for i in range(10): e(f"v_cvt_pk_bf16_f32 v{b+i}, v{o+2*i}, v{o+2*i+1}")
        e(f"buffer_store_dwordx4 {vr(b,4)}, v{T+2}, s[16:19], s54 offen")
        e(f"buffer_store_dwordx4 {vr(b+4,4)}, v{T+2}, s[16:19], s54 offen offset:1024")
        e(f"buffer_store_dwordx2 {vr(b+8,2)}, v{T+3}, s[16:19], s54 offen offset:2048")
        if nt < 3: e(f"s_add_u32 s54, s54, {8*2560}")

def role_bkv(e, G, name):
    T = G.T
    e("s_lshr_b32 s52, s3, 1"); e("s_and_b32 s53, s3, 1")
    pack_all(e, G)
    e("s_cmp_eq_u32 s53, 0")
    e(f"s_cbranch_scc0 {name}_vw")
    e("s_mul_i32 s54, s52, 5120")
    e(f"v_lshlrev_b32 v{T}, 4, v1"); e(f"v_add_u32 v{T}, s54, v{T}")
    e(f"v_lshlrev_b32 v{T+1}, 3, v1"); e(f"v_add_u32 v{T+1}, s54, v{T+1}")
    for nt in (2, 3):
        o = L_KH + (nt-2)*2560
        e(f"ds_write_b128 v{T}, {vr(PKB(nt),4)} offset:{o}")
        e(f"ds_write_b128 v{T}, {vr(PKB(nt)+4,4)} offset:{o+1024}")
        e(f"ds_write_b64 v{T+1}, {vr(PKB(nt)+8,2)} offset:{o+2048}")
    e("s_waitcnt lgkmcnt(0)")
    e("s_barrier")
    e(f"s_branch {name}_go")
    e.label(f"{name}_vw")
    e(f"v_and_b32 v{T}, 15, v1"); e(f"v_mul_u32_u24 v{T}, {VROW}, v{T}"); e(f"v_lshrrev_b32 v{T+1}, 4, v1"); e(f"v_mul_u32_u24 v{T+1}, 48, v{T+1}")
    e(f"v_add_u32 v{T}, v{T}, v{T+1}"); e("s_mul_i32 s54, s52, %d" % (64*VROW)); e(f"v_add_u32 v{T}, s54, v{T}")
    e(f"v_mov_b32 v{T+2}, 0x3f80"); e(f"v_mov_b32 v{T+3}, 0")
    for nt in range(4):
        o = L_V + nt*16*VROW
        e(f"ds_write_b128 v{T}, {vr(PKB(nt),4)} offset:{o}")
        e(f"ds_write_b128 v{T}, {vr(PKB(nt)+4,4)} offset:{o+16}")
        e(f"ds_write_b64 v{T}, {vr(PKB(nt)+8,2)} offset:{o+32}")
        e(f"ds_write_b64 v{T}, {vr(T+2,2)} offset:{o+40}")
    e("s_waitcnt lgkmcnt(0)")
    e("s_barrier")
    e("s_mul_i32 s54, s52, 5120")
    e(f"v_lshlrev_b32 v{T}, 4, v1"); e(f"v_add_u32 v{T}, s54, v{T}")
    e(f"v_lshlrev_b32 v{T+1}, 3, v1"); e(f"v_add_u32 v{T+1}, s54, v{T+1}")
    for i in range(2):
        o = L_KH + i*2560
        e(f"ds_read_b128 {vr(PKB(i),4)}, v{T} offset:{o}"); e(f"ds_read_b128 {vr(PKB(i)+4,4)}, v{T} offset:{o+1024}"); e(f"ds_read_b64 {vr(PKB(i)+8,2)}, v{T+1} offset:{o+2048}")
    e("s_waitcnt lgkmcnt(0)")
    e.label(f"{name}_go")
    dmark(e, 1)
    e(f"v_and_b32 v{T}, 15, v1"); e(f"v_mul_u32_u24 v{T}, {PROW}, v{T}"); e(f"v_lshrrev_b32 v{T+1}, 4, v1"); e(f"v_mul_u32_u24 v{T+1}, 80, v{T+1}")
    e(f"v_add_u32 v{T}, v{T}, v{T+1}")
    e("s_lshl_b32 s54, s52, 6"); e("s_lshl_b32 s55, s53, 5"); e("s_add_u32 s54, s54, s55"); e(f"s_mul_i32 s54, s54, {PROW}"); e(f"s_add_u32 s54, s54, {L_PK}")
    e(f"v_add_u32 v{T}, s54, v{T}")
    e(f"s_mov_b32 s98, {f2h(LOG2E)}")
    EM, FT = 144, 164
    PKO = PKB(2)
    OUTS = (56, 76)
    phi_chain(e, PKB(0), OUTS[0]); phi_chain(e, PKB(1), OUTS[1])
    for i in range(2):
        OUT = OUTS[i]
        if i == 0: e("s_nop 0")
        features(e, OUT, OUT, EM, FT)
        for j in range(10):
            e(f"v_cvt_pk_bf16_f32 v{PKO+j}, v{OUT+2*j}, v{OUT+2*j+1}")
        for j in range(10):
            e(f"v_cvt_pk_bf16_f32 v{PKO+10+j}, v{EM+2*j}, v{EM+2*j+1}")
        for j in range(5):
            e(f"ds_write_b128 v{T}, {vr(PKO+4*j,4)} offset:{i*16*PROW + 16*j}")
        e("s_nop 1")
    dmark(e, 2)
    e("s_waitcnt lgkmcnt(0)")
    e("s_barrier")
    e(f"v_lshrrev_b32 v{T}, 4, v1"); e(f"v_lshlrev_b32 v{T}, 3, v{T}"); e(f"v_bfe_u32 v{T+1}, v1, 2, 2"); e(f"v_add_u32 v{T}, v{T}, v{T+1}")
    e(f"v_and_b32 v{T+1}, 3, v1"); e(f"v_lshlrev_b32 v{T+1}, 3, v{T+1}")
    e(f"v_mul_u32_u24 v{T+2}, {VROW}, v{T}"); e(f"v_add_u32 v{T+2}, v{T+2}, v{T+1}"); e("s_mul_i32 s54, s3, 48"); e(f"v_add_u32 v{T+2}, s54, v{T+2}")
    e(f"v_mul_u32_u24 v{T+3}, {PROW}, v{T}"); e(f"v_add_u32 v{T+3}, v{T+3}, v{T+1}"); e("s_mul_i32 s54, s3, 80"); e(f"s_add_u32 s54, s54, {L_PK}"); e(f"v_add_u32 v{T+3}, s54, v{T+3}")
    ACC = 16
    AF, BF = 40, 56
    def rd(ks):
        for mt in range(2):
            for b in range(2):
                e(f"ds_read_b64_tr_b16 v[{AF+(ks%2)*8+4*mt+2*b}:{AF+(ks%2)*8+4*mt+2*b+1}], v{T+2} offset:{L_V + (32*ks+4*b)*VROW + 32*mt}")
        for nt in range(3):
            for b in range(2):
                e(f"ds_read_b64_tr_b16 v[{BF+(ks%2)*12+4*nt+2*b}:{BF+(ks%2)*12+4*nt+2*b+1}], v{T+3} offset:{(32*ks+4*b)*PROW + 32*nt}")
    rd(0)
    for ks in range(4):
        if ks < 3: rd(ks+1); e("s_waitcnt lgkmcnt(10)")
        else: e("s_waitcnt lgkmcnt(0)")
        for mt in range(2):
            for nt in range(3):
                a = ACC + (mt*3+nt)*4
                c = "0" if ks == 0 else vr(a,4)
                e(f"v_mfma_f32_16x16x32_bf16 {vr(a,4)}, {vr(AF+(ks%2)*8+4*mt,4)}, {vr(BF+(ks%2)*12+4*nt,4)}, {c}")
    dmark(e, 3)
    e("s_sub_u32 s54, s40, 2"); e("s_lshl_b32 s54, s54, 2"); e("s_add_u32 s54, s54, s42")
    e("s_lshl_b32 s54, s54, 4"); e("s_add_u32 s54, s54, s41"); e("s_lshl_b32 s54, s54, 2"); e("s_add_u32 s54, s54, s3")
    e("s_mul_i32 s54, s54, 3840"); e(f"s_add_u32 s54, s54, {WS_KVP}")
    e(f"v_and_b32 v{T}, 15, v1"); e(f"v_lshrrev_b32 v{T+1}, 4, v1")
    e(f"v_mul_u32_u24 v{T+2}, 96, v{T}"); e(f"v_lshl_add_u32 v{T+2}, v{T+1}, 4, v{T+2}")
    e(f"v_mov_b32 v{T+3}, 0x7f000000")
    e(f"v_cmp_gt_u32 vcc, 2, v{T+1}"); e("s_nop 1"); e(f"v_cndmask_b32 v{T+4}, v{T+3}, v{T+2}, vcc")
    e(f"v_cmp_gt_u32 vcc, 8, v{T}"); e("s_nop 1"); e(f"v_cndmask_b32 v{T+5}, v{T+3}, v{T+2}, vcc"); e(f"v_cndmask_b32 v{T+6}, v{T+3}, v{T+4}, vcc")
    e("s_nop 4")
    for mt in range(2):
        for nt in range(3):
            a = ACC + (mt*3+nt)*4
            va = {(0,0):T+2,(0,1):T+2,(0,2):T+5,(1,0):T+4,(1,1):T+4,(1,2):T+6}[(mt,nt)]
            e(f"buffer_store_dwordx4 {vr(a,4)}, v{va}, s[16:19], s54 offen offset:{nt*16*96 + mt*64}")

def xw_srds(e):
    e("s_cmp_eq_u32 s40, 0")
    e("s_cselect_b32 s8, s32, s36"); e("s_cselect_b32 s9, s33, s37")
    e("s_cselect_b32 s12, s34, s38"); e("s_cselect_b32 s13, s35, s39")
    e("s_mov_b32 s14, %d" % (640*1920*2))
    e("s_cselect_b32 s14, %d, s14" % (640*640*2))
    e("s_and_b32 s9, s9, 0xffff"); e("s_mov_b32 s10, %d" % (2048*640*2)); e("s_mov_b32 s11, 0x20000")
    e("s_and_b32 s13, s13, 0xffff"); e("s_mov_b32 s15, 0x20000")

def touch_setup(e):
    e("s_waitcnt lgkmcnt(0)")
    xw_srds(e)
    e("s_lshr_b32 s52, s2, 3")
    e("s_mul_i32 s53, s52, 20"); e("v_add_u32 v186, s53, v1")
    e("v_mul_u32_u24 v187, 6554, v186"); e("v_lshrrev_b32 v187, 16, v187"); e("v_mul_u32_u24 v188, 10, v187"); e("v_sub_u32 v186, v186, v188")
    e("v_mul_lo_u32 v187, v187, s44")
    e("s_sub_u32 s54, s40, 2"); e("s_mul_i32 s54, s54, 640"); e("s_add_u32 s55, s54, 1280"); e("s_add_u32 s54, s54, 1920")
    e("s_cmp_ge_u32 s40, 2"); e("s_cselect_b32 s55, s55, 0"); e("s_cselect_b32 s54, s54, 0")
    e("v_cmp_gt_u32 vcc, 5, v186"); e("v_mov_b32 v188, s54"); e("v_mov_b32 v189, s55"); e("v_cndmask_b32 v188, v188, v189, vcc")
    e("v_lshl_add_u32 v186, v186, 7, v188"); e("v_add_u32 v186, v186, v187")
    e("v_cmp_gt_u32 vcc, 20, v1"); e("v_mov_b32 v187, 0x7f000000"); e("s_nop 0"); e("v_cndmask_b32 v186, v187, v186, vcc")
    e("s_lshr_b32 s53, s2, 2"); e("s_and_b32 s53, s53, 1"); e("s_lshl_b32 s53, s53, 10"); e("s_lshl_b32 s54, s52, 5"); e("s_add_u32 s53, s53, s54"); e("s_mul_i32 s53, s53, 1280")
    e("v_mul_u32_u24 v188, 1280, v1"); e("v_cmp_gt_u32 vcc, 32, v1"); e("s_nop 1"); e("v_cndmask_b32 v188, v187, v188, vcc")

def gen(e, name="proj_kernel"):
    G = Gemm(STG_B, NSTG, 10, 4)
    kernel_header(e, name)
    e("s_cmp_ge_u32 s2, 256")
    e(f"s_cbranch_scc1 {name}_end")
    e("s_load_dwordx4 s[32:35], s[0:1], 0")
    e("s_load_dwordx4 s[36:39], s[0:1], 40")
    e("s_load_dwordx4 s[84:87], s[0:1], 16")
    e("s_load_dwordx2 s[88:89], s[0:1], 56")
    e("s_load_dwordx2 s[4:5], s[0:1], 88")
    if not DIAG: ST.mark(e)
    e("v_lshrrev_b32 v2, 6, v0")
    e("v_and_b32 v1, 63, v0")
    e("s_and_b32 s40, s2, 3")
    e("v_readfirstlane_b32 s3, v2")
    e("s_lshr_b32 s41, s2, 2"); e("s_and_b32 s41, s41, 1")
    e("s_lshr_b32 s42, s2, 3")
    e("s_and_b32 s43, s42, 7"); e("s_lshl_b32 s41, s41, 3"); e("s_add_u32 s41, s41, s43")
    e("s_lshr_b32 s42, s42, 3")
    e("s_cmp_eq_u32 s40, 0")
    e("s_movk_i32 s44, 3840")
    e("s_cselect_b32 s44, 1280, s44")
    if "touch" in VAR: touch_setup(e)
    e("s_cmp_lt_u32 s3, 4")
    e(f"s_cbranch_scc1 {name}_compute")
    e("s_sub_u32 s3, s3, 4")
    if "touch" in VAR:
        e("s_and_b32 s54, s3, 1"); e("s_lshl_b32 s55, s54, 7"); e("s_add_u32 s55, s55, s53"); e("s_lshl_b32 s56, s44, 6"); e("s_mul_i32 s54, s54, s56")
        e("buffer_load_dword v190, v188, s[8:11], s55 offen"); e("buffer_load_dword v191, v186, s[12:15], s54 offen")
    G.loader_setup(e, 44)
    e(f"v_lshlrev_b32 v{G.LT+8}, 4, v1")
    e("s_lshr_b32 s45, s3, 1")
    e("s_mul_i32 s46, s42, 160"); e("s_mul_i32 s47, s45, 80"); e("s_add_u32 s46, s46, s47")
    e("s_sub_u32 s47, s40, 2"); e("s_lshl_b32 s47, s47, 2"); e("s_add_u32 s47, s47, s42"); e("s_mov_b32 s59, s47"); e("s_mul_i32 s47, s47, 80")
    e("s_mul_i32 s48, s45, 640"); e("s_add_u32 s47, s47, s48"); e("s_add_u32 s47, s47, 640")
    e("s_cmp_ge_u32 s40, 2")
    e("s_cselect_b32 s46, s47, s46")
    e("s_lshl_b32 s20, s41, 7"); e("s_lshl_b32 s49, s3, 5"); e("s_add_u32 s20, s20, s49"); e("s_mul_i32 s20, s20, 1280")
    e("s_and_b32 s49, s3, 1"); e("s_lshl_b32 s49, s49, 5"); e("s_mul_i32 s21, s49, s44"); e("s_lshl_b32 s49, s46, 1"); e("s_add_u32 s21, s21, s49")
    e("s_lshl_b32 s22, s44, 6")
    e("s_lshl_b32 s24, s3, 12")
    e("s_lshr_b32 s49, s3, 1"); e("s_mul_i32 s25, s49, 10240"); e("s_and_b32 s49, s3, 1"); e("s_mul_i32 s49, s49, 5120")
    e("s_add_u32 s25, s25, s49"); e(f"s_add_u32 s25, s25, {W_OFF}")
    if "norot" not in VAR:
        e("s_mul_i32 s23, s42, 3"); e("s_add_u32 s23, s23, s43"); e("s_cmp_ge_u32 s23, 10"); e("s_cselect_b32 s49, 10, 0"); e("s_sub_u32 s23, s23, s49")
    else:
        e("s_mov_b32 s23, 0")
    e("s_mul_i32 s57, s42, 6400"); e("s_mul_i32 s58, s59, 3200"); e("s_cmp_ge_u32 s40, 2"); e("s_cselect_b32 s57, s58, s57")
    e("s_lshl_b32 s58, s3, 11"); e("s_add_u32 s57, s57, s58"); e(f"s_add_u32 s58, s58, {L_PHI}")
    e("s_waitcnt lgkmcnt(0)")
    xw_srds(e)
    ST2.n = 0
    ST2.mark(e)
    if "touch" in VAR and "nol0" not in VAR: e("s_waitcnt vmcnt(0)")
    ST2.mark(e)
    make_srd(e, 16, 88, 25600)
    e("s_mov_b32 m0, s58"); e("s_nop 0")
    e(f"buffer_load_dwordx4 v{G.LT+8}, s[16:19], s57 offen lds")
    e(f"buffer_load_dwordx4 v{G.LT+8}, s[16:19], s57 offen offset:1024 lds")
    def tail(e, c, what):
        if what == "count":
            return None
        if c in (6, 7):
            lab = f"{name}_tx{c}"
            e("s_cmp_lg_u32 s40, 0"); e(f"s_cbranch_scc1 {lab}")
            make_srd(e, 16, 84 if c == 6 else 86, 25600)
            e("s_mul_i32 s57, s3, 7168"); e(f"s_add_u32 s58, s57, {L_WK if c == 6 else L_WV}")
            for j in range(7):
                e("s_mov_b32 m0, s58"); e("s_add_u32 s58, s58, 1024")
                e(f"buffer_load_dwordx4 v{G.LT+8}, s[16:19], s57 offen lds"); e("s_add_u32 s57, s57, 1024")
            e.label(lab)
    tail.extra = lambda c: {7: 7, 8: 14}.get(c, 0)
    G.loader_main(e, name, 10, tail, ST2)
    if ST2.en:
        make_srd(e, 76, 4, WS_BYTES)
        e("s_add_u32 s3, s3, 4")
        ST2.flush(e, 0, 40, 3, "s[76:79]")
    e("s_endpgm")
    e.label(f"{name}_compute")
    if "codepf" in VAR:
        e("s_cmp_lg_u32 s3, 0"); e(f"s_cbranch_scc1 {name}_nocp")
        e("s_getpc_b64 s[52:53]")
        e.label(f"{name}_pc")
        e(f"s_sub_u32 s52, s52, ({name}_pc - {name})"); e("s_subb_u32 s53, s53, 0")
        e("s_lshr_b32 s54, s2, 3"); e("s_lshl_b32 s54, s54, 10")
        e("v_lshlrev_b32 v186, 7, v1"); e("v_add_u32 v186, s54, v186")
        e("v_mov_b32 v187, s53"); e("v_add_co_u32 v186, vcc, s52, v186"); e("s_nop 1"); e("v_addc_co_u32 v187, vcc, 0, v187, vcc")
        e("s_mov_b64 exec, 0xff")
        e("global_load_dword v188, v[186:187], off")
        e("s_mov_b64 exec, -1")
        e.label(f"{name}_nocp")
    e("s_lshr_b32 s49, s3, 1"); e("s_lshl_b32 s50, s49, 13")
    e("s_and_b32 s49, s3, 1"); e("s_mul_i32 s51, s49, 10240"); e(f"s_add_u32 s51, s51, {W_OFF}")
    if "touch" in VAR:
        e("s_add_u32 s54, s3, 2"); e("s_lshl_b32 s55, s54, 7"); e("s_add_u32 s55, s55, s53"); e("s_lshl_b32 s56, s44, 6"); e("s_mul_i32 s54, s54, s56")
        e("s_sleep %d" % int(os.environ.get("SLP", "8")))
        for i in range(2):
            e(f"buffer_load_dword v{190+2*i}, v188, s[8:11], s55 offen"); e(f"buffer_load_dword v{191+2*i}, v186, s[12:15], s54 offen")
            if i == 0: e("s_add_u32 s55, s55, 512"); e("s_lshl_b32 s57, s56, 2"); e("s_add_u32 s54, s54, s57")
    if not DIAG: ST.mark(e)
    G.compute_setup(e, 50, 51)
    e(f"v_lshlrev_b32 v{G.T}, 4, v1"); e(f"v_add_u32 v{G.T}, {L_ZERO}, v{G.T}")
    for r in range(4): e(f"v_mov_b32 v{96+r}, 0")
    e(f"ds_write_b128 v{G.T}, v[96:99]")
    e("s_waitcnt lgkmcnt(0)")
    def pre(e):
        e("s_cmp_eq_u32 s40, 0"); e(f"s_cbranch_scc1 {name}_prea")
        e("s_and_b32 s50, s3, 1"); e("s_lshl_b32 s50, s50, 2"); e("s_cmp_ge_u32 s40, 2"); e("s_cselect_b32 s50, 0, s50"); e(f"s_mov_b32 s99, {L_PHI}")
        phi_addr(e, G, G.T+6, 50)
        phi_frags(e, G.T+6, FRB)
        e(f"s_branch {name}_prej")
        e.label(f"{name}_prea")
        role_a_pre(e, G)
        e.label(f"{name}_prej")
    G.compute_main(e, name, None if DIAG else ST, pre)
    if DIAG: dmark(e, 0)
    else: ST.mark(e)
    e("s_barrier")
    make_srd(e, 16, 4, WS_BYTES)
    e("s_nop 4")
    e("s_or_b32 s50, s2, s3"); e("s_cmp_lg_u32 s50, 0"); e(f"s_cbranch_scc1 {name}_nz")
    e("v_lshlrev_b32 v184, 4, v1"); e("v_mov_b32 v186, 0"); e("v_mov_b32 v187, 0"); e("v_mov_b32 v188, 0"); e("v_mov_b32 v189, 0")
    e(f"s_mov_b32 s50, {WS_CNT}")
    e("buffer_store_dwordx4 v[186:189], v184, s[16:19], s50 offen")
    e.label(f"{name}_nz")
    e("s_cmp_eq_u32 s40, 1"); e(f"s_cbranch_scc1 {name}_rbq")
    e("s_cmp_eq_u32 s40, 0"); e(f"s_cbranch_scc1 {name}_ra")
    role_bkv(e, G, name)
    e(f"s_branch {name}_fin")
    e.label(f"{name}_ra")
    e(f"s_mov_b32 s99, {L_WK}"); e(f"s_mov_b32 s97, {L_WV}")
    role_a(e, G, name)
    e(f"s_branch {name}_fin")
    e.label(f"{name}_rbq")
    role_bq(e, G, name)
    e.label(f"{name}_fin")
    e("s_waitcnt vmcnt(0)")
    if DIAG: dmark(e, 4)
    else: ST.mark(e)
    ST.flush(e, 0, G.T, 3, "s[16:19]")
    e("s_endpgm")
    e.label(f"{name}_end")
    e("s_endpgm")
    return 256, LDS_K1
if __name__ == "__main__":
    import build
    build.build([("proj_kernel", gen)], "k1test.s", [("proj_kernel", 256, 512, LDS_K1)])
```

```python
from common import *
from gemm2 import *
from stamp import Stamps
import os
ST = Stamps(os.environ.get("STAMP")=="1")
ST2 = Stamps(os.environ.get("STAMP")=="1")
STG_B, NSTG = 53248, 3
W_OFF = 32768
LDS_K3 = NSTG*STG_B
L_RED = 0
L_ST = 40960

def epilogue(e, G, name, SOUT):
    e("s_barrier")
    T = G.T
    e("s_waitcnt lgkmcnt(0)")
    e(f"v_lshlrev_b32 v{T}, 4, v1"); e("s_mul_i32 s52, s3, 10240"); e(f"v_add_u32 v{T+1}, s52, v{T}")
    e("s_xor_b32 s53, s3, 1"); e("s_mul_i32 s53, s53, 10240"); e(f"v_add_u32 v{T+2}, s53, v{T}")
    KEEP = 96
    e("s_cmp_eq_u32 s49, 0"); e(f"s_cbranch_scc0 {name}_k1")
    for kh in range(2):
        if kh == 1: e.label(f"{name}_k1")
        send = (2, 3) if kh == 0 else (0, 1); keep = (0, 1) if kh == 0 else (2, 3)
        for i, nt in enumerate(send):
            for mt in range(5):
                e(f"ds_write_b128 v{T+1}, {vr(G.acc(mt,nt),4)} offset:{L_RED + (i*5+mt)*1024}")
        for i, nt in enumerate(keep):
            for mt in range(5):
                for r in range(4): e(f"v_mov_b32 v{KEEP+(i*5+mt)*4+r}, v{G.acc(mt,nt)+r}")
        if kh == 0: e(f"s_branch {name}_kj")
    e.label(f"{name}_kj")
    e("s_waitcnt lgkmcnt(0)")
    e("s_barrier")
    RD = 16
    for j in range(10): e(f"ds_read_b128 {vr(RD+4*j,4)}, v{T+2} offset:{L_RED + j*1024}")
    e(f"v_and_b32 v{T+3}, 15, v1"); e(f"v_mul_u32_u24 v{T+3}, 160, v{T+3}"); e(f"v_lshrrev_b32 v{T+4}, 4, v1"); e(f"v_mul_u32_u24 v{T+4}, 40, v{T+4}")
    e(f"s_mul_i32 s52, s3, 5120"); e(f"s_add_u32 s52, s52, {L_ST}"); e(f"v_add3_u32 v{T+3}, v{T+3}, v{T+4}, s52")
    e("s_waitcnt lgkmcnt(0)")
    for r in range(40): e(f"v_add_f32 v{KEEP+r}, v{KEEP+r}, v{RD+r}")
    PK = 56
    for i in range(2):
        for j in range(10): e(f"v_cvt_pk_bf16_f32 v{PK+10*i+j}, v{KEEP+20*i+2*j}, v{KEEP+20*i+2*j+1}")
        for j in range(5): e(f"ds_write_b64 v{T+3}, {vr(PK+10*i+2*j,2)} offset:{i*2560 + 8*j}")
    make_srd(e, 16, SOUT, 2048*2560)
    e("s_lshl_b32 s53, s41, 7"); e("s_lshr_b32 s54, s3, 1"); e("s_lshl_b32 s54, s54, 6"); e("s_add_u32 s53, s53, s54"); e("s_lshl_b32 s54, s49, 5"); e("s_add_u32 s53, s53, s54")
    e("s_mul_i32 s53, s53, 2560"); e("s_mul_i32 s54, s40, 1280"); e("s_add_u32 s53, s53, s54"); e("s_mul_i32 s54, s42, 160"); e("s_add_u32 s53, s53, s54")
    for j in range(5):
        t = 76 + 2*j
        e(f"v_add_u32 v{t}, {64*j}, v1")
        e(f"v_mul_u32_u24 v{t+1}, 6554, v{t}"); e(f"v_lshrrev_b32 v{t+1}, 16, v{t+1}")
        e(f"v_mul_u32_u24 v{T+4}, 10, v{t+1}"); e(f"v_sub_u32 v{T+4}, v{t}, v{T+4}")
        e(f"v_mul_u32_u24 v{t+1}, 2560, v{t+1}"); e(f"v_lshl_add_u32 v{t+1}, v{T+4}, 4, v{t+1}")
        e(f"v_lshlrev_b32 v{t}, 4, v{t}"); e(f"v_add_u32 v{t}, s52, v{t}")
    e("s_waitcnt lgkmcnt(0)")
    for j in range(5): e(f"ds_read_b128 {vr(96+4*j,4)}, v{76+2*j}")
    for j in range(5):
        e(f"s_waitcnt lgkmcnt({4-j})")
        e(f"buffer_store_dwordx4 {vr(96+4*j,4)}, v{76+2*j+1}, s[16:19], s53 offen")

def gen(e, name="out_kernel"):
    G = Gemm(STG_B, NSTG, 5, 8, pf=int(os.environ.get("PF3","1")))
    G.WLIN = True
    kernel_header(e, name)
    e("s_cmp_ge_u32 s2, 256")
    e(f"s_cbranch_scc1 {name}_end")
    e("s_load_dwordx2 s[36:37], s[0:1], 72")
    e("s_load_dwordx2 s[4:5], s[0:1], 88")
    ST.mark(e)
    e("v_lshrrev_b32 v2, 6, v0")
    e("v_and_b32 v1, 63, v0")
    e("s_and_b32 s40, s2, 1")
    e("v_readfirstlane_b32 s3, v2")
    e("s_lshr_b32 s41, s2, 1"); e("s_and_b32 s41, s41, 3"); e("s_lshl_b32 s41, s41, 2")
    e("s_lshr_b32 s42, s2, 3"); e("s_and_b32 s43, s42, 3"); e("s_add_u32 s41, s41, s43")
    e("s_lshr_b32 s42, s42, 2")
    e("s_movk_i32 s44, 1280")
    e("s_cmp_lt_u32 s3, 4")
    e(f"s_cbranch_scc1 {name}_compute")
    e("s_sub_u32 s3, s3, 4")
    ST2.n = 0
    ST2.mark(e)
    G.loader_setup(e, 44)
    e("s_lshr_b32 s45, s3, 1"); e("s_and_b32 s46, s3, 1")
    e("s_lshl_b32 s20, s41, 7"); e("s_lshl_b32 s49, s46, 6"); e("s_add_u32 s20, s20, s49"); e("s_mul_i32 s20, s20, 1280"); e("s_mul_i32 s49, s45, 640"); e("s_add_u32 s20, s20, s49")
    e(f"s_mov_b32 s49, {WS_OB}"); e("s_cmp_eq_u32 s40, 0"); e(f"s_cselect_b32 s49, {WS_OA}, s49"); e("s_add_u32 s20, s20, s49")
    e("s_mul_i32 s21, s45, 320"); e("s_lshl_b32 s49, s46, 5"); e("s_add_u32 s21, s21, s49"); e("s_mul_i32 s21, s21, 160")
    e("s_lshl_b32 s49, s40, 3"); e("s_add_u32 s49, s49, s42"); e("s_mul_i32 s49, s49, 102400"); e("s_add_u32 s21, s21, s49"); e(f"s_add_u32 s21, s21, {WS_WOI}")
    e(f"s_mov_b32 s22, {64*160}")
    e("s_lshl_b32 s24, s45, 14"); e("s_lshl_b32 s49, s46, 13"); e("s_add_u32 s24, s24, s49")
    e("s_mul_i32 s25, s45, 10240"); e("s_mul_i32 s49, s46, 5120"); e("s_add_u32 s25, s25, s49"); e(f"s_add_u32 s25, s25, {W_OFF}")
    e("s_add_u32 s23, s42, s43"); e("s_mul_i32 s49, s23, 52"); e("s_lshr_b32 s49, s49, 8"); e("s_mul_i32 s49, s49, 5"); e("s_sub_u32 s23, s23, s49")
    e("s_waitcnt lgkmcnt(0)")
    make_srd(e, 8, 4, WS_BYTES)
    make_srd(e, 12, 4, WS_BYTES)
    ST2.mark(e)
    G.loader_main(e, name, 5, None, ST2)
    if ST2.en:
        e("s_add_u32 s3, s3, 4")
        ST2.flush(e, 2, 40, 3, "s[8:11]")
    e("s_endpgm")
    e.label(f"{name}_compute")
    e("s_and_b32 s49, s3, 1"); e("s_lshl_b32 s50, s49, 14"); e("s_lshr_b32 s51, s3, 1"); e("s_lshl_b32 s51, s51, 13"); e("s_add_u32 s50, s50, s51")
    e("s_mul_i32 s51, s49, 10240"); e(f"s_add_u32 s51, s51, {W_OFF}")
    G.compute_setup(e, 50, 51)
    G.compute_main(e, name, ST)
    ST.mark(e)
    epilogue(e, G, name, 36)
    e("s_waitcnt vmcnt(0)")
    ST.mark(e)
    if ST.en:
        make_srd(e, 16, 4, WS_BYTES)
    ST.flush(e, 2, G.T, 3, "s[16:19]")
    e("s_endpgm")
    e.label(f"{name}_end")
    e("s_endpgm")
    return G.NV, LDS_K3
```

```python
from common import *
class Stamps:
    def __init__(self, enabled, base=60, maxn=8):
        self.en = enabled; self.base = base; self.n = 0; self.maxn = maxn
    def mark(self, e):
        if not self.en: return
        b = self.base + 4*self.n
        e(f"s_memrealtime s[{b}:{b+1}]")
        e(f"s_memtime s[{b+2}:{b+3}]")
        self.n += 1
    def flush(self, e, kidx, vtmp, s_wave, srd="s[8:11]"):
        if not self.en: return
        e("s_waitcnt lgkmcnt(0)")
        e("s_mov_b64 exec, 1")
        e(f"s_lshl_b32 s96, s2, 4")
        e(f"s_add_u32 s96, s96, s{s_wave}")
        e(f"s_lshl_b32 s96, s96, 6")
        e(f"s_add_u32 s96, s96, {WS_STAMP + kidx*0x40000}")
        e(f"v_mov_b32 v{vtmp}, 0")
        for i in range(self.n):
            b = self.base + 4*i
            e(f"v_mov_b32 v{vtmp+2}, s{b}")
            e(f"v_mov_b32 v{vtmp+3}, s{b+2}")
            e(f"buffer_store_dwordx2 v[{vtmp+2}:{vtmp+3}], v{vtmp}, {srd}, s96 offen offset:{8*i}")
            e("s_nop 1")
        e("s_waitcnt vmcnt(0)")
def read_stamps(ctx, kidx, nwg, nwave, n):
    import numpy as np
    a = ctx.ws_read(WS_STAMP + kidx*0x40000, nwg*16*64, np.uint32).reshape(nwg,16,8,2)
    return a[:, :nwave, :n, :]

class RStamps:
    def __init__(self, enabled, base=60):
        self.en = enabled; self.base = base; self.n = 0
    def mark(self, e):
        if not self.en: return
        b = self.base + 2*self.n
        assert self.n < 12
        import os
        if not (os.environ.get("DIAGA") and self.n in (8, 9) and getattr(self, "main", False)):
            e(f"s_memrealtime s[{b}:{b+1}]")
        self.n += 1
    def flush(self, e, vtmp, s_wave, srd):
        if not self.en: return
        e("s_waitcnt lgkmcnt(0)")
        e("s_mov_b64 exec, 1")
        e(f"s_lshl_b32 s96, s2, 4"); e(f"s_add_u32 s96, s96, s{s_wave}"); e(f"s_lshl_b32 s96, s96, 6"); e(f"s_add_u32 s96, s96, {WS_STAMP}")
        e(f"v_mov_b32 v{vtmp}, 0")
        for i in range(self.n):
            e(f"v_mov_b32 v{vtmp+1}, s{self.base+2*i}")
            e(f"buffer_store_dword v{vtmp+1}, v{vtmp}, {srd}, s96 offen offset:{4*i}")
            e("s_nop 1")
        e("s_waitcnt vmcnt(0)")
def read_rstamps(ctx, nwg, nwave, n):
    import numpy as np
    a = ctx.ws_read(WS_STAMP, nwg*16*64, np.uint32).reshape(nwg,16,16)
    return a[:, :nwave, :n]
```

```python
from common import *
from gemm2 import Gemm
from stamp import RStamps
import k1, k2r, k3, os
VAR = os.environ.get("VAR", "")
STEN = os.environ.get("STAMP") == "1"
LDS_MEGA = max(k1.LDS_K1, k2r.LDS_K2, k3.LDS_K3)
SW = 100
DBG_A, DBG_B = 0, 128
CNT_KV, CNT_OA, CNT_OB, CNT_W, CNT_B = WS_CNT, WS_CNT + 0x400, WS_CNT + 0xC00, WS_CNT + 0x1400, WS_CNT + 0x1C00
L_KM = k2r.LDS_B + 19968
L_FLAG = k2r.LDS_Q + 10240
WT = os.environ.get("WT", "sc0 sc1")

def poll(e, lab, srd, voff, target, tmpv=4):
    e("s_mov_b32 s30, 0")
    e("s_mov_b64 exec, 1")
    e.label(lab)
    e(f"buffer_load_dword v{tmpv}, v{voff}, {srd}, 0 offen {os.environ.get('POLLSC', 'sc1')}")
    e("s_waitcnt vmcnt(0)")
    e(f"v_readfirstlane_b32 s31, v{tmpv}")
    e("s_add_u32 s30, s30, 1")
    e(f"s_cmp_ge_u32 s31, {target}"); e(f"s_cbranch_scc1 {lab}_d")
    e("s_cmp_gt_u32 s30, 1000000"); e(f"s_cbranch_scc1 {lab}_d")
    e("s_sleep 1"); e(f"s_branch {lab}")
    e.label(f"{lab}_d")
    e("s_mov_b64 exec, -1")

def pollflags(e, lab, minval):
    e("v_lshlrev_b32 v46, 2, v1")
    e("s_mov_b32 s30, 0")
    e.label(lab)
    e("buffer_load_dword v47, v46, s[44:47], 0 offen sc1")
    e("s_waitcnt vmcnt(0)")
    e(f"v_cmp_le_u32 vcc, {minval}, v47")
    e("s_add_u32 s30, s30, 1")
    e("s_cmp_eq_u64 vcc, -1"); e(f"s_cbranch_scc1 {lab}_d")
    e("s_cmp_gt_u32 s30, 1000000"); e(f"s_cbranch_scc1 {lab}_d")
    e(f"s_sleep {os.environ.get('PSLP', '3')}"); e(f"s_branch {lab}")
    e.label(f"{lab}_d")

def arrive(e, srd, voff, tmpv=4):
    e("s_mov_b64 exec, 1"); e(f"v_mov_b32 v{tmpv}, 1")
    e(f"buffer_atomic_add v{tmpv}, v{voff}, {srd}, 0 offen sc1")
    e("s_mov_b64 exec, -1")

def p1_ids(e):
    if os.environ.get("MAP", "old") == "old":
        e("s_and_b32 s40, s2, 3")
        e("s_lshr_b32 s41, s2, 2"); e("s_and_b32 s41, s41, 1")
        e("s_lshr_b32 s42, s2, 3")
        e("s_and_b32 s43, s42, 7"); e("s_lshl_b32 s41, s41, 3"); e("s_add_u32 s41, s41, s43")
        e("s_lshr_b32 s42, s42, 3")
        e("s_mul_i32 s45, s42, 3"); e("s_add_u32 s43, s43, s45"); e("s_cmp_ge_u32 s43, 10"); e("s_cselect_b32 s45, 10, 0"); e("s_sub_u32 s43, s43, s45")
    else:
        e("s_and_b32 s45, s2, 1")
        e("s_lshr_b32 s41, s2, 1"); e("s_and_b32 s41, s41, 3"); e("s_lshl_b32 s41, s41, 2")
        e("s_lshr_b32 s46, s2, 3"); e("s_and_b32 s47, s46, 3"); e("s_add_u32 s41, s41, s47")
        e("s_lshr_b32 s46, s46, 2")
        e("s_lshr_b32 s40, s46, 1")
        e("s_add_u32 s48, s45, 2"); e("s_cmp_ge_u32 s40, 2"); e("s_cselect_b32 s40, s48, s40")
        e("s_lshl_b32 s48, s45, 1"); e("s_and_b32 s42, s46, 1"); e("s_add_u32 s42, s42, s48")
        e("s_sub_u32 s48, s46, 4"); e("s_cmp_ge_u32 s46, 4"); e("s_cselect_b32 s42, s48, s42")
        e("s_mul_i32 s43, s47, 5"); e("s_lshr_b32 s43, s43, 1"); e("s_add_u32 s43, s43, s46")
        e("s_cmp_ge_u32 s43, 10"); e("s_cselect_b32 s48, 10, 0"); e("s_sub_u32 s43, s43, s48")
    e("s_cmp_eq_u32 s40, 0"); e("s_movk_i32 s44, 3840"); e("s_cselect_b32 s44, 1280, s44")

def p1_loader(e, G, name):
    K = k1
    e(f"s_sub_u32 s3, s{SW}, 4")
    G.loader_setup(e, 44)
    e(f"v_lshlrev_b32 v{G.LT+8}, 4, v1")
    e("s_lshr_b32 s45, s3, 1")
    e("s_mul_i32 s46, s42, 160"); e("s_mul_i32 s47, s45, 80"); e("s_add_u32 s46, s46, s47")
    e("s_sub_u32 s47, s40, 2"); e("s_lshl_b32 s47, s47, 2"); e("s_add_u32 s47, s47, s42"); e("s_mov_b32 s59, s47"); e("s_mul_i32 s47, s47, 80")
    e("s_mul_i32 s48, s45, 640"); e("s_add_u32 s47, s47, s48"); e("s_add_u32 s47, s47, 640")
    e("s_cmp_ge_u32 s40, 2"); e("s_cselect_b32 s46, s47, s46")
    e("s_lshl_b32 s20, s41, 7"); e("s_lshl_b32 s49, s3, 5"); e("s_add_u32 s20, s20, s49"); e("s_mul_i32 s20, s20, 1280")
    e("s_and_b32 s49, s3, 1"); e("s_lshl_b32 s49, s49, 5"); e("s_mul_i32 s21, s49, s44"); e("s_lshl_b32 s49, s46, 1"); e("s_add_u32 s21, s21, s49")
    e("s_lshl_b32 s22, s44, 6")
    e("s_lshl_b32 s24, s3, 12")
    e("s_lshr_b32 s49, s3, 1"); e("s_mul_i32 s25, s49, 10240"); e("s_and_b32 s49, s3, 1"); e("s_mul_i32 s49, s49, 5120")
    e("s_add_u32 s25, s25, s49"); e(f"s_add_u32 s25, s25, {K.W_OFF}")
    e("s_mov_b32 s23, s43")
    e("s_mul_i32 s57, s42, 6400"); e("s_mul_i32 s58, s59, 3200"); e("s_cmp_ge_u32 s40, 2"); e("s_cselect_b32 s57, s58, s57")
    e("s_lshl_b32 s58, s3, 11"); e("s_add_u32 s57, s57, s58"); e(f"s_add_u32 s58, s58, {K.L_PHI}")
    e("s_waitcnt lgkmcnt(0)")
    K.xw_srds(e)
    make_srd(e, 16, 88, 25600)
    e("s_mov_b32 m0, s58"); e("s_nop 0")
    e(f"buffer_load_dwordx4 v{G.LT+8}, s[16:19], s57 offen lds")
    e(f"buffer_load_dwordx4 v{G.LT+8}, s[16:19], s57 offen offset:1024 lds")
    e("s_or_b32 s57, s40, s3"); e("s_cmp_lg_u32 s57, 0"); e(f"s_cbranch_scc1 {name}_nwt")
    make_srd(e, 48, 84, 25600); make_srd(e, 52, 86, 25600)
    e("s_lshr_b32 s57, s2, 3"); e("s_and_b32 s57, s57, 7"); e("s_mul_i32 s57, s57, 3200")
    e("v_lshlrev_b32 v44, 7, v1"); e("v_mov_b32 v45, 0x7f000000"); e("v_cmp_gt_u32 vcc, 25, v1"); e("s_nop 1"); e("v_cndmask_b32 v44, v45, v44, vcc")
    e("buffer_load_dword v46, v44, s[48:51], s57 offen"); e("buffer_load_dword v47, v44, s[52:55], s57 offen")
    e.label(f"{name}_nwt")
    def tail(e, c, what):
        if c in (6, 7):
            lab = f"{name}_tx{c}"
            e("s_cmp_lg_u32 s40, 0"); e(f"s_cbranch_scc1 {lab}")
            make_srd(e, 16, 84 if c == 6 else 86, 25600)
            e("s_mul_i32 s57, s3, 7168"); e(f"s_add_u32 s58, s57, {K.L_WK if c == 6 else K.L_WV}")
            for j in range(7):
                e("s_mov_b32 m0, s58"); e("s_add_u32 s58, s58, 1024")
                e(f"buffer_load_dwordx4 v{G.LT+8}, s[16:19], s57 offen lds"); e("s_add_u32 s57, s57, 1024")
            if c == 7: K.kv_x_loads(e, G, 196)
            e.label(lab)
    tail.extra = lambda c: {7: 7, 8: 24}.get(c, 0)
    G.loader_main(e, name + "_p1", 10, tail)
    e("s_waitcnt vmcnt(0)")
    e("s_barrier")
    e("s_cmp_lg_u32 s40, 0"); e(f"s_cbranch_scc1 {name}_lnkv")
    make_srd(e, 16, 4, WS_BYTES)
    e(f"s_mov_b32 s99, {K.L_WK}"); e(f"s_mov_b32 s97, {K.L_WV}")
    K.kv_part(e, G, name, 196, [96, 112, 128, 144, 236], 48, 0, 96)
    e("s_barrier")
    e("s_waitcnt vmcnt(0)")
    e("s_barrier")
    e(f"s_branch {name}_lp2")
    e.label(f"{name}_lnkv")
    for i in range(3): e("s_barrier")
    e.label(f"{name}_lp2")

def p1_compute(e, G, name, ST):
    K = k1
    e(f"s_mov_b32 s3, s{SW}")
    e("s_lshr_b32 s49, s3, 1"); e("s_lshl_b32 s50, s49, 13")
    e("s_and_b32 s49, s3, 1"); e("s_mul_i32 s51, s49, 10240"); e(f"s_add_u32 s51, s51, {K.W_OFF}")
    e("s_waitcnt lgkmcnt(0)")
    make_srd(e, 16, 4, WS_BYTES)
    e(f"s_or_b32 s52, s2, s3"); e("s_cmp_lg_u32 s52, 0"); e(f"s_cbranch_scc1 {name}_nz")
    e("v_lshlrev_b32 v184, 4, v1")
    for r in range(4): e(f"v_mov_b32 v{186+r}, 0")
    e(f"s_mov_b32 s52, {WS_CNT}")
    for j in range(8):
        e(f"buffer_store_dwordx4 v[186:189], v184, s[16:19], s52 offen"); e("s_add_u32 s52, s52, 1024")
    e.label(f"{name}_nz")
    G.compute_setup(e, 50, 51)
    e(f"v_lshlrev_b32 v{G.T}, 4, v1"); e(f"v_add_u32 v{G.T}, {K.L_ZERO}, v{G.T}")
    for r in range(4): e(f"v_mov_b32 v{96+r}, 0")
    e(f"ds_write_b128 v{G.T}, v[96:99]")
    e("s_waitcnt lgkmcnt(0)")
    def pre(e):
        e("s_cmp_eq_u32 s40, 0"); e(f"s_cbranch_scc1 {name}_prej")
        e("s_and_b32 s50, s3, 1"); e("s_lshl_b32 s50, s50, 2"); e("s_cmp_ge_u32 s40, 2"); e("s_cselect_b32 s50, 0, s50"); e(f"s_mov_b32 s99, {K.L_PHI}")
        K.phi_addr(e, G, G.T+6, 50)
        K.phi_frags(e, G.T+6, K.FRB)
        e.label(f"{name}_prej")
    G.compute_main(e, name + "_p1", ST, pre)
    ST.mark(e)
    e("s_cmp_eq_u32 s40, 0"); e(f"s_cbranch_scc1 {name}_ra")
    e("s_barrier")
    e("s_cmp_eq_u32 s40, 1"); e(f"s_cbranch_scc1 {name}_rbq")
    K.role_bkv(e, G, name)
    e.label(f"{name}_fin")
    ST.mark(e)
    e("s_barrier")

def p1_other_roles(e, G, name):
    K = k1
    e.label(f"{name}_ra")
    K.q_part(e, G, lambda e: e("s_barrier"))
    e("s_barrier"); e("s_barrier")
    e("s_waitcnt vmcnt(0)")
    e(f"s_branch {name}_fin")
    e.label(f"{name}_rbq")
    K.role_bq(e, G, name)
    e("s_barrier"); e("s_barrier")
    e(f"s_branch {name}_fin")

def p2_common(e):
    K = k2r
    e("v_mov_b32 v2, v1")
    e("s_mov_b32 s38, -1"); e("s_mov_b32 s39, 0")
    e(f"v_lshlrev_b32 v{K.L16}, 4, v2"); e(f"v_lshlrev_b32 v{K.L8}, 3, v2")
    make_srd(e, 8, 4, WS_BYTES)

def p2_helper(e, name, H):
    K = k2r; L16, L8, TILE_B = K.L16, K.L8, K.TILE_B
    L_KVF, L_BZ, L_OB = K.L_KVF, K.L_BZ, K.L_OB
    H.mark(e)
    e(f"s_sub_u32 s3, s{SW}, 4")
    p2_common(e)
    e("s_setprio 2")
    def tiles(n):
        for j in range(n):
            K.dma_tile(e, 20, 21)
            e(f"s_add_u32 s20, s20, {TILE_B}"); e(f"s_add_u32 s21, s21, {TILE_B}")
    make_srd(e, 44, 6, 256)
    e("s_cmp_lg_u32 s3, 0"); e(f"s_cbranch_scc1 {name}_h0j")
    e("s_cmp_lg_u32 s40, 0"); e(f"s_cbranch_scc1 {name}_nf2")
    if os.environ.get("SYNC1") == "cnt":
        e("v_mov_b32 v5, 0"); arrive(e, "s[44:47]", 5)
    else:
        e("s_lshl_b32 s26, s41, 2"); e("s_add_u32 s26, s26, s42"); e("s_lshl_b32 s26, s26, 2")
        e("s_mov_b64 exec, 1"); e("v_mov_b32 v44, s26"); e("v_mov_b32 v45, 1")
        e("buffer_store_dword v45, v44, s[44:47], 0 offen")
        e("s_mov_b64 exec, -1")
    e.label(f"{name}_nf2")
    if os.environ.get("SYNC1") == "cnt":
        e(f"v_mov_b32 v5, 0")
        poll(e, f"{name}_pa", "s[44:47]", 5, 64)
    else:
        pollflags(e, f"{name}_pa", 1)
    e.label(f"{name}_h0j")
    H.mark(e)
    e("s_barrier")
    H.mark(e)
    e(f"s_mul_i32 s20, s3, {16*TILE_B}"); e(f"s_add_u32 s20, s20, {WS_KV}")
    e(f"s_mul_i32 s22, s3, {K.RING_W}"); e("s_mov_b32 s21, s22")
    tiles(1)
    e("s_lshr_b32 s12, s2, 2"); e("s_lshl_b32 s12, s12, 5"); e("s_and_b32 s13, s2, 3"); e("s_lshl_b32 s13, s13, 3"); e("s_add_u32 s12, s12, s13")
    e(f"s_mul_i32 s12, s12, {K.QT_B}"); e(f"s_add_u32 s12, s12, {WS_Q}"); e("s_mul_i32 s13, s3, 3072"); e("s_add_u32 s12, s12, s13")
    e(f"s_add_u32 s13, s13, {K.LDS_Q}"); e("s_mov_b32 m0, s13"); e("s_nop 0")
    for o in (0, 1024, 2048): e(f"buffer_load_dwordx4 v{L16}, s[8:11], s12 offen offset:{o} lds")
    e(f"s_mov_b32 m0, {L_KM}"); e(f"s_mov_b32 s12, {WS_KMAX}"); e("s_mov_b64 exec, s[38:39]")
    e(f"buffer_load_dwordx4 v{L16}, s[8:11], s12 offen lds"); e("s_mov_b64 exec, -1")
    tiles(1)
    H.mark(e)
    e("s_waitcnt vmcnt(0)")
    H.mark(e)
    e("s_barrier")
    H.mark(e)
    e("s_mov_b32 s25, 6")
    e.label(f"{name}_hl0")
    tiles(1)
    e("s_sub_u32 s25, s25, 1"); e("s_cmp_lg_u32 s25, 0"); e(f"s_cbranch_scc1 {name}_hl0")
    e("s_cmp_lg_u32 s3, 0"); e(f"s_cbranch_scc1 {name}_h0b")
    e("s_cmp_eq_u32 s40, 0"); e(f"s_cbranch_scc1 {name}_h0b")
    e(f"v_mov_b32 v5, {CNT_B}")
    arrive(e, "s[8:11]", 5)
    e.label(f"{name}_h0b")
    for r in range(4): e(f"v_mov_b32 v{4+r}, 0")
    e(f"s_lshl_b32 s29, s3, 9"); e(f"s_add_u32 s29, s29, {L_BZ}"); e(f"v_add_u32 v40, s29, v{L8}"); e("ds_write_b64 v40, v[4:5]")
    e("s_waitcnt vmcnt(8) lgkmcnt(0)")
    e("s_barrier")
    e("s_mov_b32 s21, s22"); tiles(2)
    e(f"v_mov_b32 v5, {CNT_B}")
    poll(e, f"{name}_pb", "s[8:11]", 5, 192)
    e("s_and_b32 s26, s2, 7"); e("s_lshr_b32 s27, s2, 3")
    e(f"s_mul_i32 s28, s26, {16*15360}"); e("s_mul_i32 s29, s27, 480"); e("s_add_u32 s28, s28, s29"); e("s_mul_i32 s29, s3, 120"); e("s_add_u32 s28, s28, s29")
    e(f"s_add_u32 s28, s28, {WS_KVP}")
    e("v_mov_b32 v3, 0x7f000000"); e("v_cmp_gt_u32 vcc, 15, v2"); e("s_nop 1"); e(f"v_cndmask_b32 v3, v3, v{L8}, vcc")
    for p in range(16):
        e(f"buffer_load_dwordx2 v[{8+2*p}:{9+2*p}], v3, s[8:11], s28 offen")
        if p < 15: e("s_add_u32 s28, s28, 15360")
    e("s_lshl_b32 s28, s27, 2"); e("s_add_u32 s28, s28, s3"); e("s_lshl_b32 s28, s28, 3"); e("s_add_u32 s28, s28, s26"); e("s_mul_i32 s28, s28, 2560")
    e(f"s_add_u32 s28, s28, {WS_PQ}")
    e(f"buffer_load_dwordx4 v[48:51], v{L16}, s[8:11], s28 offen")
    e(f"buffer_load_dwordx4 v[52:55], v{L16}, s[8:11], s28 offen offset:1024")
    e(f"buffer_load_dwordx2 v[56:57], v{L8}, s[8:11], s28 offen offset:2048")
    e("s_waitcnt vmcnt(3)")
    for p in range(1, 16):
        e(f"v_add_f32 v8, v8, v{8+2*p}"); e(f"v_add_f32 v9, v9, v{9+2*p}")
    e("v_cvt_pk_bf16_f32 v8, v8, v9")
    e("s_mul_i32 s28, s26, 7680"); e("s_mul_i32 s29, s27, 240"); e("s_add_u32 s28, s28, s29"); e("s_mul_i32 s29, s3, 60"); e("s_add_u32 s28, s28, s29")
    e(f"s_add_u32 s28, s28, {WS_KVF}")
    e("v_mov_b32 v3, 0x7f000000"); e("v_lshlrev_b32 v4, 2, v2"); e("v_cmp_gt_u32 vcc, 15, v2"); e("s_nop 1"); e("v_cndmask_b32 v3, v3, v4, vcc")
    e("buffer_store_dword v8, v3, s[8:11], s28 offen")
    e("s_waitcnt vmcnt(0)")
    e("s_barrier")

def p2_helper_rest(e, name):
    t = E(); t.sf = e.sf
    k2r.helper(t, name)
    txt = "\n".join(t.l)
    i0 = txt.index("s_barrier", txt.index("buffer_store_dword v8, v3, s[8:11], s28 offen")) + len("s_barrier")
    i1 = txt.index("s_barrier", txt.index("s_waitcnt vmcnt(3)", i0))
    e.l += (txt[i0:i1] + "s_barrier").split("\n")
    e("s_waitcnt vmcnt(0)")
    e("s_lshr_b32 s29, s2, 4"); e("s_lshl_b32 s29, s29, 7"); e(f"s_add_u32 s29, s29, {CNT_OB}"); e("v_mov_b32 v5, s29")
    arrive(e, "s[8:11]", 5)
    e("s_and_b32 s26, s2, 1"); e("s_lshr_b32 s27, s2, 1"); e("s_and_b32 s27, s27, 7"); e("s_lshr_b32 s28, s2, 4")
    e("s_cmp_eq_u32 s26, 0"); e("s_cselect_b32 s48, s92, s94"); e("s_cselect_b32 s49, s93, s95"); e("s_and_b32 s49, s49, 0xffff"); e("s_mov_b32 s50, 819200"); e("s_mov_b32 s51, 0x20000")
    e("s_mul_i32 s28, s28, 400"); e("s_mul_i32 s29, s3, 100"); e("s_add_u32 s28, s28, s29")
    e("s_mul_i32 s29, s27, 160")
    e("s_lshl_b32 s30, s26, 3"); e("s_add_u32 s30, s30, s27"); e("s_mul_i32 s30, s30, 102400"); e(f"s_add_u32 s30, s30, {WS_WOI}")
    for j in range(2):
        t_ = 8 + 8*j
        e(f"v_add_u32 v{t_}, s28, v2")
        if j: e(f"v_add_u32 v{t_}, 64, v{t_}")
        e(f"v_mul_u32_u24 v{t_+1}, 6554, v{t_}"); e(f"v_lshrrev_b32 v{t_+1}, 16, v{t_+1}")
        e(f"v_mul_u32_u24 v{t_+2}, 10, v{t_+1}"); e(f"v_sub_u32 v{t_+2}, v{t_}, v{t_+2}")
        e(f"v_and_b32 v{t_+3}, 0xfffffff3, v{t_+1}"); e(f"v_and_b32 v{t_+4}, 4, v{t_+1}"); e(f"v_lshlrev_b32 v{t_+4}, 1, v{t_+4}")
        e(f"v_and_b32 v{t_+5}, 8, v{t_+1}"); e(f"v_lshrrev_b32 v{t_+5}, 1, v{t_+5}"); e(f"v_or3_b32 v{t_+3}, v{t_+3}, v{t_+4}, v{t_+5}")
        e(f"v_mul_u32_u24 v{t_+3}, 1280, v{t_+3}"); e(f"v_lshl_add_u32 v{t_+3}, v{t_+2}, 4, v{t_+3}")
        e(f"v_lshlrev_b32 v{t_}, 4, v{t_}")
        if j:
            e("v_cmp_gt_u32 vcc, 36, v2"); e("v_mov_b32 v7, 0x7f000000"); e("s_nop 0")
            e(f"v_cndmask_b32 v{t_+3}, v7, v{t_+3}, vcc"); e(f"v_cndmask_b32 v{t_}, v7, v{t_}, vcc")
        e(f"buffer_load_dwordx4 v[{24+4*j}:{27+4*j}], v{t_+3}, s[48:51], s29 offen")
    e("s_waitcnt vmcnt(0)")
    for j in range(2): e(f"buffer_store_dwordx4 v[{24+4*j}:{27+4*j}], v{8+8*j}, s[8:11], s30 offen")
    e("s_waitcnt vmcnt(0)")
    e("s_lshl_b32 s30, s26, 3"); e("s_add_u32 s30, s30, s27"); e("s_lshl_b32 s30, s30, 7"); e(f"s_add_u32 s30, s30, {CNT_W}"); e("v_mov_b32 v5, s30")
    arrive(e, "s[8:11]", 5)
    e.label(f"{name}_he1")
    e("s_barrier")
    e("s_barrier")
    e(f"v_mov_b32 v4, {L_FLAG}"); e("ds_read_b128 v[8:11], v4"); e("s_waitcnt lgkmcnt(0)")
    e("v_or3_b32 v8, v8, v9, v10"); e("v_or_b32 v8, v8, v11"); e("s_nop 1"); e("v_readfirstlane_b32 s26, v8")
    e("s_cmp_eq_u32 s26, 0"); e(f"s_cbranch_scc1 {name}_hf2")
    e("s_barrier")
    e(f"s_branch {name}_he1")
    e.label(f"{name}_hf2")
    e("s_barrier")
    e("s_setprio 0")

def p2_compute(e, name, ST):
    K = k2r
    QA, QB, S, P, KV, L16, L8, A16, A8, T0 = K.QA, K.QB, K.S, K.P, K.KV, K.L16, K.L8, K.A16, K.A8, K.T0
    e(f"s_mov_b32 s3, s{SW}")
    p2_common(e)
    e("s_mov_b32 s101, 0")
    e(f"s_mul_i32 s22, s3, {K.RING_W}"); e(f"s_add_u32 s21, s22, {K.RING_W}"); e("s_mov_b32 s20, s22")
    e(f"v_add_u32 v{A16}, s20, v{L16}"); e(f"v_add_u32 v{A8}, s20, v{L8}")
    for r in range(128): e(f"v_mov_b32 v{128+r}, 0")
    for r in range(8): e(f"v_mov_b32 v{P+r}, 0")
    for r in range(4): e(f"v_mov_b32 v{KV(1)[2]+r}, 0")
    e(f"v_add_u32 v{T0+2}, {K.LDS_Q}, v{L16}")
    e(f"v_and_b32 v{T0+3}, 31, v2"); e(f"v_lshlrev_b32 v{T0+3}, 4, v{T0+3}"); e("v_lshrrev_b32 v3, 5, v2"); e(f"v_lshl_add_u32 v{T0+3}, v3, 3, v{T0+3}"); e(f"v_add_u32 v{T0+3}, {K.LDS_Q+1024}, v{T0+3}")
    e(f"v_add_u32 v3, {L_KM}, v{L8}")
    e("s_barrier")
    e("s_waitcnt vmcnt(0)")
    e("s_barrier")
    k = T0
    e(f"ds_read_b64 v[{T0}:{T0+1}], v3")
    K.ldk(e, 0); K.ldv(e, 0)
    for u in range(8):
        e(f"ds_read_b128 {vr(QA(u),4)}, v{T0+2} offset:{u*K.QT_B}")
        e(f"ds_read_b64 {vr(QB(u),2)}, v{T0+3} offset:{u*K.QT_B}")
    K.adv(e)
    e("s_waitcnt lgkmcnt(0)")
    e(f"v_max_f32 v{k}, v{k}, v{k+1}")
    for sh in ("row_shr:1", "row_shr:2", "row_shr:4", "row_shr:8", "row_bcast:15 row_mask:0xa", "row_bcast:31 row_mask:0xc"):
        e("s_nop 1")
        if "mask" in sh: e(f"v_max_f32_dpp v{k}, v{k}, v{k} {sh} bank_mask:0xf")
        else: e(f"v_max_f32_dpp v{k}, v{k}, v{k} {sh} row_mask:0xf bank_mask:0xf")
    e("s_nop 1")
    e(f"v_readlane_b32 s24, v{k}, 63")
    e(f"v_cmp_gt_u32 vcc, 32, v2")
    e("s_nop 1")
    e(f"v_mov_b32 v{k}, s24")
    e(f"v_sqrt_f32 v{k}, v{k}")
    e("s_nop 0")
    e(f"v_mul_f32 v{k}, 0x3f808312, v{k}")
    for u in range(8):
        t = T0 + 2 + (u % 2)
        e(f"v_mul_f32 v{t}, v{k}, v{QB(u)}")
        e(f"v_add_u32 v{t}, 0xffff, v{t}")
        e(f"v_lshrrev_b32 v{t}, 16, v{t}")
        e(f"v_or_b32 v{t}, 0x8000, v{t}")
        e(f"v_cndmask_b32 v{QB(u)}, v{t}, v{QB(u)}, vcc")
    ST.mark(e)
    e("s_nop 1")
    K.m1(e, 0); K.m2(e, 0)
    e("s_mov_b32 s25, 8")
    e(".p2align 6")
    e.label(f"{name}_loop")
    for n in range(16):
        u = n % 8; p = n // 8
        if u == 0 and p == 1:
            e("s_bitcmp1_b32 s25, 0"); e(f"s_cbranch_scc1 {name}_nobar"); e("s_barrier"); e.label(f"{name}_nobar")
        if u == 7: e("s_waitcnt lgkmcnt(0)")
        K.m1(e, n+1); K.ex(e, n, 0, 4); K.pv(e, n-1, 1); K.ex(e, n, 4, 8); K.m2(e, n+1); K.cv(e, n, 0, 4)
        if u == 1: K.ldk(e, 1-p); K.ldv(e, 1-p)
        if u == 2: K.adv(e)
        K.ex(e, n, 8, 12); K.pv(e, n, 0); K.ex(e, n, 12, 16); K.cv(e, n, 4, 8)
    e("s_sub_u32 s25, s25, 1"); e("s_cmp_lg_u32 s25, 0"); e(f"s_cbranch_scc1 {name}_loop")
    ST.mark(e)
    e("s_nop 1")
    K.pv(e, 15, 1)
    e.label(f"{name}_epi")
    e("s_nop 15"); e("s_nop 3")
    wa = 104; OWN = 4; RD = 28
    e(f"s_mul_i32 s26, s3, {K.RING_W}")
    e(f"v_add_u32 v{wa}, s26, v{L16}")
    for w in range(4):
        e(f"s_cmp_lg_u32 s3, {w}"); e(f"s_cbranch_scc1 {name}_own{w}")
        for u in range(8):
            if u // 2 == w: continue
            for i in range(3): e(f"ds_write_b128 v{wa}, {vr(128+16*u+4*i,4)} offset:{(u*3+i)*1024}")
        for h in range(2):
            for r in range(12): e(f"v_mov_b32 v{OWN+12*h+r}, v{128+16*(2*w+h)+r}")
        e.label(f"{name}_own{w}")
    for d in range(1, 4):
        e(f"s_add_u32 s27, s3, {d}"); e("s_and_b32 s27, s27, 3")
        e(f"s_mul_i32 s27, s27, {K.RING_W}"); e(f"s_mul_i32 s28, s3, {2*3*1024}"); e("s_add_u32 s27, s27, s28")
        e(f"v_add_u32 v{104+d}, s27, v{L16}")
    e("v_and_b32 v3, 31, v2"); e("v_lshrrev_b32 v119, 5, v2")
    e("v_mul_u32_u24 v3, 320, v3"); e("v_lshl_add_u32 v3, v119, 3, v3")
    e(f"s_mul_i32 s27, s3, 80"); e(f"s_add_u32 s27, s27, {K.LDS_OUT}")
    oa = 108
    e(f"v_add_u32 v{oa}, s27, v3")
    e("s_waitcnt lgkmcnt(0)")
    e("s_barrier")
    for d in range(1, 4):
        for i in range(6): e(f"ds_read_b128 {vr(RD+24*(d-1)+4*i,4)}, v{104+d} offset:{i*1024}")
    for d in range(1, 4):
        e(f"s_waitcnt lgkmcnt({6*(3-d)})")
        for r in range(24): e(f"v_add_f32 v{OWN+r}, v{OWN+r}, v{RD+24*(d-1)+r}")
    for h in range(2):
        o = OWN + 12*h; l = 110+2*h
        e(f"v_mov_b32 v{l}, v{o+8}"); e(f"v_mov_b32 v{l+1}, v{o+8}")
    e("s_nop 1")
    for h in range(2): e(f"v_permlane32_swap_b32 v{110+2*h}, v{110+2*h+1}")
    e("s_nop 1")
    e("s_mov_b32 s27, 0x1f800000")
    e("v_cmp_nle_f32 vcc, s27, v111"); e("v_cmp_nle_f32 s[28:29], s27, v113"); e("s_nop 1"); e("s_or_b64 s[28:29], s[28:29], vcc")
    e("s_cmp_lg_u64 s[28:29], 0"); e("s_cselect_b32 s27, 1, 0"); e("s_cmp_eq_u32 s101, 0"); e("s_cselect_b32 s27, s27, 0")
    e(f"s_lshl_b32 s28, s3, 2"); e(f"s_add_u32 s28, s28, {L_FLAG}"); e("v_mov_b32 v114, s28"); e("v_mov_b32 v115, s27"); e("ds_write_b32 v114, v115")
    for h in range(2): e(f"v_rcp_f32 v{110+2*h}, v{110+2*h+1}")
    e("s_nop 0")
    for h in range(2):
        o = OWN + 12*h; l = 110+2*h
        for r in range(12): e(f"v_mul_f32 v{o+r}, v{o+r}, v{l}")
        for i in range(6): e(f"v_cvt_pk_bf16_f32 v{RD+6*h+i}, v{o+2*i}, v{o+2*i+1}")
        e(f"ds_write_b64 v{oa}, {vr(RD+6*h,2)} offset:{40*h}")
        e(f"ds_write_b64 v{oa}, {vr(RD+6*h+2,2)} offset:{40*h+16}")
    e("s_mov_b64 exec, s[38:39]")
    for h in range(2): e(f"ds_write_b64 v{oa}, {vr(RD+6*h+4,2)} offset:{40*h+32}")
    e("s_mov_b64 exec, -1")
    e("s_lshr_b32 s12, s2, 2"); e(f"s_mul_i32 s12, s12, {32*1280}"); e("s_and_b32 s13, s2, 3"); e("s_mul_i32 s13, s13, 320"); e("s_add_u32 s12, s12, s13")
    e(f"s_add_u32 s12, s12, {WS_OA}")
    for j in range(3):
        t = 110+3*j
        e(f"s_mul_i32 s27, s3, 192"); e(f"s_add_u32 s27, s27, {64*j}")
        e(f"v_add_u32 v{t}, s27, v2")
        e(f"v_mul_u32_u24 v{t+2}, 3277, v{t}"); e(f"v_lshrrev_b32 v{t+2}, 16, v{t+2}")
        e(f"v_mul_u32_u24 v{t+1}, 20, v{t+2}"); e(f"v_sub_u32 v{t+1}, v{t}, v{t+1}")
        e(f"v_mul_u32_u24 v{t+2}, 1280, v{t+2}"); e(f"v_lshl_add_u32 v{t+2}, v{t+1}, 4, v{t+2}")
        e(f"v_lshlrev_b32 v{t+1}, 4, v{t}"); e(f"v_add_u32 v{t+1}, {K.LDS_OUT}, v{t+1}")
        e(f"v_cmp_gt_u32 vcc, 640, v{t}"); e("v_mov_b32 v3, 0x7f000000"); e("s_nop 0"); e(f"v_cndmask_b32 v{t+2}, v3, v{t+2}, vcc")
    e(f"v_mov_b32 v119, {L_FLAG}")
    e("s_waitcnt lgkmcnt(0)")
    e("s_barrier")
    e("ds_read_b128 v[100:103], v119")
    for j in range(3): e(f"ds_read_b128 {vr(RD+4*j,4)}, v{110+3*j+1}")
    e("s_waitcnt lgkmcnt(3)")
    e("v_or3_b32 v100, v100, v101, v102"); e("v_or_b32 v100, v100, v103"); e("s_nop 1"); e("v_readfirstlane_b32 s26, v100")
    e("s_cmp_lg_u32 s26, 0"); e(f"s_cbranch_scc1 {name}_fb")
    e("s_waitcnt lgkmcnt(0)")
    for j in range(3): e(f"buffer_store_dwordx4 {vr(RD+4*j,4)}, v{110+3*j+2}, s[8:11], s12 offen")
    e("s_waitcnt vmcnt(0)")
    ST.mark(e)
    e("s_barrier")

def p2_fallback(e, name):
    K = k2r
    QA, QB, S, P, KV, L16, L8 = K.QA, K.QB, K.S, K.P, K.KV, K.L16, K.L8
    e.label(f"{name}_fb")
    e("s_mov_b32 s101, 1")
    e("s_waitcnt lgkmcnt(0)")
    e("s_lshr_b32 s12, s2, 2"); e("s_lshl_b32 s12, s12, 5"); e("s_and_b32 s13, s2, 3"); e("s_lshl_b32 s13, s13, 3"); e("s_add_u32 s12, s12, s13")
    e(f"s_mul_i32 s12, s12, {K.QT_B}"); e(f"s_add_u32 s12, s12, {WS_Q}")
    e("v_and_b32 v3, 31, v2"); e("v_lshlrev_b32 v3, 4, v3"); e("v_add_u32 v3, 1024, v3")
    for u in range(8):
        e(f"buffer_load_dwordx4 {vr(QA(u),4)}, v{L16}, s[8:11], s12 offen")
        e(f"buffer_load_dwordx2 {vr(QB(u),2)}, v3, s[8:11], s12 offen")
        e(f"s_add_u32 s12, s12, {K.QT_B}")
    e("s_waitcnt vmcnt(0)")
    e("v_cmp_gt_u32 vcc, 32, v2"); e("s_nop 1")
    for u in range(8):
        e(f"v_cndmask_b32 v{QB(u)}, 0, v{QB(u)}, vcc"); e(f"v_cndmask_b32 v{QB(u)+1}, 0, v{QB(u)+1}, vcc")
    MX = 110
    for u in range(8): e(f"v_mov_b32 v{MX+u}, 0xff800000")
    e(f"s_mul_i32 s20, s3, {16*K.TILE_B}"); e(f"s_add_u32 s20, s20, {WS_KV}"); e("s_mov_b32 s25, 16")
    e.label(f"{name}_fb1")
    ka, v0, v1, kb = KV(0)
    e(f"buffer_load_dwordx4 {vr(ka,4)}, v{L16}, s[8:11], s20 offen"); e(f"buffer_load_dwordx2 {vr(kb,2)}, v{L8}, s[8:11], s20 offen offset:3072")
    e("s_waitcnt vmcnt(0)")
    for u in range(8):
        e(f"v_mfma_f32_32x32x16_bf16 {vr(S[0],16)}, {vr(ka,4)}, {vr(QA(u),4)}, 0")
        e(f"v_mfma_f32_32x32x8_bf16 {vr(S[0],16)}, {vr(kb,2)}, {vr(QB(u),2)}, {vr(S[0],16)}")
        e("s_nop 15"); e("s_nop 7")
        for i in range(8): e(f"v_max3_f32 v{MX+u}, v{MX+u}, v{S[0]+2*i}, v{S[0]+2*i+1}")
        e("s_nop 7")
    e(f"s_add_u32 s20, s20, {K.TILE_B}"); e("s_sub_u32 s25, s25, 1"); e("s_cmp_lg_u32 s25, 0"); e(f"s_cbranch_scc1 {name}_fb1")
    for u in range(8):
        e(f"v_mov_b32 v3, v{MX+u}"); e("s_nop 1"); e(f"v_permlane32_swap_b32 v{MX+u}, v3"); e("s_nop 1"); e(f"v_max_f32 v{MX+u}, v{MX+u}, v3")
    e(f"s_mul_i32 s26, s3, {K.RING_W}"); e("v_lshlrev_b32 v3, 2, v2"); e("v_add_u32 v108, s26, v3")
    for u in range(8): e(f"ds_write_b32 v108, v{MX+u} offset:{256*u}")
    e("s_waitcnt lgkmcnt(0)")
    e("s_barrier")
    for w in range(4):
        e(f"v_add_u32 v109, {w*K.RING_W}, v3")
        for u in range(8): e(f"ds_read_b32 v{S[0]+8*w+u}, v109 offset:{256*u}")
    e("s_waitcnt lgkmcnt(0)")
    e("v_cmp_gt_u32 vcc, 32, v2")
    for u in range(8):
        a = S[0] + u
        e(f"v_max3_f32 v{a}, v{a}, v{a+8}, v{a+16}"); e(f"v_max_f32 v{a}, v{a}, v{a+24}")
        e(f"v_and_b32 v3, 0xffff0000, v{a}")
        e(f"v_sub_f32 v109, v{a}, v3")
        e(f"v_cvt_pk_bf16_f32 v109, v3, v109")
        e(f"v_xor_b32 v109, 0x80008000, v109")
        e(f"v_cndmask_b32 v{QB(u)}, v109, v{QB(u)}, vcc")
    for r in range(128): e(f"v_mov_b32 v{128+r}, 0")
    e(f"s_mul_i32 s20, s3, {16*K.TILE_B}"); e(f"s_add_u32 s20, s20, {WS_KV}"); e("s_mov_b32 s25, 16")
    e.label(f"{name}_fb2")
    e(f"buffer_load_dwordx4 {vr(ka,4)}, v{L16}, s[8:11], s20 offen"); e(f"buffer_load_dwordx2 {vr(kb,2)}, v{L8}, s[8:11], s20 offen offset:3072")
    e(f"buffer_load_dwordx4 {vr(v0,4)}, v{L16}, s[8:11], s20 offen offset:1024"); e(f"buffer_load_dwordx4 {vr(v1,4)}, v{L16}, s[8:11], s20 offen offset:2048")
    e("s_waitcnt vmcnt(0)")
    for u in range(8):
        e(f"v_mfma_f32_32x32x16_bf16 {vr(S[0],16)}, {vr(ka,4)}, {vr(QA(u),4)}, 0")
        e(f"v_mfma_f32_32x32x8_bf16 {vr(S[0],16)}, {vr(kb,2)}, {vr(QB(u),2)}, {vr(S[0],16)}")
        e("s_nop 15"); e("s_nop 7")
        for r in range(16): e(f"v_exp_f32 v{S[0]+r}, v{S[0]+r}")
        e("s_nop 1")
        for i in range(8): e(f"v_cvt_pk_bf16_f32 v{P+i}, v{S[0]+2*i}, v{S[0]+2*i+1}")
        e("s_nop 1")
        e(f"v_mfma_f32_32x32x16_bf16 {vr(128+16*u,16)}, {vr(v0,4)}, {vr(P,4)}, {vr(128+16*u,16)}")
        e(f"v_mfma_f32_32x32x16_bf16 {vr(128+16*u,16)}, {vr(v1,4)}, {vr(P+4,4)}, {vr(128+16*u,16)}")
        e("s_nop 7")
    e(f"s_add_u32 s20, s20, {K.TILE_B}"); e("s_sub_u32 s25, s25, 1"); e("s_cmp_lg_u32 s25, 0"); e(f"s_cbranch_scc1 {name}_fb2")
    e(f"s_branch {name}_epi")

def p3_ids(e):
    e("s_and_b32 s40, s2, 1")
    e("s_lshr_b32 s41, s2, 1"); e("s_and_b32 s41, s41, 3"); e("s_lshl_b32 s41, s41, 2")
    e("s_lshr_b32 s42, s2, 3"); e("s_and_b32 s43, s42, 3"); e("s_add_u32 s41, s41, s43")
    e("s_lshr_b32 s42, s42, 2")
    e("s_movk_i32 s44, 1280")

def p3_loader(e, G3, name, H):
    K = k3
    e(f"s_sub_u32 s3, s{SW}, 4")
    e("s_cmp_lg_u32 s3, 0"); e(f"s_cbranch_scc1 {name}_l0a")
    e("s_lshr_b32 s29, s2, 4"); e("s_lshl_b32 s29, s29, 7"); e(f"s_add_u32 s29, s29, {CNT_OA}"); e("v_mov_b32 v5, s29")
    arrive(e, "s[8:11]", 5)
    e.label(f"{name}_l0a")
    p3_ids(e)
    G3.loader_setup(e, 44)
    e("s_lshr_b32 s45, s3, 1"); e("s_and_b32 s46, s3, 1")
    e("s_lshl_b32 s20, s41, 7"); e("s_lshl_b32 s49, s46, 6"); e("s_add_u32 s20, s20, s49"); e("s_mul_i32 s20, s20, 1280"); e("s_mul_i32 s49, s45, 640"); e("s_add_u32 s20, s20, s49")
    e(f"s_mov_b32 s49, {WS_OB}"); e("s_cmp_eq_u32 s40, 0"); e(f"s_cselect_b32 s49, {WS_OA}, s49"); e("s_add_u32 s20, s20, s49")
    e("s_mul_i32 s21, s45, 320"); e("s_lshl_b32 s49, s46, 5"); e("s_add_u32 s21, s21, s49"); e("s_mul_i32 s21, s21, 160")
    e("s_lshl_b32 s49, s40, 3"); e("s_add_u32 s49, s49, s42"); e("s_mul_i32 s49, s49, 102400"); e("s_add_u32 s21, s21, s49"); e(f"s_add_u32 s21, s21, {WS_WOI}")
    e(f"s_mov_b32 s22, {64*160}")
    e("s_lshl_b32 s24, s45, 14"); e("s_lshl_b32 s49, s46, 13"); e("s_add_u32 s24, s24, s49")
    e("s_mul_i32 s25, s45, 10240"); e("s_mul_i32 s49, s46, 5120"); e("s_add_u32 s25, s25, s49"); e(f"s_add_u32 s25, s25, {K.W_OFF}")
    e("s_add_u32 s23, s42, s43"); e("s_mul_i32 s49, s23, 52"); e("s_lshr_b32 s49, s49, 8"); e("s_mul_i32 s49, s49, 5"); e("s_sub_u32 s23, s23, s49")
    make_srd(e, 12, 4, WS_BYTES)
    STG = K.STG_B
    def kc(i, dst):
        e(f"s_add_u32 s{dst}, s23, {i}"); e(f"s_cmp_ge_u32 s{dst}, 5"); e(f"s_cselect_b32 s49, 5, 0"); e(f"s_sub_u32 s{dst}, s{dst}, s49")
    def wpart(i):
        kc(i, 27); e("s_mul_i32 s29, s27, s22"); e("s_add_u32 s29, s29, s21"); e(f"s_add_u32 s31, s25, {(i % 3)*STG}")
        G3.dma_wlin(e, 29, 31, "s[12:15]")
    def xpart(i):
        kc(i, 27); e("s_lshl_b32 s28, s27, 7"); e("s_add_u32 s28, s28, s20"); e(f"s_add_u32 s31, s24, {(i % 3)*STG}")
        e("s_mov_b32 m0, s31")
        for j in range(8):
            e("s_nop 0" if j == 0 else "s_add_u32 m0, m0, 1024")
            if j: e("s_nop 0")
            e(f"buffer_load_dwordx4 v{G3.VOX+j}, s[8:11], s28 offen lds")
    e("s_lshl_b32 s30, s40, 3"); e("s_add_u32 s30, s30, s42"); e("s_lshl_b32 s30, s30, 7"); e(f"s_add_u32 s30, s30, {CNT_W}"); e("v_mov_b32 v5, s30")
    poll(e, f"{name}_pw", "s[8:11]", 5, 64)
    for i in range(3): wpart(i)
    e("s_cmp_lg_u32 s3, 0"); e(f"s_cbranch_scc1 {name}_l0b")
    e(f"s_mov_b32 s29, {CNT_OB}"); e("s_cmp_eq_u32 s40, 0"); e(f"s_cselect_b32 s29, {CNT_OA}, s29"); e("s_lshl_b32 s49, s41, 7"); e("s_add_u32 s29, s29, s49"); e("v_mov_b32 v5, s29")
    e("s_cmp_eq_u32 s40, 0"); e(f"s_cbranch_scc0 {name}_l0c")
    poll(e, f"{name}_po", "s[8:11]", 5, 16)
    e(f"s_branch {name}_l0b")
    e.label(f"{name}_l0c")
    poll(e, f"{name}_pp", "s[8:11]", 5, 64)
    e.label(f"{name}_l0b")
    e("s_barrier")
    xpart(0)
    e("s_waitcnt vmcnt(0)")
    e("s_barrier")
    xpart(1); xpart(2)
    e("s_waitcnt vmcnt(8)"); e("s_barrier"); xpart(3); wpart(3)
    e("s_waitcnt vmcnt(13)"); e("s_barrier"); xpart(4); wpart(4)
    e("s_waitcnt vmcnt(13)"); e("s_barrier")
    e("s_waitcnt vmcnt(0)"); e("s_barrier")
    e("s_barrier")
    if H.en:
        H.flush(e, 40, SW, "s[8:11]")
    e("s_endpgm")

def p3_compute(e, G3, name, ST):
    K = k3
    e(f"s_mov_b32 s3, s{SW}")
    p3_ids(e)
    e("s_and_b32 s49, s3, 1"); e("s_lshl_b32 s50, s49, 14"); e("s_lshr_b32 s51, s3, 1"); e("s_lshl_b32 s51, s51, 13"); e("s_add_u32 s50, s50, s51")
    e("s_mul_i32 s51, s49, 10240"); e(f"s_add_u32 s51, s51, {K.W_OFF}")
    G3.compute_setup(e, 50, 51)
    e("s_barrier")
    G3.compute_main(e, name + "_p3", ST)
    ST.mark(e)
    t = E(); t.sf = ""
    k3.epilogue(t, G3, name, 90)
    e.l += t.l

def gen(e, name):
    G = Gemm(k1.STG_B, k1.NSTG, 10, 4); G.XROLE = 0
    G3 = Gemm(k3.STG_B, k3.NSTG, 5, 8, pf=1); G3.WLIN = True
    S1 = S2 = S3 = RStamps(STEN); H = RStamps(STEN); S1.main = True
    k1.ST.en = False; k1.DIAG = False
    kernel_header(e, name)
    e("s_cmp_ge_u32 s2, 256")
    e(f"s_cbranch_scc1 {name}_end")
    e("s_load_dwordx4 s[32:35], s[0:1], 0")
    e("s_load_dwordx4 s[36:39], s[0:1], 40")
    e("s_load_dwordx4 s[84:87], s[0:1], 16")
    e("s_load_dwordx2 s[88:89], s[0:1], 56")
    e("s_load_dwordx2 s[4:5], s[0:1], 88")
    e("s_load_dwordx2 s[6:7], s[0:1], 80")
    e("s_load_dwordx2 s[90:91], s[0:1], 72")
    e("s_load_dwordx2 s[92:93], s[0:1], 32")
    e("s_load_dwordx2 s[94:95], s[0:1], 64")
    S1.mark(e)
    e("v_lshrrev_b32 v2, 6, v0"); e("v_and_b32 v1, 63, v0")
    p1_ids(e)
    e(f"v_readfirstlane_b32 s{SW}, v2")
    e("s_nop 3")
    e(f"s_cmp_lt_u32 s{SW}, 4"); e(f"s_cbranch_scc1 {name}_compute")
    e.sf = WT
    p1_loader(e, G, name)
    p2_helper(e, name, H)
    p2_helper_rest(e, name)
    p3_loader(e, G3, name, H)
    e.label(f"{name}_compute")
    p1_compute(e, G, name, S1)
    S2.mark(e)
    p2_compute(e, name, S2)
    S3.mark(e)
    p3_compute(e, G3, name, S3)
    S3.mark(e)
    if STEN:
        make_srd(e, 16, 4, WS_BYTES)
        S3.flush(e, 174, SW, "s[16:19]")
    e("s_endpgm")
    p1_other_roles(e, G, name)
    p2_fallback(e, name)
    e.label(f"{name}_end")
    e("s_endpgm")
    return 256, LDS_MEGA

def build(path):
    hdr = open("cdna_kernels/%s.s.ref" % NAME).read().split("\n")
    top = [l for l in hdr if l.startswith(";") and "@launch" not in l]
    name = NAME + "_kernel"
    e = E()
    nv, lds = gen(e, name)
    out = top + [f"; @launch grid=(256,1,1) block=(512,1,1) lds={lds}", '.amdgcn_target "amdgcn-amd-amdhsa--gfx950"', ".text", e.text(), '.section .rodata,"a"', kernel_desc(name, nv)]
    open(path, "w").write("\n".join(out))
if __name__ == "__main__":
    import sys
    build(sys.argv[1] if len(sys.argv) > 1 else "mega.s")
```

```python
from common import *
from gemm2 import Gemm
from stamp import RStamps
import k1, k2r, k3, os
VAR = os.environ.get("VAR", "")
STEN = os.environ.get("STAMP") == "1"
LDS_MEGA = max(k1.LDS_K1, k2r.LDS_K2, k3.LDS_K3)
SW = 100
DBG_A, DBG_B = 0, 128
CNT_KV, CNT_OA, CNT_OB, CNT_W, CNT_B = WS_CNT, WS_CNT + 0x400, WS_CNT + 0xC00, WS_CNT + 0x1400, WS_CNT + 0x1C00
L_KM = k2r.LDS_B + 19968
L_FLAG = k2r.LDS_Q + 10240
WT = os.environ.get("WT", "sc0 sc1")

def poll(e, lab, srd, voff, target, tmpv=4):
    e("s_mov_b32 s30, 0")
    e("s_mov_b64 exec, 1")
    e.label(lab)
    e(f"buffer_load_dword v{tmpv}, v{voff}, {srd}, 0 offen {os.environ.get('POLLSC', 'sc1')}")
    e("s_waitcnt vmcnt(0)")
    e(f"v_readfirstlane_b32 s31, v{tmpv}")
    e("s_add_u32 s30, s30, 1")
    e(f"s_cmp_ge_u32 s31, {target}"); e(f"s_cbranch_scc1 {lab}_d")
    e("s_cmp_gt_u32 s30, 1000000"); e(f"s_cbranch_scc1 {lab}_d")
    e("s_sleep 1"); e(f"s_branch {lab}")
    e.label(f"{lab}_d")
    e("s_mov_b64 exec, -1")

def pollflags(e, lab, minval):
    e("v_lshlrev_b32 v46, 2, v1")
    e("s_mov_b32 s30, 0")
    e.label(lab)
    e("buffer_load_dword v47, v46, s[44:47], 0 offen sc1")
    e("s_waitcnt vmcnt(0)")
    e(f"v_cmp_le_u32 vcc, {minval}, v47")
    e("s_add_u32 s30, s30, 1")
    e("s_cmp_eq_u64 vcc, -1"); e(f"s_cbranch_scc1 {lab}_d")
    e("s_cmp_gt_u32 s30, 1000000"); e(f"s_cbranch_scc1 {lab}_d")
    e(f"s_sleep {os.environ.get('PSLP', '3')}"); e(f"s_branch {lab}")
    e.label(f"{lab}_d")

def arrive(e, srd, voff, tmpv=4):
    e("s_mov_b64 exec, 1"); e(f"v_mov_b32 v{tmpv}, 1")
    e(f"buffer_atomic_add v{tmpv}, v{voff}, {srd}, 0 offen sc1")
    e("s_mov_b64 exec, -1")

def p1_ids(e):
    if os.environ.get("MAP", "old") == "old":
        e("s_and_b32 s40, s2, 3")
        e("s_lshr_b32 s41, s2, 2"); e("s_and_b32 s41, s41, 1")
        e("s_lshr_b32 s42, s2, 3")
        e("s_and_b32 s43, s42, 7"); e("s_lshl_b32 s41, s41, 3"); e("s_add_u32 s41, s41, s43")
        e("s_lshr_b32 s42, s42, 3")
        e("s_mul_i32 s45, s42, 3"); e("s_add_u32 s43, s43, s45"); e("s_cmp_ge_u32 s43, 10"); e("s_cselect_b32 s45, 10, 0"); e("s_sub_u32 s43, s43, s45")
    else:
        e("s_and_b32 s45, s2, 1")
        e("s_lshr_b32 s41, s2, 1"); e("s_and_b32 s41, s41, 3"); e("s_lshl_b32 s41, s41, 2")
        e("s_lshr_b32 s46, s2, 3"); e("s_and_b32 s47, s46, 3"); e("s_add_u32 s41, s41, s47")
        e("s_lshr_b32 s46, s46, 2")
        e("s_lshr_b32 s40, s46, 1")
        e("s_add_u32 s48, s45, 2"); e("s_cmp_ge_u32 s40, 2"); e("s_cselect_b32 s40, s48, s40")
        e("s_lshl_b32 s48, s45, 1"); e("s_and_b32 s42, s46, 1"); e("s_add_u32 s42, s42, s48")
        e("s_sub_u32 s48, s46, 4"); e("s_cmp_ge_u32 s46, 4"); e("s_cselect_b32 s42, s48, s42")
        e("s_mul_i32 s43, s47, 5"); e("s_lshr_b32 s43, s43, 1"); e("s_add_u32 s43, s43, s46")
        e("s_cmp_ge_u32 s43, 10"); e("s_cselect_b32 s48, 10, 0"); e("s_sub_u32 s43, s43, s48")
    e("s_cmp_eq_u32 s40, 0"); e("s_movk_i32 s44, 3840"); e("s_cselect_b32 s44, 1280, s44")

def p1_loader(e, G, name):
    K = k1
    e(f"s_sub_u32 s3, s{SW}, 4")
    G.loader_setup(e, 44)
    e(f"v_lshlrev_b32 v{G.LT+8}, 4, v1")
    e("s_lshr_b32 s45, s3, 1")
    e("s_mul_i32 s46, s42, 160"); e("s_mul_i32 s47, s45, 80"); e("s_add_u32 s46, s46, s47")
    e("s_sub_u32 s47, s40, 2"); e("s_lshl_b32 s47, s47, 2"); e("s_add_u32 s47, s47, s42"); e("s_mov_b32 s59, s47"); e("s_mul_i32 s47, s47, 80")
    e("s_mul_i32 s48, s45, 640"); e("s_add_u32 s47, s47, s48"); e("s_add_u32 s47, s47, 640")
    e("s_cmp_ge_u32 s40, 2"); e("s_cselect_b32 s46, s47, s46")
    e("s_lshl_b32 s20, s41, 7"); e("s_lshl_b32 s49, s3, 5"); e("s_add_u32 s20, s20, s49"); e("s_mul_i32 s20, s20, 1280")
    e("s_and_b32 s49, s3, 1"); e("s_lshl_b32 s49, s49, 5"); e("s_mul_i32 s21, s49, s44"); e("s_lshl_b32 s49, s46, 1"); e("s_add_u32 s21, s21, s49")
    e("s_lshl_b32 s22, s44, 6")
    e("s_lshl_b32 s24, s3, 12")
    e("s_lshr_b32 s49, s3, 1"); e("s_mul_i32 s25, s49, 10240"); e("s_and_b32 s49, s3, 1"); e("s_mul_i32 s49, s49, 5120")
    e("s_add_u32 s25, s25, s49"); e(f"s_add_u32 s25, s25, {K.W_OFF}")
    e("s_mov_b32 s23, s43")
    e("s_mul_i32 s57, s42, 6400"); e("s_mul_i32 s58, s59, 3200"); e("s_cmp_ge_u32 s40, 2"); e("s_cselect_b32 s57, s58, s57")
    e("s_lshl_b32 s58, s3, 11"); e("s_add_u32 s57, s57, s58"); e(f"s_add_u32 s58, s58, {K.L_PHI}")
    e("s_waitcnt lgkmcnt(0)")
    K.xw_srds(e)
    make_srd(e, 16, 88, 25600)
    e("s_mov_b32 m0, s58"); e("s_nop 0")
    e(f"buffer_load_dwordx4 v{G.LT+8}, s[16:19], s57 offen lds")
    e(f"buffer_load_dwordx4 v{G.LT+8}, s[16:19], s57 offen offset:1024 lds")
    e("s_or_b32 s57, s40, s3"); e("s_cmp_lg_u32 s57, 0"); e(f"s_cbranch_scc1 {name}_nwt")
    make_srd(e, 48, 84, 25600); make_srd(e, 52, 86, 25600)
    e("s_lshr_b32 s57, s2, 3"); e("s_and_b32 s57, s57, 7"); e("s_mul_i32 s57, s57, 3200")
    e("v_lshlrev_b32 v44, 7, v1"); e("v_mov_b32 v45, 0x7f000000"); e("v_cmp_gt_u32 vcc, 25, v1"); e("s_nop 1"); e("v_cndmask_b32 v44, v45, v44, vcc")
    e("buffer_load_dword v46, v44, s[48:51], s57 offen"); e("buffer_load_dword v47, v44, s[52:55], s57 offen")
    e.label(f"{name}_nwt")
    def tail(e, c, what):
        if c in (6, 7):
            lab = f"{name}_tx{c}"
            e("s_cmp_lg_u32 s40, 0"); e(f"s_cbranch_scc1 {lab}")
            make_srd(e, 16, 84 if c == 6 else 86, 25600)
            e("s_mul_i32 s57, s3, 7168"); e(f"s_add_u32 s58, s57, {K.L_WK if c == 6 else K.L_WV}")
            for j in range(7):
                e("s_mov_b32 m0, s58"); e("s_add_u32 s58, s58, 1024")
                e(f"buffer_load_dwordx4 v{G.LT+8}, s[16:19], s57 offen lds"); e("s_add_u32 s57, s57, 1024")
            if c == 7: K.kv_x_loads(e, G, 196)
            e.label(lab)
    tail.extra = lambda c: {7: 7, 8: 24}.get(c, 0)
    G.loader_main(e, name + "_p1", 10, tail)
    e("s_waitcnt vmcnt(0)")
    e("s_barrier")
    e("s_cmp_lg_u32 s40, 0"); e(f"s_cbranch_scc1 {name}_lnkv")
    make_srd(e, 16, 4, WS_BYTES)
    e(f"s_mov_b32 s99, {K.L_WK}"); e(f"s_mov_b32 s97, {K.L_WV}")
    K.kv_part(e, G, name, 196, [96, 112, 128, 144, 236], 48, 0, 96)
    e("s_barrier")
    e("s_waitcnt vmcnt(0)")
    e("s_barrier")
    e(f"s_branch {name}_lp2")
    e.label(f"{name}_lnkv")
    for i in range(3): e("s_barrier")
    e.label(f"{name}_lp2")

def p1_compute(e, G, name, ST):
    K = k1
    e(f"s_mov_b32 s3, s{SW}")
    e("s_lshr_b32 s49, s3, 1"); e("s_lshl_b32 s50, s49, 13")
    e("s_and_b32 s49, s3, 1"); e("s_mul_i32 s51, s49, 10240"); e(f"s_add_u32 s51, s51, {K.W_OFF}")
    e("s_waitcnt lgkmcnt(0)")
    make_srd(e, 16, 4, WS_BYTES)
    e(f"s_or_b32 s52, s2, s3"); e("s_cmp_lg_u32 s52, 0"); e(f"s_cbranch_scc1 {name}_nz")
    e("v_lshlrev_b32 v184, 4, v1")
    for r in range(4): e(f"v_mov_b32 v{186+r}, 0")
    e(f"s_mov_b32 s52, {WS_CNT}")
    for j in range(8):
        e(f"buffer_store_dwordx4 v[186:189], v184, s[16:19], s52 offen"); e("s_add_u32 s52, s52, 1024")
    e.label(f"{name}_nz")
    G.compute_setup(e, 50, 51)
    e(f"v_lshlrev_b32 v{G.T}, 4, v1"); e(f"v_add_u32 v{G.T}, {K.L_ZERO}, v{G.T}")
    for r in range(4): e(f"v_mov_b32 v{96+r}, 0")
    e(f"ds_write_b128 v{G.T}, v[96:99]")
    e("s_waitcnt lgkmcnt(0)")
    def pre(e):
        e("s_cmp_eq_u32 s40, 0"); e(f"s_cbranch_scc1 {name}_prej")
        e("s_and_b32 s50, s3, 1"); e("s_lshl_b32 s50, s50, 2"); e("s_cmp_ge_u32 s40, 2"); e("s_cselect_b32 s50, 0, s50"); e(f"s_mov_b32 s99, {K.L_PHI}")
        K.phi_addr(e, G, G.T+6, 50)
        K.phi_frags(e, G.T+6, K.FRB)
        e.label(f"{name}_prej")
    G.compute_main(e, name + "_p1", ST, pre)
    ST.mark(e)
    e("s_cmp_eq_u32 s40, 0"); e(f"s_cbranch_scc1 {name}_ra")
    e("s_barrier")
    e("s_cmp_eq_u32 s40, 1"); e(f"s_cbranch_scc1 {name}_rbq")
    K.role_bkv(e, G, name)
    e.label(f"{name}_fin")
    ST.mark(e)
    e("s_barrier")

def p1_other_roles(e, G, name):
    K = k1
    e.label(f"{name}_ra")
    K.q_part(e, G, lambda e: e("s_barrier"))
    e("s_barrier"); e("s_barrier")
    e("s_waitcnt vmcnt(0)")
    e(f"s_branch {name}_fin")
    e.label(f"{name}_rbq")
    K.role_bq(e, G, name)
    e("s_barrier"); e("s_barrier")
    e(f"s_branch {name}_fin")

def p2_common(e):
    K = k2r
    e("v_mov_b32 v2, v1")
    e("s_mov_b32 s38, -1"); e("s_mov_b32 s39, 0")
    e(f"v_lshlrev_b32 v{K.L16}, 4, v2"); e(f"v_lshlrev_b32 v{K.L8}, 3, v2")
    make_srd(e, 8, 4, WS_BYTES)

def p2_helper(e, name, H):
    K = k2r; L16, L8, TILE_B = K.L16, K.L8, K.TILE_B
    L_KVF, L_BZ, L_OB = K.L_KVF, K.L_BZ, K.L_OB
    H.mark(e)
    e(f"s_sub_u32 s3, s{SW}, 4")
    p2_common(e)
    e("s_setprio 2")
    def tiles(n):
        for j in range(n):
            K.dma_tile(e, 20, 21)
            e(f"s_add_u32 s20, s20, {TILE_B}"); e(f"s_add_u32 s21, s21, {TILE_B}")
    make_srd(e, 44, 6, 256)
    e("s_cmp_lg_u32 s3, 0"); e(f"s_cbranch_scc1 {name}_h0j")
    e("s_cmp_lg_u32 s40, 0"); e(f"s_cbranch_scc1 {name}_nf2")
    if os.environ.get("SYNC1") == "cnt":
        e("v_mov_b32 v5, 0"); arrive(e, "s[44:47]", 5)
    else:
        e("s_lshl_b32 s26, s41, 2"); e("s_add_u32 s26, s26, s42"); e("s_lshl_b32 s26, s26, 2")
        e("s_mov_b64 exec, 1"); e("v_mov_b32 v44, s26"); e("v_mov_b32 v45, 1")
        e("buffer_store_dword v45, v44, s[44:47], 0 offen")
        e("s_mov_b64 exec, -1")
    e.label(f"{name}_nf2")
    if os.environ.get("SYNC1") == "cnt":
        e(f"v_mov_b32 v5, 0")
        poll(e, f"{name}_pa", "s[44:47]", 5, 64)
    else:
        pollflags(e, f"{name}_pa", 1)
    e.label(f"{name}_h0j")
    H.mark(e)
    e("s_barrier")
    H.mark(e)
    e(f"s_mul_i32 s20, s3, {16*TILE_B}"); e(f"s_add_u32 s20, s20, {WS_KV}")
    e(f"s_mul_i32 s22, s3, {K.RING_W}"); e("s_mov_b32 s21, s22")
    tiles(1)
    e("s_lshr_b32 s12, s2, 2"); e("s_lshl_b32 s12, s12, 5"); e("s_and_b32 s13, s2, 3"); e("s_lshl_b32 s13, s13, 3"); e("s_add_u32 s12, s12, s13")
    e(f"s_mul_i32 s12, s12, {K.QT_B}"); e(f"s_add_u32 s12, s12, {WS_Q}"); e("s_mul_i32 s13, s3, 3072"); e("s_add_u32 s12, s12, s13")
    e(f"s_add_u32 s13, s13, {K.LDS_Q}"); e("s_mov_b32 m0, s13"); e("s_nop 0")
    for o in (0, 1024, 2048): e(f"buffer_load_dwordx4 v{L16}, s[8:11], s12 offen offset:{o} lds")
    e(f"s_mov_b32 m0, {L_KM}"); e(f"s_mov_b32 s12, {WS_KMAX}"); e("s_mov_b64 exec, s[38:39]")
    e(f"buffer_load_dwordx4 v{L16}, s[8:11], s12 offen lds"); e("s_mov_b64 exec, -1")
    tiles(1)
    H.mark(e)
    e("s_waitcnt vmcnt(0)")
    H.mark(e)
    e("s_barrier")
    H.mark(e)
    e("s_mov_b32 s25, 6")
    e.label(f"{name}_hl0")
    tiles(1)
    e("s_sub_u32 s25, s25, 1"); e("s_cmp_lg_u32 s25, 0"); e(f"s_cbranch_scc1 {name}_hl0")
    e("s_cmp_lg_u32 s3, 0"); e(f"s_cbranch_scc1 {name}_h0b")
    e("s_cmp_eq_u32 s40, 0"); e(f"s_cbranch_scc1 {name}_h0b")
    e(f"v_mov_b32 v5, {CNT_B}")
    arrive(e, "s[8:11]", 5)
    e.label(f"{name}_h0b")
    for r in range(4): e(f"v_mov_b32 v{4+r}, 0")
    e(f"s_lshl_b32 s29, s3, 9"); e(f"s_add_u32 s29, s29, {L_BZ}"); e(f"v_add_u32 v40, s29, v{L8}"); e("ds_write_b64 v40, v[4:5]")
    e("s_waitcnt vmcnt(8) lgkmcnt(0)")
    e("s_barrier")
    e("s_mov_b32 s21, s22"); tiles(2)
    e(f"v_mov_b32 v5, {CNT_B}")
    poll(e, f"{name}_pb", "s[8:11]", 5, 192)
    e("s_and_b32 s26, s2, 7"); e("s_lshr_b32 s27, s2, 3")
    e(f"s_mul_i32 s28, s26, {16*15360}"); e("s_mul_i32 s29, s27, 480"); e("s_add_u32 s28, s28, s29"); e("s_mul_i32 s29, s3, 120"); e("s_add_u32 s28, s28, s29")
    e(f"s_add_u32 s28, s28, {WS_KVP}")
    e("v_mov_b32 v3, 0x7f000000"); e("v_cmp_gt_u32 vcc, 15, v2"); e("s_nop 1"); e(f"v_cndmask_b32 v3, v3, v{L8}, vcc")
    for p in range(16):
        e(f"buffer_load_dwordx2 v[{8+2*p}:{9+2*p}], v3, s[8:11], s28 offen")
        if p < 15: e("s_add_u32 s28, s28, 15360")
    e("s_lshl_b32 s28, s27, 2"); e("s_add_u32 s28, s28, s3"); e("s_lshl_b32 s28, s28, 3"); e("s_add_u32 s28, s28, s26"); e("s_mul_i32 s28, s28, 2560")
    e(f"s_add_u32 s28, s28, {WS_PQ}")
    e(f"buffer_load_dwordx4 v[48:51], v{L16}, s[8:11], s28 offen")
    e(f"buffer_load_dwordx4 v[52:55], v{L16}, s[8:11], s28 offen offset:1024")
    e(f"buffer_load_dwordx2 v[56:57], v{L8}, s[8:11], s28 offen offset:2048")
    e("s_waitcnt vmcnt(3)")
    for p in range(1, 16):
        e(f"v_add_f32 v8, v8, v{8+2*p}"); e(f"v_add_f32 v9, v9, v{9+2*p}")
    e("v_cvt_pk_bf16_f32 v8, v8, v9")
    e("s_mul_i32 s28, s26, 7680"); e("s_mul_i32 s29, s27, 240"); e("s_add_u32 s28, s28, s29"); e("s_mul_i32 s29, s3, 60"); e("s_add_u32 s28, s28, s29")
    e(f"s_add_u32 s28, s28, {WS_KVF}")
    e("v_mov_b32 v3, 0x7f000000"); e("v_lshlrev_b32 v4, 2, v2"); e("v_cmp_gt_u32 vcc, 15, v2"); e("s_nop 1"); e("v_cndmask_b32 v3, v3, v4, vcc")
    e("buffer_store_dword v8, v3, s[8:11], s28 offen")
    e("s_waitcnt vmcnt(0)")
    e("s_barrier")

def p2_helper_rest(e, name):
    t = E(); t.sf = e.sf
    k2r.helper(t, name)
    txt = "\n".join(t.l)
    i0 = txt.index("s_barrier", txt.index("buffer_store_dword v8, v3, s[8:11], s28 offen")) + len("s_barrier")
    i1 = txt.index("s_barrier", txt.index("s_waitcnt vmcnt(3)", i0))
    e.l += (txt[i0:i1] + "s_barrier").split("\n")
    e("s_waitcnt vmcnt(0)")
    e("s_lshr_b32 s29, s2, 4"); e("s_lshl_b32 s29, s29, 7"); e(f"s_add_u32 s29, s29, {CNT_OB}"); e("v_mov_b32 v5, s29")
    arrive(e, "s[8:11]", 5)
    e("s_and_b32 s26, s2, 1"); e("s_lshr_b32 s27, s2, 1"); e("s_and_b32 s27, s27, 7"); e("s_lshr_b32 s28, s2, 4")
    e("s_cmp_eq_u32 s26, 0"); e("s_cselect_b32 s48, s92, s94"); e("s_cselect_b32 s49, s93, s95"); e("s_and_b32 s49, s49, 0xffff"); e("s_mov_b32 s50, 819200"); e("s_mov_b32 s51, 0x20000")
    e("s_mul_i32 s28, s28, 400"); e("s_mul_i32 s29, s3, 100"); e("s_add_u32 s28, s28, s29")
    e("s_mul_i32 s29, s27, 160")
    e("s_lshl_b32 s30, s26, 3"); e("s_add_u32 s30, s30, s27"); e("s_mul_i32 s30, s30, 102400"); e(f"s_add_u32 s30, s30, {WS_WOI}")
    for j in range(2):
        t_ = 8 + 8*j
        e(f"v_add_u32 v{t_}, s28, v2")
        if j: e(f"v_add_u32 v{t_}, 64, v{t_}")
        e(f"v_mul_u32_u24 v{t_+1}, 6554, v{t_}"); e(f"v_lshrrev_b32 v{t_+1}, 16, v{t_+1}")
        e(f"v_mul_u32_u24 v{t_+2}, 10, v{t_+1}"); e(f"v_sub_u32 v{t_+2}, v{t_}, v{t_+2}")
        e(f"v_and_b32 v{t_+3}, 0xfffffff3, v{t_+1}"); e(f"v_and_b32 v{t_+4}, 4, v{t_+1}"); e(f"v_lshlrev_b32 v{t_+4}, 1, v{t_+4}")
        e(f"v_and_b32 v{t_+5}, 8, v{t_+1}"); e(f"v_lshrrev_b32 v{t_+5}, 1, v{t_+5}"); e(f"v_or3_b32 v{t_+3}, v{t_+3}, v{t_+4}, v{t_+5}")
        e(f"v_mul_u32_u24 v{t_+3}, 1280, v{t_+3}"); e(f"v_lshl_add_u32 v{t_+3}, v{t_+2}, 4, v{t_+3}")
        e(f"v_lshlrev_b32 v{t_}, 4, v{t_}")
        if j:
            e("v_cmp_gt_u32 vcc, 36, v2"); e("v_mov_b32 v7, 0x7f000000"); e("s_nop 0")
            e(f"v_cndmask_b32 v{t_+3}, v7, v{t_+3}, vcc"); e(f"v_cndmask_b32 v{t_}, v7, v{t_}, vcc")
        e(f"buffer_load_dwordx4 v[{24+4*j}:{27+4*j}], v{t_+3}, s[48:51], s29 offen")
    e("s_waitcnt vmcnt(0)")
    for j in range(2): e(f"buffer_store_dwordx4 v[{24+4*j}:{27+4*j}], v{8+8*j}, s[8:11], s30 offen")
    e("s_waitcnt vmcnt(0)")
    e("s_lshl_b32 s30, s26, 3"); e("s_add_u32 s30, s30, s27"); e("s_lshl_b32 s30, s30, 7"); e(f"s_add_u32 s30, s30, {CNT_W}"); e("v_mov_b32 v5, s30")
    arrive(e, "s[8:11]", 5)
    e.label(f"{name}_he1")
    e("s_barrier")
    e("s_barrier")
    e(f"v_mov_b32 v4, {L_FLAG}"); e("ds_read_b128 v[8:11], v4"); e("s_waitcnt lgkmcnt(0)")
    e("v_or3_b32 v8, v8, v9, v10"); e("v_or_b32 v8, v8, v11"); e("s_nop 1"); e("v_readfirstlane_b32 s26, v8")
    e("s_cmp_eq_u32 s26, 0"); e(f"s_cbranch_scc1 {name}_hf2")
    e("s_barrier")
    e(f"s_branch {name}_he1")
    e.label(f"{name}_hf2")
    e("s_barrier")
    e("s_setprio 0")

def p2_compute(e, name, ST):
    K = k2r
    QA, QB, S, P, KV, L16, L8, A16, A8, T0 = K.QA, K.QB, K.S, K.P, K.KV, K.L16, K.L8, K.A16, K.A8, K.T0
    e(f"s_mov_b32 s3, s{SW}")
    p2_common(e)
    e("s_mov_b32 s101, 0")
    e(f"s_mul_i32 s22, s3, {K.RING_W}"); e(f"s_add_u32 s21, s22, {K.RING_W}"); e("s_mov_b32 s20, s22")
    e(f"v_add_u32 v{A16}, s20, v{L16}"); e(f"v_add_u32 v{A8}, s20, v{L8}")
    for r in range(128): e(f"v_mov_b32 v{128+r}, 0")
    for r in range(8): e(f"v_mov_b32 v{P+r}, 0")
    for r in range(4): e(f"v_mov_b32 v{KV(1)[2]+r}, 0")
    e(f"v_add_u32 v{T0+2}, {K.LDS_Q}, v{L16}")
    e(f"v_and_b32 v{T0+3}, 31, v2"); e(f"v_lshlrev_b32 v{T0+3}, 4, v{T0+3}"); e("v_lshrrev_b32 v3, 5, v2"); e(f"v_lshl_add_u32 v{T0+3}, v3, 3, v{T0+3}"); e(f"v_add_u32 v{T0+3}, {K.LDS_Q+1024}, v{T0+3}")
    e(f"v_add_u32 v3, {L_KM}, v{L8}")
    e("s_barrier")
    e("s_waitcnt vmcnt(0)")
    e("s_barrier")
    k = T0
    e(f"ds_read_b64 v[{T0}:{T0+1}], v3")
    K.ldk(e, 0); K.ldv(e, 0)
    for u in range(8):
        e(f"ds_read_b128 {vr(QA(u),4)}, v{T0+2} offset:{u*K.QT_B}")
        e(f"ds_read_b64 {vr(QB(u),2)}, v{T0+3} offset:{u*K.QT_B}")
    K.adv(e)
    e("s_waitcnt lgkmcnt(0)")
    e(f"v_max_f32 v{k}, v{k}, v{k+1}")
    for sh in ("row_shr:1", "row_shr:2", "row_shr:4", "row_shr:8", "row_bcast:15 row_mask:0xa", "row_bcast:31 row_mask:0xc"):
        e("s_nop 1")
        if "mask" in sh: e(f"v_max_f32_dpp v{k}, v{k}, v{k} {sh} bank_mask:0xf")
        else: e(f"v_max_f32_dpp v{k}, v{k}, v{k} {sh} row_mask:0xf bank_mask:0xf")
    e("s_nop 1")
    e(f"v_readlane_b32 s24, v{k}, 63")
    e(f"v_cmp_gt_u32 vcc, 32, v2")
    e("s_nop 1")
    e(f"v_mov_b32 v{k}, s24")
    e(f"v_sqrt_f32 v{k}, v{k}")
    e("s_nop 0")
    e(f"v_mul_f32 v{k}, 0x3f808312, v{k}")
    for u in range(8):
        t = T0 + 2 + (u % 2)
        e(f"v_mul_f32 v{t}, v{k}, v{QB(u)}")
        e(f"v_add_u32 v{t}, 0xffff, v{t}")
        e(f"v_lshrrev_b32 v{t}, 16, v{t}")
        e(f"v_or_b32 v{t}, 0x8000, v{t}")
        e(f"v_cndmask_b32 v{QB(u)}, v{t}, v{QB(u)}, vcc")
    ST.mark(e)
    e("s_nop 1")
    K.m1(e, 0); K.m2(e, 0)
    e("s_mov_b32 s25, 8")
    e(".p2align 6")
    e.label(f"{name}_loop")
    for n in range(16):
        u = n % 8; p = n // 8
        if u == 0 and p == 1:
            e("s_bitcmp1_b32 s25, 0"); e(f"s_cbranch_scc1 {name}_nobar"); e("s_barrier"); e.label(f"{name}_nobar")
        if u == 7: e("s_waitcnt lgkmcnt(0)")
        K.m1(e, n+1); K.ex(e, n, 0, 4); K.pv(e, n-1, 1); K.ex(e, n, 4, 8); K.m2(e, n+1); K.cv(e, n, 0, 4)
        if u == 1: K.ldk(e, 1-p); K.ldv(e, 1-p)
        if u == 2: K.adv(e)
        K.ex(e, n, 8, 12); K.pv(e, n, 0); K.ex(e, n, 12, 16); K.cv(e, n, 4, 8)
    e("s_sub_u32 s25, s25, 1"); e("s_cmp_lg_u32 s25, 0"); e(f"s_cbranch_scc1 {name}_loop")
    ST.mark(e)
    e("s_nop 1")
    K.pv(e, 15, 1)
    e.label(f"{name}_epi")
    e("s_nop 15"); e("s_nop 3")
    wa = 104; OWN = 4; RD = 28
    e(f"s_mul_i32 s26, s3, {K.RING_W}")
    e(f"v_add_u32 v{wa}, s26, v{L16}")
    for w in range(4):
        e(f"s_cmp_lg_u32 s3, {w}"); e(f"s_cbranch_scc1 {name}_own{w}")
        for u in range(8):
            if u // 2 == w: continue
            for i in range(3): e(f"ds_write_b128 v{wa}, {vr(128+16*u+4*i,4)} offset:{(u*3+i)*1024}")
        for h in range(2):
            for r in range(12): e(f"v_mov_b32 v{OWN+12*h+r}, v{128+16*(2*w+h)+r}")
        e.label(f"{name}_own{w}")
    for d in range(1, 4):
        e(f"s_add_u32 s27, s3, {d}"); e("s_and_b32 s27, s27, 3")
        e(f"s_mul_i32 s27, s27, {K.RING_W}"); e(f"s_mul_i32 s28, s3, {2*3*1024}"); e("s_add_u32 s27, s27, s28")
        e(f"v_add_u32 v{104+d}, s27, v{L16}")
    e("v_and_b32 v3, 31, v2"); e("v_lshrrev_b32 v119, 5, v2")
    e("v_mul_u32_u24 v3, 320, v3"); e("v_lshl_add_u32 v3, v119, 3, v3")
    e(f"s_mul_i32 s27, s3, 80"); e(f"s_add_u32 s27, s27, {K.LDS_OUT}")
    oa = 108
    e(f"v_add_u32 v{oa}, s27, v3")
    e("s_waitcnt lgkmcnt(0)")
    e("s_barrier")
    for d in range(1, 4):
        for i in range(6): e(f"ds_read_b128 {vr(RD+24*(d-1)+4*i,4)}, v{104+d} offset:{i*1024}")
    for d in range(1, 4):
        e(f"s_waitcnt lgkmcnt({6*(3-d)})")
        for r in range(24): e(f"v_add_f32 v{OWN+r}, v{OWN+r}, v{RD+24*(d-1)+r}")
    for h in range(2):
        o = OWN + 12*h; l = 110+2*h
        e(f"v_mov_b32 v{l}, v{o+8}"); e(f"v_mov_b32 v{l+1}, v{o+8}")
    e("s_nop 1")
    for h in range(2): e(f"v_permlane32_swap_b32 v{110+2*h}, v{110+2*h+1}")
    e("s_nop 1")
    e("s_mov_b32 s27, 0x1f800000")
    e("v_cmp_nle_f32 vcc, s27, v111"); e("v_cmp_nle_f32 s[28:29], s27, v113"); e("s_nop 1"); e("s_or_b64 s[28:29], s[28:29], vcc")
    e("s_cmp_lg_u64 s[28:29], 0"); e("s_cselect_b32 s27, 1, 0"); e("s_cmp_eq_u32 s101, 0"); e("s_cselect_b32 s27, s27, 0")
    e(f"s_lshl_b32 s28, s3, 2"); e(f"s_add_u32 s28, s28, {L_FLAG}"); e("v_mov_b32 v114, s28"); e("v_mov_b32 v115, s27"); e("ds_write_b32 v114, v115")
    for h in range(2): e(f"v_rcp_f32 v{110+2*h}, v{110+2*h+1}")
    e("s_nop 0")
    for h in range(2):
        o = OWN + 12*h; l = 110+2*h
        for r in range(12): e(f"v_mul_f32 v{o+r}, v{o+r}, v{l}")
        for i in range(6): e(f"v_cvt_pk_bf16_f32 v{RD+6*h+i}, v{o+2*i}, v{o+2*i+1}")
        e(f"ds_write_b64 v{oa}, {vr(RD+6*h,2)} offset:{40*h}")
        e(f"ds_write_b64 v{oa}, {vr(RD+6*h+2,2)} offset:{40*h+16}")
    e("s_mov_b64 exec, s[38:39]")
    for h in range(2): e(f"ds_write_b64 v{oa}, {vr(RD+6*h+4,2)} offset:{40*h+32}")
    e("s_mov_b64 exec, -1")
    e("s_lshr_b32 s12, s2, 2"); e(f"s_mul_i32 s12, s12, {32*1280}"); e("s_and_b32 s13, s2, 3"); e("s_mul_i32 s13, s13, 320"); e("s_add_u32 s12, s12, s13")
    e(f"s_add_u32 s12, s12, {WS_OA}")
    for j in range(3):
        t = 110+3*j
        e(f"s_mul_i32 s27, s3, 192"); e(f"s_add_u32 s27, s27, {64*j}")
        e(f"v_add_u32 v{t}, s27, v2")
        e(f"v_mul_u32_u24 v{t+2}, 3277, v{t}"); e(f"v_lshrrev_b32 v{t+2}, 16, v{t+2}")
        e(f"v_mul_u32_u24 v{t+1}, 20, v{t+2}"); e(f"v_sub_u32 v{t+1}, v{t}, v{t+1}")
        e(f"v_mul_u32_u24 v{t+2}, 1280, v{t+2}"); e(f"v_lshl_add_u32 v{t+2}, v{t+1}, 4, v{t+2}")
        e(f"v_lshlrev_b32 v{t+1}, 4, v{t}"); e(f"v_add_u32 v{t+1}, {K.LDS_OUT}, v{t+1}")
        e(f"v_cmp_gt_u32 vcc, 640, v{t}"); e("v_mov_b32 v3, 0x7f000000"); e("s_nop 0"); e(f"v_cndmask_b32 v{t+2}, v3, v{t+2}, vcc")
    e(f"v_mov_b32 v119, {L_FLAG}")
    e("s_waitcnt lgkmcnt(0)")
    e("s_barrier")
    e("ds_read_b128 v[100:103], v119")
    for j in range(3): e(f"ds_read_b128 {vr(RD+4*j,4)}, v{110+3*j+1}")
    e("s_waitcnt lgkmcnt(3)")
    e("v_or3_b32 v100, v100, v101, v102"); e("v_or_b32 v100, v100, v103"); e("s_nop 1"); e("v_readfirstlane_b32 s26, v100")
    e("s_cmp_lg_u32 s26, 0"); e(f"s_cbranch_scc1 {name}_fb")
    e("s_waitcnt lgkmcnt(0)")
    for j in range(3): e(f"buffer_store_dwordx4 {vr(RD+4*j,4)}, v{110+3*j+2}, s[8:11], s12 offen")
    e("s_waitcnt vmcnt(0)")
    ST.mark(e)
    e("s_barrier")

def p2_fallback(e, name):
    K = k2r
    QA, QB, S, P, KV, L16, L8 = K.QA, K.QB, K.S, K.P, K.KV, K.L16, K.L8
    e.label(f"{name}_fb")
    e("s_mov_b32 s101, 1")
    e("s_waitcnt lgkmcnt(0)")
    e("s_lshr_b32 s12, s2, 2"); e("s_lshl_b32 s12, s12, 5"); e("s_and_b32 s13, s2, 3"); e("s_lshl_b32 s13, s13, 3"); e("s_add_u32 s12, s12, s13")
    e(f"s_mul_i32 s12, s12, {K.QT_B}"); e(f"s_add_u32 s12, s12, {WS_Q}")
    e("v_and_b32 v3, 31, v2"); e("v_lshlrev_b32 v3, 4, v3"); e("v_add_u32 v3, 1024, v3")
    for u in range(8):
        e(f"buffer_load_dwordx4 {vr(QA(u),4)}, v{L16}, s[8:11], s12 offen")
        e(f"buffer_load_dwordx2 {vr(QB(u),2)}, v3, s[8:11], s12 offen")
        e(f"s_add_u32 s12, s12, {K.QT_B}")
    e("s_waitcnt vmcnt(0)")
    e("v_cmp_gt_u32 vcc, 32, v2"); e("s_nop 1")
    for u in range(8):
        e(f"v_cndmask_b32 v{QB(u)}, 0, v{QB(u)}, vcc"); e(f"v_cndmask_b32 v{QB(u)+1}, 0, v{QB(u)+1}, vcc")
    MX = 110
    for u in range(8): e(f"v_mov_b32 v{MX+u}, 0xff800000")
    e(f"s_mul_i32 s20, s3, {16*K.TILE_B}"); e(f"s_add_u32 s20, s20, {WS_KV}"); e("s_mov_b32 s25, 16")
    e.label(f"{name}_fb1")
    ka, v0, v1, kb = KV(0)
    e(f"buffer_load_dwordx4 {vr(ka,4)}, v{L16}, s[8:11], s20 offen"); e(f"buffer_load_dwordx2 {vr(kb,2)}, v{L8}, s[8:11], s20 offen offset:3072")
    e("s_waitcnt vmcnt(0)")
    for u in range(8):
        e(f"v_mfma_f32_32x32x16_bf16 {vr(S[0],16)}, {vr(ka,4)}, {vr(QA(u),4)}, 0")
        e(f"v_mfma_f32_32x32x8_bf16 {vr(S[0],16)}, {vr(kb,2)}, {vr(QB(u),2)}, {vr(S[0],16)}")
        e("s_nop 15"); e("s_nop 7")
        for i in range(8): e(f"v_max3_f32 v{MX+u}, v{MX+u}, v{S[0]+2*i}, v{S[0]+2*i+1}")
        e("s_nop 7")
    e(f"s_add_u32 s20, s20, {K.TILE_B}"); e("s_sub_u32 s25, s25, 1"); e("s_cmp_lg_u32 s25, 0"); e(f"s_cbranch_scc1 {name}_fb1")
    for u in range(8):
        e(f"v_mov_b32 v3, v{MX+u}"); e("s_nop 1"); e(f"v_permlane32_swap_b32 v{MX+u}, v3"); e("s_nop 1"); e(f"v_max_f32 v{MX+u}, v{MX+u}, v3")
    e(f"s_mul_i32 s26, s3, {K.RING_W}"); e("v_lshlrev_b32 v3, 2, v2"); e("v_add_u32 v108, s26, v3")
    for u in range(8): e(f"ds_write_b32 v108, v{MX+u} offset:{256*u}")
    e("s_waitcnt lgkmcnt(0)")
    e("s_barrier")
    for w in range(4):
        e(f"v_add_u32 v109, {w*K.RING_W}, v3")
        for u in range(8): e(f"ds_read_b32 v{S[0]+8*w+u}, v109 offset:{256*u}")
    e("s_waitcnt lgkmcnt(0)")
    e("v_cmp_gt_u32 vcc, 32, v2")
    for u in range(8):
        a = S[0] + u
        e(f"v_max3_f32 v{a}, v{a}, v{a+8}, v{a+16}"); e(f"v_max_f32 v{a}, v{a}, v{a+24}")
        e(f"v_and_b32 v3, 0xffff0000, v{a}")
        e(f"v_sub_f32 v109, v{a}, v3")
        e(f"v_cvt_pk_bf16_f32 v109, v3, v109")
        e(f"v_xor_b32 v109, 0x80008000, v109")
        e(f"v_cndmask_b32 v{QB(u)}, v109, v{QB(u)}, vcc")
    for r in range(128): e(f"v_mov_b32 v{128+r}, 0")
    e(f"s_mul_i32 s20, s3, {16*K.TILE_B}"); e(f"s_add_u32 s20, s20, {WS_KV}"); e("s_mov_b32 s25, 16")
    e.label(f"{name}_fb2")
    e(f"buffer_load_dwordx4 {vr(ka,4)}, v{L16}, s[8:11], s20 offen"); e(f"buffer_load_dwordx2 {vr(kb,2)}, v{L8}, s[8:11], s20 offen offset:3072")
    e(f"buffer_load_dwordx4 {vr(v0,4)}, v{L16}, s[8:11], s20 offen offset:1024"); e(f"buffer_load_dwordx4 {vr(v1,4)}, v{L16}, s[8:11], s20 offen offset:2048")
    e("s_waitcnt vmcnt(0)")
    for u in range(8):
        e(f"v_mfma_f32_32x32x16_bf16 {vr(S[0],16)}, {vr(ka,4)}, {vr(QA(u),4)}, 0")
        e(f"v_mfma_f32_32x32x8_bf16 {vr(S[0],16)}, {vr(kb,2)}, {vr(QB(u),2)}, {vr(S[0],16)}")
        e("s_nop 15"); e("s_nop 7")
        for r in range(16): e(f"v_exp_f32 v{S[0]+r}, v{S[0]+r}")
        e("s_nop 1")
        for i in range(8): e(f"v_cvt_pk_bf16_f32 v{P+i}, v{S[0]+2*i}, v{S[0]+2*i+1}")
        e("s_nop 1")
        e(f"v_mfma_f32_32x32x16_bf16 {vr(128+16*u,16)}, {vr(v0,4)}, {vr(P,4)}, {vr(128+16*u,16)}")
        e(f"v_mfma_f32_32x32x16_bf16 {vr(128+16*u,16)}, {vr(v1,4)}, {vr(P+4,4)}, {vr(128+16*u,16)}")
        e("s_nop 7")
    e(f"s_add_u32 s20, s20, {K.TILE_B}"); e("s_sub_u32 s25, s25, 1"); e("s_cmp_lg_u32 s25, 0"); e(f"s_cbranch_scc1 {name}_fb2")
    e(f"s_branch {name}_epi")

def p3_ids(e):
    e("s_and_b32 s40, s2, 1")
    e("s_lshr_b32 s41, s2, 1"); e("s_and_b32 s41, s41, 3"); e("s_lshl_b32 s41, s41, 2")
    e("s_lshr_b32 s42, s2, 3"); e("s_and_b32 s43, s42, 3"); e("s_add_u32 s41, s41, s43")
    e("s_lshr_b32 s42, s42, 2")
    e("s_movk_i32 s44, 1280")

def p3_loader(e, G3, name, H):
    K = k3
    e(f"s_sub_u32 s3, s{SW}, 4")
    e("s_cmp_lg_u32 s3, 0"); e(f"s_cbranch_scc1 {name}_l0a")
    e("s_lshr_b32 s29, s2, 4"); e("s_lshl_b32 s29, s29, 7"); e(f"s_add_u32 s29, s29, {CNT_OA}"); e("v_mov_b32 v5, s29")
    arrive(e, "s[8:11]", 5)
    e.label(f"{name}_l0a")
    p3_ids(e)
    G3.loader_setup(e, 44)
    e("s_lshr_b32 s45, s3, 1"); e("s_and_b32 s46, s3, 1")
    e("s_lshl_b32 s20, s41, 7"); e("s_lshl_b32 s49, s46, 6"); e("s_add_u32 s20, s20, s49"); e("s_mul_i32 s20, s20, 1280"); e("s_mul_i32 s49, s45, 640"); e("s_add_u32 s20, s20, s49")
    e(f"s_mov_b32 s49, {WS_OB}"); e("s_cmp_eq_u32 s40, 0"); e(f"s_cselect_b32 s49, {WS_OA}, s49"); e("s_add_u32 s20, s20, s49")
    e("s_mul_i32 s21, s45, 320"); e("s_lshl_b32 s49, s46, 5"); e("s_add_u32 s21, s21, s49"); e("s_mul_i32 s21, s21, 160")
    e("s_lshl_b32 s49, s40, 3"); e("s_add_u32 s49, s49, s42"); e("s_mul_i32 s49, s49, 102400"); e("s_add_u32 s21, s21, s49"); e(f"s_add_u32 s21, s21, {WS_WOI}")
    e(f"s_mov_b32 s22, {64*160}")
    e("s_lshl_b32 s24, s45, 14"); e("s_lshl_b32 s49, s46, 13"); e("s_add_u32 s24, s24, s49")
    e("s_mul_i32 s25, s45, 10240"); e("s_mul_i32 s49, s46, 5120"); e("s_add_u32 s25, s25, s49"); e(f"s_add_u32 s25, s25, {K.W_OFF}")
    e("s_add_u32 s23, s42, s43"); e("s_mul_i32 s49, s23, 52"); e("s_lshr_b32 s49, s49, 8"); e("s_mul_i32 s49, s49, 5"); e("s_sub_u32 s23, s23, s49")
    make_srd(e, 12, 4, WS_BYTES)
    STG = K.STG_B
    def kc(i, dst):
        e(f"s_add_u32 s{dst}, s23, {i}"); e(f"s_cmp_ge_u32 s{dst}, 5"); e(f"s_cselect_b32 s49, 5, 0"); e(f"s_sub_u32 s{dst}, s{dst}, s49")
    def wpart(i):
        kc(i, 27); e("s_mul_i32 s29, s27, s22"); e("s_add_u32 s29, s29, s21"); e(f"s_add_u32 s31, s25, {(i % 3)*STG}")
        G3.dma_wlin(e, 29, 31, "s[12:15]")
    def xpart(i):
        kc(i, 27); e("s_lshl_b32 s28, s27, 7"); e("s_add_u32 s28, s28, s20"); e(f"s_add_u32 s31, s24, {(i % 3)*STG}")
        e("s_mov_b32 m0, s31")
        for j in range(8):
            e("s_nop 0" if j == 0 else "s_add_u32 m0, m0, 1024")
            if j: e("s_nop 0")
            e(f"buffer_load_dwordx4 v{G3.VOX+j}, s[8:11], s28 offen lds")
    e("s_lshl_b32 s30, s40, 3"); e("s_add_u32 s30, s30, s42"); e("s_lshl_b32 s30, s30, 7"); e(f"s_add_u32 s30, s30, {CNT_W}"); e("v_mov_b32 v5, s30")
    poll(e, f"{name}_pw", "s[8:11]", 5, 64)
    for i in range(3): wpart(i)
    e("s_cmp_lg_u32 s3, 0"); e(f"s_cbranch_scc1 {name}_l0b")
    e(f"s_mov_b32 s29, {CNT_OB}"); e("s_cmp_eq_u32 s40, 0"); e(f"s_cselect_b32 s29, {CNT_OA}, s29"); e("s_lshl_b32 s49, s41, 7"); e("s_add_u32 s29, s29, s49"); e("v_mov_b32 v5, s29")
    e("s_cmp_eq_u32 s40, 0"); e(f"s_cbranch_scc0 {name}_l0c")
    poll(e, f"{name}_po", "s[8:11]", 5, 16)
    e(f"s_branch {name}_l0b")
    e.label(f"{name}_l0c")
    poll(e, f"{name}_pp", "s[8:11]", 5, 64)
    e.label(f"{name}_l0b")
    e("s_barrier")
    xpart(0)
    e("s_waitcnt vmcnt(0)")
    e("s_barrier")
    xpart(1); xpart(2)
    e("s_waitcnt vmcnt(8)"); e("s_barrier"); xpart(3); wpart(3)
    e("s_waitcnt vmcnt(13)"); e("s_barrier"); xpart(4); wpart(4)
    e("s_waitcnt vmcnt(13)"); e("s_barrier")
    e("s_waitcnt vmcnt(0)"); e("s_barrier")
    e("s_barrier")
    if H.en and not os.environ.get("DBGOUT"):
        H.flush(e, 40, SW, "s[8:11]")
    e("s_endpgm")

def p3_compute(e, G3, name, ST):
    K = k3
    e(f"s_mov_b32 s3, s{SW}")
    p3_ids(e)
    e("s_and_b32 s49, s3, 1"); e("s_lshl_b32 s50, s49, 14"); e("s_lshr_b32 s51, s3, 1"); e("s_lshl_b32 s51, s51, 13"); e("s_add_u32 s50, s50, s51")
    e("s_mul_i32 s51, s49, 10240"); e(f"s_add_u32 s51, s51, {K.W_OFF}")
    G3.compute_setup(e, 50, 51)
    e("s_barrier")
    G3.compute_main(e, name + "_p3", ST)
    ST.mark(e)
    t = E(); t.sf = ""
    k3.epilogue(t, G3, name, 90)
    e.l += t.l

def gen(e, name):
    G = Gemm(k1.STG_B, k1.NSTG, 10, 4); G.XROLE = 0
    G3 = Gemm(k3.STG_B, k3.NSTG, 5, 8, pf=1); G3.WLIN = True
    S1 = S2 = S3 = RStamps(STEN); H = RStamps(STEN); S1.main = True
    k1.ST.en = False; k1.DIAG = False
    kernel_header(e, name)
    e("s_cmp_ge_u32 s2, 256")
    e(f"s_cbranch_scc1 {name}_end")
    e("s_load_dwordx4 s[32:35], s[0:1], 0")
    e("s_load_dwordx4 s[36:39], s[0:1], 40")
    e("s_load_dwordx4 s[84:87], s[0:1], 16")
    e("s_load_dwordx2 s[88:89], s[0:1], 56")
    e("s_load_dwordx2 s[4:5], s[0:1], 88")
    e("s_load_dwordx2 s[6:7], s[0:1], 80")
    e("s_load_dwordx2 s[90:91], s[0:1], 72")
    e("s_load_dwordx2 s[92:93], s[0:1], 32")
    e("s_load_dwordx2 s[94:95], s[0:1], 64")
    S1.mark(e)
    e("v_lshrrev_b32 v2, 6, v0"); e("v_and_b32 v1, 63, v0")
    p1_ids(e)
    e(f"v_readfirstlane_b32 s{SW}, v2")
    e("s_nop 3")
    e(f"s_cmp_lt_u32 s{SW}, 4"); e(f"s_cbranch_scc1 {name}_compute")
    e.sf = WT
    p1_loader(e, G, name)
    p2_helper(e, name, H)
    p2_helper_rest(e, name)
    p3_loader(e, G3, name, H)
    e.label(f"{name}_compute")
    p1_compute(e, G, name, S1)
    S2.mark(e)
    p2_compute(e, name, S2)
    S3.mark(e)
    p3_compute(e, G3, name, S3)
    S3.mark(e)
    if STEN and os.environ.get("DBGOUT"):
        e(f"s_cmp_lg_u32 s2, {os.environ['DBGOUT']}"); e(f"s_cbranch_scc1 {name}_nodbg"); e(f"s_cmp_lg_u32 s{SW}, 0"); e(f"s_cbranch_scc1 {name}_nodbg")
        e("s_waitcnt lgkmcnt(0) vmcnt(0)")
        make_srd(e, 16, 6, 256)
        e("s_mov_b64 exec, 1"); e("v_mov_b32 v174, 0")
        for i in range(12):
            e(f"s_sub_u32 s96, s{60+2*i}, s60"); e("v_mov_b32 v175, s96")
            e(f"buffer_store_dword v175, v174, s[16:19], 0 offen offset:{4*i}"); e("s_nop 1")
        e("s_waitcnt vmcnt(0)")
        e.label(f"{name}_nodbg")
    elif STEN:
        make_srd(e, 16, 4, WS_BYTES)
        S3.flush(e, 174, SW, "s[16:19]")
    e("s_endpgm")
    p1_other_roles(e, G, name)
    p2_fallback(e, name)
    e.label(f"{name}_end")
    e("s_endpgm")
    return 256, LDS_MEGA

def build(path):
    hdr = open("cdna_kernels/%s.s.ref" % NAME).read().split("\n")
    top = [l for l in hdr if l.startswith(";") and "@launch" not in l]
    name = NAME + "_kernel"
    e = E()
    nv, lds = gen(e, name)
    out = top + [f"; @launch grid=(256,1,1) block=(512,1,1) lds={lds}", '.amdgcn_target "amdgcn-amd-amdhsa--gfx950"', ".text", e.text(), '.section .rodata,"a"', kernel_desc(name, nv)]
    open(path, "w").write("\n".join(out))
if __name__ == "__main__":
    import sys
    build(sys.argv[1] if len(sys.argv) > 1 else "mega.s")
```

```python
from common import *
from gemm2 import *
from stamp import Stamps
import os
ST = Stamps(os.environ.get("STAMP")=="1")
VAR = os.environ.get("VAR","")
ST2 = Stamps(os.environ.get("STAMP")=="1")
DIAG = os.environ.get("K1DIAG")=="1"
def dmark(e, i):
    if DIAG:
        b = 60+4*i
        e(f"s_memrealtime s[{b}:{b+1}]"); e(f"s_memtime s[{b+2}:{b+3}]"); ST.n = max(ST.n, i+1)
C_SCALE = (20 ** -0.5) * LOG2E
STG_B, NSTG = 36864, 4
W_OFF = 16384
L_PHI = NSTG*STG_B
L_ZERO = L_PHI + 8192
LDS_K1 = L_ZERO + 1024
L_V = 0
VROW = 208
PROW = 336
L_KH = 26624
L_PK = 36864
L_WK = 2*STG_B
L_WV = 3*STG_B
L_RED = 0
QT_B = 1536
TILE_B = 3584

def phi_addr(e, G, dst, s_hbase, lane=1):
    T = G.T
    e(f"v_lshrrev_b32 v{T}, 4, v{lane}")
    e(f"v_and_b32 v{T+1}, 3, v{lane}")
    e(f"v_cmp_eq_u32 vcc, v{T}, v{T+1}")
    e(f"v_add_u32 v{T}, s{s_hbase}, v{T}")
    e(f"v_mul_u32_u24 v{T}, 800, v{T}")
    e(f"v_bfe_u32 v{T+1}, v{lane}, 2, 2")
    e(f"v_mul_u32_u24 v{T+1}, 40, v{T+1}")
    e(f"v_add3_u32 v{T}, v{T}, v{T+1}, s99")
    e(f"v_mov_b32 v{T+1}, {L_ZERO}")
    e(f"v_cndmask_b32 v{dst}, v{T+1}, v{T}, vcc")

def phi_frags(e, addr, base):
    for mt in range(5):
        for ks in range(3):
            d = base + (mt*3+ks)*4
            e(f"ds_read_b64_tr_b16 v[{d}:{d+1}], v{addr} offset:{(8*ks)*40 + 8*mt}")
            if ks < 2:
                e(f"ds_read_b64_tr_b16 v[{d+2}:{d+3}], v{addr} offset:{(8*ks+4)*40 + 8*mt}")
            else:
                e(f"v_mov_b32 v{d+2}, 0"); e(f"v_mov_b32 v{d+3}, 0")

def phi_mfma(e, fr, kp, out):
    for ks in range(3):
        for mt in range(5):
            c = "0" if ks == 0 else vr(out+4*mt, 4)
            e(f"v_mfma_f32_16x16x32_bf16 {vr(out+4*mt,4)}, {vr(fr+(mt*3+ks)*4,4)}, {vr(kp+4*ks,4)}, {c}")

def pack_nt(e, G, nt, dst, scale=None):
    for mt in range(5):
        a = G.acc(mt, nt)
        if scale:
            for r in range(4): e(f"v_mul_f32 v{a+r}, {scale}, v{a+r}")
    for mt in range(5):
        a = G.acc(mt, nt)
        e(f"v_cvt_pk_bf16_f32 v{dst+2*mt}, v{a}, v{a+1}")
        e(f"v_cvt_pk_bf16_f32 v{dst+2*mt+1}, v{a+2}, v{a+3}")

def kv_x_loads(e, G, XK):
    T = G.T
    e("s_mov_b32 s8, s32"); e("s_and_b32 s9, s33, 0xffff"); e("s_mov_b32 s10, %d" % (2048*640*2)); e("s_mov_b32 s11, 0x20000")
    e("s_lshl_b32 s50, s41, 7"); e("s_lshl_b32 s51, s42, 5"); e("s_add_u32 s50, s50, s51")
    e("s_mul_i32 s51, s50, 1280"); e("s_mul_i32 s52, s3, 320"); e("s_add_u32 s51, s51, s52")
    e(f"v_and_b32 v{T}, 15, v1"); e(f"v_mul_u32_u24 v{T}, 1280, v{T}"); e(f"v_lshrrev_b32 v{T+1}, 4, v1"); e(f"v_lshl_add_u32 v{T}, v{T+1}, 4, v{T}")
    for nt2 in range(2):
        for ks in range(5):
            e(f"buffer_load_dwordx4 {vr(XK+(nt2*5+ks)*4,4)}, v{T}, s[8:11], s51 offen offset:{64*ks}")
        if nt2 == 0: e(f"s_add_u32 s51, s51, {16*1280}")

def q_prefill(e, G):
    T = G.T
    e("s_lshr_b32 s52, s3, 1"); e("s_and_b32 s53, s3, 1")
    e("s_lshl_b32 s54, s41, 2"); e("s_lshl_b32 s55, s52, 1"); e("s_add_u32 s54, s54, s55")
    e("s_lshl_b32 s54, s54, 5"); e("s_lshl_b32 s55, s42, 3"); e("s_add_u32 s54, s54, s55"); e("s_lshl_b32 s55, s53, 2"); e("s_add_u32 s54, s54, s55")
    e(f"s_mul_i32 s54, s54, {QT_B}"); e(f"s_add_u32 s54, s54, {WS_Q}")
    e(f"v_lshrrev_b32 v{T+1}, 4, v1"); e(f"v_mul_u32_u24 v{T+1}, {QT_B}, v{T+1}"); e(f"v_and_b32 v{T+2}, 15, v1")
    e(f"v_lshl_add_u32 v{T+3}, v{T+2}, 4, v{T+1}")
    for r in range(4): e(f"v_mov_b32 v{4+r}, -1")
    for nt in range(4):
        o = 256*(nt % 2)
        for oo in (0, 512, 1024): e(f"buffer_store_dwordx4 v[4:7], v{T+3}, s[16:19], s54 offen offset:{o+oo}")
        if nt == 1: e(f"s_add_u32 s54, s54, {32*QT_B}")

def q_part(e, G, mid=None):
    T = G.T
    e("s_lshr_b32 s52, s3, 1"); e("s_and_b32 s53, s3, 1")
    e("s_lshl_b32 s54, s41, 2"); e("s_lshl_b32 s55, s52, 1"); e("s_add_u32 s54, s54, s55")
    e("s_lshl_b32 s54, s54, 5"); e("s_lshl_b32 s55, s42, 3"); e("s_add_u32 s54, s54, s55"); e("s_lshl_b32 s55, s53, 2"); e("s_add_u32 s54, s54, s55")
    e(f"s_mul_i32 s54, s54, {QT_B}"); e(f"s_add_u32 s54, s54, {WS_Q}")
    e(f"v_lshrrev_b32 v{T+1}, 4, v1"); e(f"v_mul_u32_u24 v{T+1}, {QT_B}, v{T+1}"); e(f"v_and_b32 v{T+2}, 15, v1")
    e(f"v_lshl_add_u32 v{T+3}, v{T+2}, 4, v{T+1}")
    e(f"s_mov_b32 s56, {f2h(C_SCALE)}"); e("s_mov_b32 s57, s56")
    for nt in range(4):
        b = 160 if nt % 2 == 0 else 184
        for mt in range(5):
            a_ = G.acc(mt, nt)
            e(f"v_pk_mul_f32 v[{a_}:{a_+1}], v[{a_}:{a_+1}], s[56:57]"); e(f"v_pk_mul_f32 v[{a_+2}:{a_+3}], v[{a_+2}:{a_+3}], s[56:57]")
        for mt in range(5):
            a_ = G.acc(mt, nt)
            e(f"v_cvt_pk_bf16_f32 v{b+2*mt}, v{a_}, v{a_+1}"); e(f"v_cvt_pk_bf16_f32 v{b+2*mt+1}, v{a_+2}, v{a_+3}")
        e(f"v_mov_b32 v{b+10}, 0")
        for i in range(10): e(f"v_dot2c_f32_bf16 v{b+10}, v{b+i}, v{b+i}")
        e(f"v_mov_b32 v{b+11}, 0")
        o = 256*(nt % 2)
        e(f"buffer_store_dwordx4 {vr(b,4)}, v{T+3}, s[16:19], s54 offen offset:{o}")
        e("s_nop 0")
        e(f"v_sqrt_f32 v{b+10}, v{b+10}")
        e(f"buffer_store_dwordx4 {vr(b+4,4)}, v{T+3}, s[16:19], s54 offen offset:{o+512}")
        e(f"buffer_store_dwordx4 {vr(b+8,4)}, v{T+3}, s[16:19], s54 offen offset:{o+1024}")
        if nt == 1:
            e(f"s_add_u32 s54, s54, {32*QT_B}")
            if mid: mid(e)

def kv_part(e, G, name, XK, WF, A2, nyounger, RD):
    R = RD - 64
    T = G.T
    e(f"v_lshrrev_b32 v{T}, 4, v1"); e(f"v_lshlrev_b32 v{T}, 3, v{T}"); e(f"v_bfe_u32 v{T+1}, v1, 2, 2"); e(f"v_add_u32 v{T}, v{T}, v{T+1}")
    e(f"v_mul_u32_u24 v{T}, 40, v{T}"); e("s_mul_i32 s57, s3, 6400"); e(f"v_add_u32 v{T}, s57, v{T}")
    e(f"v_and_b32 v{T+1}, 3, v1")
    e(f"v_lshlrev_b32 v{T+2}, 4, v{T+1}")
    e(f"v_cmp_gt_u32 vcc, 3, v{T+1}"); e("s_nop 1"); e(f"v_cndmask_b32 v{T+5}, 0, v{T+2}, vcc"); e(f"v_add3_u32 v180, v{T}, v{T+5}, s99")
    e(f"v_cmp_gt_u32 vcc, 2, v{T+1}"); e("s_nop 1"); e(f"v_cndmask_b32 v{T+5}, 0, v{T+2}, vcc"); e(f"v_add3_u32 v181, v{T}, v{T+5}, s99"); e("v_add_u32 v181, 8, v181")
    e(f"v_lshlrev_b32 v{T+5}, 3, v{T+1}"); e(f"v_add3_u32 v182, v{T}, v{T+5}, s97")
    e(f"v_add_u32 v183, s97, v{T}"); e("v_add_u32 v183, 32, v183")
    def rdw(ks):
        for b in range(2):
            o = (32*ks + 4*b)*40
            for t in range(4):
                d = WF[ks] + 4*t + 2*b
                e(f"ds_read_b64_tr_b16 v[{d}:{d+1}], v{180+t} offset:{o}")
    first = set()
    def mm(ks):
        wb = WF[ks]
        for nt2 in range(2):
            x = XK + (nt2*5+ks)*4
            for mt in range(2):
                a_ = A2+(mt*2+nt2)*4
                c = vr(a_,4) if first else "0"
                e(f"v_mfma_f32_16x16x32_bf16 {vr(a_,4)}, {vr(wb+4*mt,4)}, {vr(x,4)}, {c}")
            for dt in range(2):
                a_ = A2+16+(nt2*2+dt)*4
                c = vr(a_,4) if first else "0"
                e(f"v_mfma_f32_16x16x32_bf16 {vr(a_,4)}, {vr(x,4)}, {vr(wb+8+4*dt,4)}, {c}")
        first.add(ks)
    for ks in (0, 1, 4): rdw(ks)
    e(f"s_waitcnt vmcnt({nyounger}) lgkmcnt(0)")
    for ks in (0, 1, 4): mm(ks)
    e("s_nop 3")
    for ks in (2, 3): rdw(ks)
    e("s_waitcnt lgkmcnt(0)")
    for ks in (2, 3): mm(ks)
    e("s_nop 7")
    e(f"v_lshlrev_b32 v{T}, 4, v1"); e("s_lshl_b32 s57, s3, 13"); e(f"v_add_u32 v{T+1}, s57, v{T}")
    for t in range(8): e(f"ds_write_b128 v{T+1}, {vr(A2+4*t,4)} offset:{L_RED + t*1024}")
    e("s_waitcnt lgkmcnt(0)")
    e("s_barrier")
    e("s_lshl_b32 s57, s3, 10")
    e("s_sub_u32 s58, s3, 2"); e("s_lshl_b32 s58, s58, 11"); e("s_add_u32 s58, s58, 4096")
    e("s_cmp_lt_u32 s3, 2")
    e("s_cselect_b32 s57, s57, s58")
    e("s_movk_i32 s58, 1024"); e("s_cselect_b32 s58, 2048, s58")
    e(f"v_add_u32 v{T+1}, s57, v{T}"); e(f"v_add_u32 v{T+2}, s58, v{T+1}")
    for w in range(4):
        e(f"ds_read_b128 {vr(R+64+8*w,4)}, v{T+1} offset:{L_RED + w*8192}")
        e(f"ds_read_b128 {vr(R+68+8*w,4)}, v{T+2} offset:{L_RED + w*8192}")
    e("s_waitcnt lgkmcnt(0)")
    for r in range(8):
        e(f"v_add_f32 v{R+64+r}, v{R+64+r}, v{R+72+r}"); e(f"v_add_f32 v{R+80+r}, v{R+80+r}, v{R+88+r}")
    for r in range(8): e(f"v_add_f32 v{R+64+r}, v{R+64+r}, v{R+80+r}")
    for i in range(4): e(f"v_cvt_pk_bf16_f32 v{R+72+i}, v{R+64+2*i}, v{R+64+2*i+1}")
    e("s_lshl_b32 s50, s41, 2"); e("s_add_u32 s50, s50, s42")
    e(f"s_mul_i32 s51, s50, {TILE_B}"); e(f"s_add_u32 s51, s51, {WS_KV}")
    e("s_cmp_ge_u32 s3, 2")
    e(f"s_cbranch_scc1 {name}_vfin")
    e(f"v_and_b32 v{T}, 15, v1"); e("s_lshl_b32 s52, s3, 4"); e(f"v_add_u32 v{T}, s52, v{T}")
    e(f"v_lshrrev_b32 v{T+1}, 4, v1")
    e(f"v_cmp_gt_u32 vcc, 2, v{T+1}"); e("s_nop 1")
    e(f"v_cndmask_b32 v{R+76}, 0, v{R+74}, vcc"); e(f"v_cndmask_b32 v{R+77}, 0, v{R+75}, vcc")
    e(f"v_cmp_gt_u32 vcc, 3, v{T+1}"); e("s_nop 1")
    e(f"v_cndmask_b32 v{R+78}, 0, v{R+72}, vcc"); e(f"v_cndmask_b32 v{R+79}, 0, v{R+73}, vcc")
    e(f"v_mov_b32 v{R+80}, 0")
    for r in (76, 77, 78, 79): e(f"v_dot2c_f32_bf16 v{R+80}, v{R+r}, v{R+r}")
    e("s_nop 2")
    e(f"v_mov_b32 v{R+81}, v{R+80}"); e("s_nop 1"); e(f"v_permlane16_swap_b32 v{R+80}, v{R+81}"); e("s_nop 1"); e(f"v_add_f32 v{R+80}, v{R+80}, v{R+81}")
    e(f"v_mov_b32 v{R+81}, v{R+80}"); e("s_nop 1"); e(f"v_permlane32_swap_b32 v{R+80}, v{R+81}"); e("s_nop 1"); e(f"v_add_f32 v{R+80}, v{R+80}, v{R+81}")
    for sh in ("row_shr:1", "row_shr:2", "row_shr:4", "row_shr:8"):
        e("s_nop 1"); e(f"v_max_f32_dpp v{R+80}, v{R+80}, v{R+80} {sh} row_mask:0xf bank_mask:0xf")
    e(f"v_lshlrev_b32 v{T+2}, 5, v{T+1}"); e(f"v_add_u32 v{T+2}, v{T+2}, v{T}"); e(f"v_lshlrev_b32 v{T+2}, 4, v{T+2}")
    e(f"v_cmp_gt_u32 vcc, 2, v{T+1}")
    sv = "s[54:55]"
    e(f"s_and_saveexec_b64 {sv}, vcc")
    e(f"buffer_store_dwordx4 v[{R+72}:{R+75}], v{T+2}, s[16:19], s51 offen")
    e(f"s_andn2_b64 exec, {sv}, exec")
    e(f"v_cmp_eq_u32 vcc, 3, v{T+1}"); e("s_nop 1")
    e(f"v_mov_b32 v{R+82}, 0x3f803f80"); e(f"v_mov_b32 v{R+83}, 0")
    e(f"v_cndmask_b32 v{R+72}, v{R+72}, v{R+82}, vcc"); e(f"v_cndmask_b32 v{R+73}, v{R+73}, v{R+83}, vcc")
    e(f"v_subrev_u32 v{T+3}, 2, v{T+1}"); e(f"v_lshlrev_b32 v{T+3}, 5, v{T+3}"); e(f"v_add_u32 v{T+3}, v{T+3}, v{T}"); e(f"v_lshlrev_b32 v{T+3}, 3, v{T+3}")
    e(f"buffer_store_dwordx2 v[{R+72}:{R+73}], v{T+3}, s[16:19], s51 offen offset:3072")
    e(f"s_mov_b64 exec, {sv}")
    e("s_lshl_b32 s52, s50, 1"); e("s_add_u32 s52, s52, s3"); e("s_lshl_b32 s52, s52, 2"); e(f"s_add_u32 s52, s52, {WS_KMAX}")
    e("s_mov_b64 exec, 0x8000"); e(f"v_mov_b32 v{R+81}, 0")
    e(f"buffer_store_dword v{R+80}, v{R+81}, s[16:19], s52 offen")
    e("s_mov_b64 exec, -1")
    e(f"s_branch {name}_adone")
    e.label(f"{name}_vfin")
    e(f"v_and_b32 v{T}, 15, v1"); e(f"v_lshrrev_b32 v{T+1}, 4, v1")
    e(f"v_cmp_gt_u32 vcc, 4, v{T}"); e("s_nop 1")
    e(f"v_cndmask_b32 v{R+74}, 0, v{R+74}, vcc"); e(f"v_cndmask_b32 v{R+75}, 0, v{R+75}, vcc")
    e(f"v_cmp_eq_u32 vcc, 4, v{T}"); e(f"v_mov_b32 v{R+82}, 0x3f803f80"); e("s_nop 0")
    e(f"v_cndmask_b32 v{R+74}, v{R+74}, v{R+82}, vcc"); e(f"v_cndmask_b32 v{R+75}, v{R+75}, v{R+82}, vcc")
    e(f"v_and_b32 v{T+2}, 1, v{T+1}"); e(f"v_lshlrev_b32 v{T+2}, 5, v{T+2}"); e(f"v_add_u32 v{T+2}, v{T+2}, v{T}"); e(f"v_lshlrev_b32 v{T+2}, 4, v{T+2}")
    e(f"v_lshrrev_b32 v{T+3}, 1, v{T+1}"); e(f"v_lshl_add_u32 v{T+2}, v{T+3}, 3, v{T+2}")
    e("s_sub_u32 s52, s3, 2"); e("s_lshl_b32 s52, s52, 10"); e("s_add_u32 s52, s52, s51")
    e(f"buffer_store_dwordx2 v[{R+72}:{R+73}], v{T+2}, s[16:19], s52 offen offset:1024")
    e(f"buffer_store_dwordx2 v[{R+74}:{R+75}], v{T+2}, s[16:19], s52 offen offset:{1024+256}")
    e.label(f"{name}_adone")

PKB = lambda nt: 96 + 12*nt
FRB = 196

def pack_all(e, G):
    for nt in range(4):
        pack_nt(e, G, nt, PKB(nt))
        e(f"v_mov_b32 v{PKB(nt)+10}, 0"); e(f"v_mov_b32 v{PKB(nt)+11}, 0")

def phi_chain(e, kp, out):
    for ks in range(3):
        for mt in range(5):
            c = "0" if ks == 0 else vr(out+4*mt, 4)
            e(f"v_mfma_f32_16x16x32_bf16 {vr(out+4*mt,4)}, {vr(FRB+(mt*3+ks)*4,4)}, {vr(kp+4*ks,4)}, {c}")

def role_bq(e, G, name, mid=None):
    T = G.T
    e("s_and_b32 s53, s3, 1")
    pack_all(e, G)
    e("s_lshr_b32 s52, s3, 1"); e("s_lshl_b32 s54, s41, 3"); e("s_lshl_b32 s55, s52, 2"); e("s_add_u32 s54, s54, s55")
    e("s_lshl_b32 s54, s54, 3"); e("s_lshl_b32 s55, s42, 1"); e("s_add_u32 s54, s54, s55"); e("s_add_u32 s54, s54, s53")
    e("s_mul_i32 s54, s54, 2560"); e(f"s_add_u32 s54, s54, {WS_PQ}")
    e(f"v_lshlrev_b32 v{T+2}, 4, v1"); e(f"v_lshlrev_b32 v{T+3}, 3, v1")
    OUT = (56, 76)
    phi_chain(e, PKB(0), OUT[0])
    for nt in range(4):
        if nt < 3: phi_chain(e, PKB(nt+1), OUT[(nt+1) % 2])
        else: e("s_nop 7")
        o = OUT[nt % 2]; b = PKB(nt)
        e("s_nop 1")
        for i in range(10): e(f"v_cvt_pk_bf16_f32 v{b+i}, v{o+2*i}, v{o+2*i+1}")
        e(f"buffer_store_dwordx4 {vr(b,4)}, v{T+2}, s[16:19], s54 offen")
        e(f"buffer_store_dwordx4 {vr(b+4,4)}, v{T+2}, s[16:19], s54 offen offset:1024")
        e(f"buffer_store_dwordx2 {vr(b+8,2)}, v{T+3}, s[16:19], s54 offen offset:2048")
        if nt < 3: e(f"s_add_u32 s54, s54, {8*2560}")
        if nt == 0 and mid: mid(e)

def role_bkv(e, G, name):
    T = G.T
    e("s_lshr_b32 s52, s3, 1"); e("s_and_b32 s53, s3, 1")
    pack_all(e, G)
    e("s_cmp_eq_u32 s53, 0")
    e(f"s_cbranch_scc0 {name}_vw")
    e("s_mul_i32 s54, s52, 5120")
    e(f"v_lshlrev_b32 v{T}, 4, v1"); e(f"v_add_u32 v{T}, s54, v{T}")
    e(f"v_lshlrev_b32 v{T+1}, 3, v1"); e(f"v_add_u32 v{T+1}, s54, v{T+1}")
    for nt in (2, 3):
        o = L_KH + (nt-2)*2560
        e(f"ds_write_b128 v{T}, {vr(PKB(nt),4)} offset:{o}")
        e(f"ds_write_b128 v{T}, {vr(PKB(nt)+4,4)} offset:{o+1024}")
        e(f"ds_write_b64 v{T+1}, {vr(PKB(nt)+8,2)} offset:{o+2048}")
    e("s_waitcnt lgkmcnt(0)")
    e("s_barrier")
    e(f"s_branch {name}_go")
    e.label(f"{name}_vw")
    e(f"v_and_b32 v{T}, 15, v1"); e(f"v_mul_u32_u24 v{T}, {VROW}, v{T}"); e(f"v_lshrrev_b32 v{T+1}, 4, v1"); e(f"v_mul_u32_u24 v{T+1}, 48, v{T+1}")
    e(f"v_add_u32 v{T}, v{T}, v{T+1}"); e("s_mul_i32 s54, s52, %d" % (64*VROW)); e(f"v_add_u32 v{T}, s54, v{T}")
    e(f"v_mov_b32 v{T+2}, 0x3f80"); e(f"v_mov_b32 v{T+3}, 0")
    for nt in range(4):
        o = L_V + nt*16*VROW
        e(f"ds_write_b128 v{T}, {vr(PKB(nt),4)} offset:{o}")
        e(f"ds_write_b128 v{T}, {vr(PKB(nt)+4,4)} offset:{o+16}")
        e(f"ds_write_b64 v{T}, {vr(PKB(nt)+8,2)} offset:{o+32}")
        e(f"ds_write_b64 v{T}, {vr(T+2,2)} offset:{o+40}")
    e("s_waitcnt lgkmcnt(0)")
    e("s_barrier")
    e("s_mul_i32 s54, s52, 5120")
    e(f"v_lshlrev_b32 v{T}, 4, v1"); e(f"v_add_u32 v{T}, s54, v{T}")
    e(f"v_lshlrev_b32 v{T+1}, 3, v1"); e(f"v_add_u32 v{T+1}, s54, v{T+1}")
    for i in range(2):
        o = L_KH + i*2560
        e(f"ds_read_b128 {vr(PKB(i),4)}, v{T} offset:{o}"); e(f"ds_read_b128 {vr(PKB(i)+4,4)}, v{T} offset:{o+1024}"); e(f"ds_read_b64 {vr(PKB(i)+8,2)}, v{T+1} offset:{o+2048}")
    e("s_waitcnt lgkmcnt(0)")
    e.label(f"{name}_go")
    dmark(e, 1)
    e(f"v_and_b32 v{T}, 15, v1"); e(f"v_mul_u32_u24 v{T}, {PROW}, v{T}"); e(f"v_lshrrev_b32 v{T+1}, 4, v1"); e(f"v_mul_u32_u24 v{T+1}, 80, v{T+1}")
    e(f"v_add_u32 v{T}, v{T}, v{T+1}")
    e("s_lshl_b32 s54, s52, 6"); e("s_lshl_b32 s55, s53, 5"); e("s_add_u32 s54, s54, s55"); e(f"s_mul_i32 s54, s54, {PROW}"); e(f"s_add_u32 s54, s54, {L_PK}")
    e(f"v_add_u32 v{T}, s54, v{T}")
    e(f"s_mov_b32 s98, {f2h(LOG2E)}")
    EM, FT = 144, 164
    PKO = PKB(2)
    OUTS = (56, 76)
    phi_chain(e, PKB(0), OUTS[0]); phi_chain(e, PKB(1), OUTS[1])
    for i in range(2):
        OUT = OUTS[i]
        if i == 0: e("s_nop 0")
        features(e, OUT, OUT, EM, FT)
        for j in range(10):
            e(f"v_cvt_pk_bf16_f32 v{PKO+j}, v{OUT+2*j}, v{OUT+2*j+1}")
        for j in range(10):
            e(f"v_cvt_pk_bf16_f32 v{PKO+10+j}, v{EM+2*j}, v{EM+2*j+1}")
        for j in range(5):
            e(f"ds_write_b128 v{T}, {vr(PKO+4*j,4)} offset:{i*16*PROW + 16*j}")
        e("s_nop 1")
    dmark(e, 2)
    e("s_waitcnt lgkmcnt(0)")
    e("s_barrier")
    e(f"v_lshrrev_b32 v{T}, 4, v1"); e(f"v_lshlrev_b32 v{T}, 3, v{T}"); e(f"v_bfe_u32 v{T+1}, v1, 2, 2"); e(f"v_add_u32 v{T}, v{T}, v{T+1}")
    e(f"v_and_b32 v{T+1}, 3, v1"); e(f"v_lshlrev_b32 v{T+1}, 3, v{T+1}")
    e(f"v_mul_u32_u24 v{T+2}, {VROW}, v{T}"); e(f"v_add_u32 v{T+2}, v{T+2}, v{T+1}"); e("s_mul_i32 s54, s3, 48"); e(f"v_add_u32 v{T+2}, s54, v{T+2}")
    e(f"v_mul_u32_u24 v{T+3}, {PROW}, v{T}"); e(f"v_add_u32 v{T+3}, v{T+3}, v{T+1}"); e("s_mul_i32 s54, s3, 80"); e(f"s_add_u32 s54, s54, {L_PK}"); e(f"v_add_u32 v{T+3}, s54, v{T+3}")
    ACC = 16
    AF, BF = 40, 56
    def rd(ks):
        for mt in range(2):
            for b in range(2):
                e(f"ds_read_b64_tr_b16 v[{AF+(ks%2)*8+4*mt+2*b}:{AF+(ks%2)*8+4*mt+2*b+1}], v{T+2} offset:{L_V + (32*ks+4*b)*VROW + 32*mt}")
        for nt in range(3):
            for b in range(2):
                e(f"ds_read_b64_tr_b16 v[{BF+(ks%2)*12+4*nt+2*b}:{BF+(ks%2)*12+4*nt+2*b+1}], v{T+3} offset:{(32*ks+4*b)*PROW + 32*nt}")
    rd(0)
    for ks in range(4):
        if ks < 3: rd(ks+1); e("s_waitcnt lgkmcnt(10)")
        else: e("s_waitcnt lgkmcnt(0)")
        for mt in range(2):
            for nt in range(3):
                a = ACC + (mt*3+nt)*4
                c = "0" if ks == 0 else vr(a,4)
                e(f"v_mfma_f32_16x16x32_bf16 {vr(a,4)}, {vr(AF+(ks%2)*8+4*mt,4)}, {vr(BF+(ks%2)*12+4*nt,4)}, {c}")
    dmark(e, 3)
    e("s_sub_u32 s54, s40, 2"); e("s_lshl_b32 s54, s54, 2"); e("s_add_u32 s54, s54, s42")
    e("s_lshl_b32 s54, s54, 4"); e("s_add_u32 s54, s54, s41"); e("s_lshl_b32 s54, s54, 2"); e("s_add_u32 s54, s54, s3")
    e("s_mul_i32 s54, s54, 3840"); e(f"s_add_u32 s54, s54, {WS_KVP}")
    e(f"v_and_b32 v{T}, 15, v1"); e(f"v_lshrrev_b32 v{T+1}, 4, v1")
    e(f"v_mul_u32_u24 v{T+2}, 96, v{T}"); e(f"v_lshl_add_u32 v{T+2}, v{T+1}, 4, v{T+2}")
    e(f"v_mov_b32 v{T+3}, 0x7f000000")
    e(f"v_cmp_gt_u32 vcc, 2, v{T+1}"); e("s_nop 1"); e(f"v_cndmask_b32 v{T+4}, v{T+3}, v{T+2}, vcc")
    e(f"v_cmp_gt_u32 vcc, 8, v{T}"); e("s_nop 1"); e(f"v_cndmask_b32 v{T+5}, v{T+3}, v{T+2}, vcc"); e(f"v_cndmask_b32 v{T+6}, v{T+3}, v{T+4}, vcc")
    e("s_nop 4")
    for mt in range(2):
        for nt in range(3):
            a = ACC + (mt*3+nt)*4
            va = {(0,0):T+2,(0,1):T+2,(0,2):T+5,(1,0):T+4,(1,1):T+4,(1,2):T+6}[(mt,nt)]
            e(f"buffer_store_dwordx4 {vr(a,4)}, v{va}, s[16:19], s54 offen offset:{nt*16*96 + mt*64}")

def xw_srds(e):
    e("s_cmp_eq_u32 s40, 0")
    e("s_cselect_b32 s8, s32, s36"); e("s_cselect_b32 s9, s33, s37")
    e("s_cselect_b32 s12, s34, s38"); e("s_cselect_b32 s13, s35, s39")
    e("s_mov_b32 s14, %d" % (640*1920*2))
    e("s_cselect_b32 s14, %d, s14" % (640*640*2))
    e("s_and_b32 s9, s9, 0xffff"); e("s_mov_b32 s10, %d" % (2048*640*2)); e("s_mov_b32 s11, 0x20000")
    e("s_and_b32 s13, s13, 0xffff"); e("s_mov_b32 s15, 0x20000")

def touch_setup(e):
    e("s_waitcnt lgkmcnt(0)")
    xw_srds(e)
    e("s_lshr_b32 s52, s2, 3")
    e("s_mul_i32 s53, s52, 20"); e("v_add_u32 v186, s53, v1")
    e("v_mul_u32_u24 v187, 6554, v186"); e("v_lshrrev_b32 v187, 16, v187"); e("v_mul_u32_u24 v188, 10, v187"); e("v_sub_u32 v186, v186, v188")
    e("v_mul_lo_u32 v187, v187, s44")
    e("s_sub_u32 s54, s40, 2"); e("s_mul_i32 s54, s54, 640"); e("s_add_u32 s55, s54, 1280"); e("s_add_u32 s54, s54, 1920")
    e("s_cmp_ge_u32 s40, 2"); e("s_cselect_b32 s55, s55, 0"); e("s_cselect_b32 s54, s54, 0")
    e("v_cmp_gt_u32 vcc, 5, v186"); e("v_mov_b32 v188, s54"); e("v_mov_b32 v189, s55"); e("v_cndmask_b32 v188, v188, v189, vcc")
    e("v_lshl_add_u32 v186, v186, 7, v188"); e("v_add_u32 v186, v186, v187")
    e("v_cmp_gt_u32 vcc, 20, v1"); e("v_mov_b32 v187, 0x7f000000"); e("s_nop 0"); e("v_cndmask_b32 v186, v187, v186, vcc")
    e("s_lshr_b32 s53, s2, 2"); e("s_and_b32 s53, s53, 1"); e("s_lshl_b32 s53, s53, 10"); e("s_lshl_b32 s54, s52, 5"); e("s_add_u32 s53, s53, s54"); e("s_mul_i32 s53, s53, 1280")
    e("v_mul_u32_u24 v188, 1280, v1"); e("v_cmp_gt_u32 vcc, 32, v1"); e("s_nop 1"); e("v_cndmask_b32 v188, v187, v188, vcc")

def gen(e, name="proj_kernel"):
    G = Gemm(STG_B, NSTG, 10, 4)
    kernel_header(e, name)
    e("s_cmp_ge_u32 s2, 256")
    e(f"s_cbranch_scc1 {name}_end")
    e("s_load_dwordx4 s[32:35], s[0:1], 0")
    e("s_load_dwordx4 s[36:39], s[0:1], 40")
    e("s_load_dwordx4 s[84:87], s[0:1], 16")
    e("s_load_dwordx2 s[88:89], s[0:1], 56")
    e("s_load_dwordx2 s[4:5], s[0:1], 88")
    if not DIAG: ST.mark(e)
    e("v_lshrrev_b32 v2, 6, v0")
    e("v_and_b32 v1, 63, v0")
    e("s_and_b32 s40, s2, 3")
    e("v_readfirstlane_b32 s3, v2")
    e("s_lshr_b32 s41, s2, 2"); e("s_and_b32 s41, s41, 1")
    e("s_lshr_b32 s42, s2, 3")
    e("s_and_b32 s43, s42, 7"); e("s_lshl_b32 s41, s41, 3"); e("s_add_u32 s41, s41, s43")
    e("s_lshr_b32 s42, s42, 3")
    e("s_cmp_eq_u32 s40, 0")
    e("s_movk_i32 s44, 3840")
    e("s_cselect_b32 s44, 1280, s44")
    if "touch" in VAR: touch_setup(e)
    e("s_cmp_lt_u32 s3, 4")
    e(f"s_cbranch_scc1 {name}_compute")
    e("s_sub_u32 s3, s3, 4")
    if "touch" in VAR:
        e("s_and_b32 s54, s3, 1"); e("s_lshl_b32 s55, s54, 7"); e("s_add_u32 s55, s55, s53"); e("s_lshl_b32 s56, s44, 6"); e("s_mul_i32 s54, s54, s56")
        e("buffer_load_dword v190, v188, s[8:11], s55 offen"); e("buffer_load_dword v191, v186, s[12:15], s54 offen")
    G.loader_setup(e, 44)
    e(f"v_lshlrev_b32 v{G.LT+8}, 4, v1")
    e("s_lshr_b32 s45, s3, 1")
    e("s_mul_i32 s46, s42, 160"); e("s_mul_i32 s47, s45, 80"); e("s_add_u32 s46, s46, s47")
    e("s_sub_u32 s47, s40, 2"); e("s_lshl_b32 s47, s47, 2"); e("s_add_u32 s47, s47, s42"); e("s_mov_b32 s59, s47"); e("s_mul_i32 s47, s47, 80")
    e("s_mul_i32 s48, s45, 640"); e("s_add_u32 s47, s47, s48"); e("s_add_u32 s47, s47, 640")
    e("s_cmp_ge_u32 s40, 2")
    e("s_cselect_b32 s46, s47, s46")
    e("s_lshl_b32 s20, s41, 7"); e("s_lshl_b32 s49, s3, 5"); e("s_add_u32 s20, s20, s49"); e("s_mul_i32 s20, s20, 1280")
    e("s_and_b32 s49, s3, 1"); e("s_lshl_b32 s49, s49, 5"); e("s_mul_i32 s21, s49, s44"); e("s_lshl_b32 s49, s46, 1"); e("s_add_u32 s21, s21, s49")
    e("s_lshl_b32 s22, s44, 6")
    e("s_lshl_b32 s24, s3, 12")
    e("s_lshr_b32 s49, s3, 1"); e("s_mul_i32 s25, s49, 10240"); e("s_and_b32 s49, s3, 1"); e("s_mul_i32 s49, s49, 5120")
    e("s_add_u32 s25, s25, s49"); e(f"s_add_u32 s25, s25, {W_OFF}")
    if "norot" not in VAR:
        e("s_mul_i32 s23, s42, 3"); e("s_add_u32 s23, s23, s43"); e("s_cmp_ge_u32 s23, 10"); e("s_cselect_b32 s49, 10, 0"); e("s_sub_u32 s23, s23, s49")
    else:
        e("s_mov_b32 s23, 0")
    e("s_mul_i32 s57, s42, 6400"); e("s_mul_i32 s58, s59, 3200"); e("s_cmp_ge_u32 s40, 2"); e("s_cselect_b32 s57, s58, s57")
    e("s_lshl_b32 s58, s3, 11"); e("s_add_u32 s57, s57, s58"); e(f"s_add_u32 s58, s58, {L_PHI}")
    e("s_waitcnt lgkmcnt(0)")
    xw_srds(e)
    ST2.n = 0
    ST2.mark(e)
    if "touch" in VAR and "nol0" not in VAR: e("s_waitcnt vmcnt(0)")
    ST2.mark(e)
    make_srd(e, 16, 88, 25600)
    e("s_mov_b32 m0, s58"); e("s_nop 0")
    e(f"buffer_load_dwordx4 v{G.LT+8}, s[16:19], s57 offen lds")
    e(f"buffer_load_dwordx4 v{G.LT+8}, s[16:19], s57 offen offset:1024 lds")
    def tail(e, c, what):
        if what == "count":
            return None
        if c in (6, 7):
            lab = f"{name}_tx{c}"
            e("s_cmp_lg_u32 s40, 0"); e(f"s_cbranch_scc1 {lab}")
            make_srd(e, 16, 84 if c == 6 else 86, 25600)
            e("s_mul_i32 s57, s3, 7168"); e(f"s_add_u32 s58, s57, {L_WK if c == 6 else L_WV}")
            for j in range(7):
                e("s_mov_b32 m0, s58"); e("s_add_u32 s58, s58, 1024")
                e(f"buffer_load_dwordx4 v{G.LT+8}, s[16:19], s57 offen lds"); e("s_add_u32 s57, s57, 1024")
            e.label(lab)
    tail.extra = lambda c: {7: 7, 8: 14}.get(c, 0)
    G.loader_main(e, name, 10, tail, ST2)
    if ST2.en:
        make_srd(e, 76, 4, WS_BYTES)
        e("s_add_u32 s3, s3, 4")
        ST2.flush(e, 0, 40, 3, "s[76:79]")
    e("s_endpgm")
    e.label(f"{name}_compute")
    if "codepf" in VAR:
        e("s_cmp_lg_u32 s3, 0"); e(f"s_cbranch_scc1 {name}_nocp")
        e("s_getpc_b64 s[52:53]")
        e.label(f"{name}_pc")
        e(f"s_sub_u32 s52, s52, ({name}_pc - {name})"); e("s_subb_u32 s53, s53, 0")
        e("s_lshr_b32 s54, s2, 3"); e("s_lshl_b32 s54, s54, 10")
        e("v_lshlrev_b32 v186, 7, v1"); e("v_add_u32 v186, s54, v186")
        e("v_mov_b32 v187, s53"); e("v_add_co_u32 v186, vcc, s52, v186"); e("s_nop 1"); e("v_addc_co_u32 v187, vcc, 0, v187, vcc")
        e("s_mov_b64 exec, 0xff")
        e("global_load_dword v188, v[186:187], off")
        e("s_mov_b64 exec, -1")
        e.label(f"{name}_nocp")
    e("s_lshr_b32 s49, s3, 1"); e("s_lshl_b32 s50, s49, 13")
    e("s_and_b32 s49, s3, 1"); e("s_mul_i32 s51, s49, 10240"); e(f"s_add_u32 s51, s51, {W_OFF}")
    if "touch" in VAR:
        e("s_add_u32 s54, s3, 2"); e("s_lshl_b32 s55, s54, 7"); e("s_add_u32 s55, s55, s53"); e("s_lshl_b32 s56, s44, 6"); e("s_mul_i32 s54, s54, s56")
        e("s_sleep %d" % int(os.environ.get("SLP", "8")))
        for i in range(2):
            e(f"buffer_load_dword v{190+2*i}, v188, s[8:11], s55 offen"); e(f"buffer_load_dword v{191+2*i}, v186, s[12:15], s54 offen")
            if i == 0: e("s_add_u32 s55, s55, 512"); e("s_lshl_b32 s57, s56, 2"); e("s_add_u32 s54, s54, s57")
    if not DIAG: ST.mark(e)
    G.compute_setup(e, 50, 51)
    e(f"v_lshlrev_b32 v{G.T}, 4, v1"); e(f"v_add_u32 v{G.T}, {L_ZERO}, v{G.T}")
    for r in range(4): e(f"v_mov_b32 v{96+r}, 0")
    e(f"ds_write_b128 v{G.T}, v[96:99]")
    e("s_waitcnt lgkmcnt(0)")
    def pre(e):
        e("s_cmp_eq_u32 s40, 0"); e(f"s_cbranch_scc1 {name}_prea")
        e("s_and_b32 s50, s3, 1"); e("s_lshl_b32 s50, s50, 2"); e("s_cmp_ge_u32 s40, 2"); e("s_cselect_b32 s50, 0, s50"); e(f"s_mov_b32 s99, {L_PHI}")
        phi_addr(e, G, G.T+6, 50)
        phi_frags(e, G.T+6, FRB)
        e(f"s_branch {name}_prej")
        e.label(f"{name}_prea")
        role_a_pre(e, G)
        e.label(f"{name}_prej")
    G.compute_main(e, name, None if DIAG else ST, pre)
    if DIAG: dmark(e, 0)
    else: ST.mark(e)
    e("s_barrier")
    make_srd(e, 16, 4, WS_BYTES)
    e("s_nop 4")
    e("s_or_b32 s50, s2, s3"); e("s_cmp_lg_u32 s50, 0"); e(f"s_cbranch_scc1 {name}_nz")
    e("v_lshlrev_b32 v184, 4, v1"); e("v_mov_b32 v186, 0"); e("v_mov_b32 v187, 0"); e("v_mov_b32 v188, 0"); e("v_mov_b32 v189, 0")
    e(f"s_mov_b32 s50, {WS_CNT}")
    e("buffer_store_dwordx4 v[186:189], v184, s[16:19], s50 offen")
    e.label(f"{name}_nz")
    e("s_cmp_eq_u32 s40, 1"); e(f"s_cbranch_scc1 {name}_rbq")
    e("s_cmp_eq_u32 s40, 0"); e(f"s_cbranch_scc1 {name}_ra")
    role_bkv(e, G, name)
    e(f"s_branch {name}_fin")
    e.label(f"{name}_ra")
    e(f"s_mov_b32 s99, {L_WK}"); e(f"s_mov_b32 s97, {L_WV}")
    role_a(e, G, name)
    e(f"s_branch {name}_fin")
    e.label(f"{name}_rbq")
    role_bq(e, G, name)
    e.label(f"{name}_fin")
    e("s_waitcnt vmcnt(0)")
    if DIAG: dmark(e, 4)
    else: ST.mark(e)
    ST.flush(e, 0, G.T, 3, "s[16:19]")
    e("s_endpgm")
    e.label(f"{name}_end")
    e("s_endpgm")
    return 256, LDS_K1
if __name__ == "__main__":
    import build
    build.build([("proj_kernel", gen)], "k1test.s", [("proj_kernel", 256, 512, LDS_K1)])
```

```python
from common import *
from gemm2 import Gemm
from stamp import RStamps
import k1, k2r, k3, os
VAR = os.environ.get("VAR", "")
STEN = os.environ.get("STAMP") == "1"
LDS_MEGA = max(k1.LDS_K1, k2r.LDS_K2, k3.LDS_K3)
SW = 100
DBG_A, DBG_B = 0, 128
CNT_KV, CNT_OA, CNT_OB, CNT_W, CNT_B = WS_CNT, WS_CNT + 0x400, WS_CNT + 0xC00, WS_CNT + 0x1400, WS_CNT + 0x1C00
L_KM = k2r.LDS_B + 19968
L_FLAG = k2r.LDS_Q + 10240
WT = os.environ.get("WT", "sc0 sc1")

NON = 80
FLG_KV, FLG_B, FLG_SL, FLG_W, FLG_O = WS_CNT, WS_CNT + 0x2000, WS_CNT + 0x8000, WS_CNT + 0x10000, WS_CNT + 0x18000

def setflag(e, s_off, srd="s[8:11]"):
    e("s_mov_b64 exec, 1"); e(f"v_mov_b32 v44, s{s_off}"); e(f"v_mov_b32 v45, s{NON}")
    e(f"buffer_store_dword v45, v44, {srd}, 0 offen")
    e("s_mov_b64 exec, -1")

def pollset(e, lab, voff, nlanes, srd="s[8:11]"):
    m = (1 << nlanes) - 1
    if nlanes == 64: e("s_mov_b64 exec, -1")
    elif nlanes > 32: raise Exception
    else: e(f"s_mov_b32 exec_lo, {hex(m)}"); e("s_mov_b32 exec_hi, 0")
    e("s_mov_b32 s30, 0")
    e.label(lab)
    e(f"buffer_load_dword v47, v{voff}, {srd}, 0 offen sc1")
    e("s_waitcnt vmcnt(0)")
    e(f"v_cmp_eq_u32 vcc, s{NON}, v47")
    e("s_add_u32 s30, s30, 1")
    e("s_cmp_eq_u64 vcc, exec"); e(f"s_cbranch_scc1 {lab}_d")
    e("s_cmp_gt_u32 s30, 1000000"); e(f"s_cbranch_scc1 {lab}_d")
    e("s_sleep 2"); e(f"s_branch {lab}")
    e.label(f"{lab}_d")
    e("s_mov_b64 exec, -1")

def get_nonce(e, lab):
    e("v_mov_b32 v46, 0")
    e("s_mov_b64 exec, 1")
    e("s_mov_b32 s30, 0")
    e.label(lab)
    e("buffer_load_dword v47, v46, s[44:47], 0 offen sc1")
    e("s_waitcnt vmcnt(0)")
    e(f"v_readfirstlane_b32 s{NON}, v47")
    e("s_add_u32 s30, s30, 1")
    e("s_cmp_gt_u32 s30, 1000000"); e(f"s_cbranch_scc1 {lab}_d")
    e(f"s_cmp_lg_u32 s{NON}, 0"); e(f"s_cbranch_scc1 {lab}_d")
    e("s_sleep 3"); e(f"s_branch {lab}")
    e.label(f"{lab}_d")
    e("s_mov_b64 exec, -1")

def wait_prefill(e, lab):
    e("v_lshlrev_b32 v46, 2, v1"); e("v_add_u32 v46, 64, v46"); e("v_mov_b32 v43, 0x01010101")
    e("s_mov_b32 exec_lo, 0xffff"); e("s_mov_b32 exec_hi, 0")
    e("s_mov_b32 s30, 0")
    e.label(lab)
    e("buffer_load_dword v47, v46, s[44:47], 0 offen sc1")
    e("s_waitcnt vmcnt(0)")
    e("v_cmp_eq_u32 vcc, v47, v43")
    e("s_add_u32 s30, s30, 1")
    e("s_cmp_eq_u64 vcc, exec"); e(f"s_cbranch_scc1 {lab}_d")
    e("s_cmp_gt_u32 s30, 1000000"); e(f"s_cbranch_scc1 {lab}_d")
    e("s_sleep 3"); e(f"s_branch {lab}")
    e.label(f"{lab}_d")
    e("s_mov_b64 exec, -1")

def p1_ids(e):
    if os.environ.get("MAP", "old") == "old":
        e("s_and_b32 s40, s2, 3")
        e("s_lshr_b32 s41, s2, 2"); e("s_and_b32 s41, s41, 1")
        e("s_lshr_b32 s42, s2, 3")
        e("s_and_b32 s43, s42, 7"); e("s_lshl_b32 s41, s41, 3"); e("s_add_u32 s41, s41, s43")
        e("s_lshr_b32 s42, s42, 3")
        e("s_mul_i32 s45, s42, 3"); e("s_add_u32 s43, s43, s45"); e("s_cmp_ge_u32 s43, 10"); e("s_cselect_b32 s45, 10, 0"); e("s_sub_u32 s43, s43, s45")
    else:
        e("s_and_b32 s45, s2, 1")
        e("s_lshr_b32 s41, s2, 1"); e("s_and_b32 s41, s41, 3"); e("s_lshl_b32 s41, s41, 2")
        e("s_lshr_b32 s46, s2, 3"); e("s_and_b32 s47, s46, 3"); e("s_add_u32 s41, s41, s47")
        e("s_lshr_b32 s46, s46, 2")
        e("s_lshr_b32 s40, s46, 1")
        e("s_add_u32 s48, s45, 2"); e("s_cmp_ge_u32 s40, 2"); e("s_cselect_b32 s40, s48, s40")
        e("s_lshl_b32 s48, s45, 1"); e("s_and_b32 s42, s46, 1"); e("s_add_u32 s42, s42, s48")
        e("s_sub_u32 s48, s46, 4"); e("s_cmp_ge_u32 s46, 4"); e("s_cselect_b32 s42, s48, s42")
        e("s_mul_i32 s43, s47, 5"); e("s_lshr_b32 s43, s43, 1"); e("s_add_u32 s43, s43, s46")
        e("s_cmp_ge_u32 s43, 10"); e("s_cselect_b32 s48, 10, 0"); e("s_sub_u32 s43, s43, s48")
    e("s_cmp_eq_u32 s40, 0"); e("s_movk_i32 s44, 3840"); e("s_cselect_b32 s44, 1280, s44")

def p1_loader(e, G, name):
    K = k1
    e(f"s_sub_u32 s3, s{SW}, 4")
    G.loader_setup(e, 44)
    e(f"v_lshlrev_b32 v{G.LT+8}, 4, v1")
    e("s_lshr_b32 s45, s3, 1")
    e("s_mul_i32 s46, s42, 160"); e("s_mul_i32 s47, s45, 80"); e("s_add_u32 s46, s46, s47")
    e("s_sub_u32 s47, s40, 2"); e("s_lshl_b32 s47, s47, 2"); e("s_add_u32 s47, s47, s42"); e("s_mov_b32 s59, s47"); e("s_mul_i32 s47, s47, 80")
    e("s_mul_i32 s48, s45, 640"); e("s_add_u32 s47, s47, s48"); e("s_add_u32 s47, s47, 640")
    e("s_cmp_ge_u32 s40, 2"); e("s_cselect_b32 s46, s47, s46")
    e("s_lshl_b32 s20, s41, 7"); e("s_lshl_b32 s49, s3, 5"); e("s_add_u32 s20, s20, s49"); e("s_mul_i32 s20, s20, 1280")
    e("s_and_b32 s49, s3, 1"); e("s_lshl_b32 s49, s49, 5"); e("s_mul_i32 s21, s49, s44"); e("s_lshl_b32 s49, s46, 1"); e("s_add_u32 s21, s21, s49")
    e("s_lshl_b32 s22, s44, 6")
    e("s_lshl_b32 s24, s3, 12")
    e("s_lshr_b32 s49, s3, 1"); e("s_mul_i32 s25, s49, 10240"); e("s_and_b32 s49, s3, 1"); e("s_mul_i32 s49, s49, 5120")
    e("s_add_u32 s25, s25, s49"); e(f"s_add_u32 s25, s25, {K.W_OFF}")
    e("s_mov_b32 s23, s43")
    e("s_mul_i32 s57, s42, 6400"); e("s_mul_i32 s58, s59, 3200"); e("s_cmp_ge_u32 s40, 2"); e("s_cselect_b32 s57, s58, s57")
    e("s_lshl_b32 s58, s3, 11"); e("s_add_u32 s57, s57, s58"); e(f"s_add_u32 s58, s58, {K.L_PHI}")
    e("s_waitcnt lgkmcnt(0)")
    K.xw_srds(e)
    make_srd(e, 16, 88, 25600)
    e("s_mov_b32 m0, s58"); e("s_nop 0")
    e(f"buffer_load_dwordx4 v{G.LT+8}, s[16:19], s57 offen lds")
    e(f"buffer_load_dwordx4 v{G.LT+8}, s[16:19], s57 offen offset:1024 lds")
    make_srd(e, 44, 6, 256)
    e("s_or_b32 s57, s2, s3"); e("s_cmp_lg_u32 s57, 0"); e(f"s_cbranch_scc1 {name}_nnon")
    e("s_memrealtime s[56:57]"); e("s_waitcnt lgkmcnt(0)"); e("s_or_b32 s56, s56, 1")
    e("s_mov_b64 exec, 1"); e("v_mov_b32 v44, 0"); e("v_mov_b32 v45, s56")
    e("buffer_store_dword v45, v44, s[44:47], 0 offen"); e("s_mov_b64 exec, -1")
    e.label(f"{name}_nnon")
    e("s_cmp_lg_u32 s40, 1"); e(f"s_cbranch_scc1 {name}_nwt"); e("s_cmp_lg_u32 s3, 0"); e(f"s_cbranch_scc1 {name}_nwt")
    make_srd(e, 48, 84, 25600); make_srd(e, 52, 86, 25600)
    e("s_lshr_b32 s57, s2, 3"); e("s_and_b32 s57, s57, 7"); e("s_mul_i32 s57, s57, 3200")
    e("v_lshlrev_b32 v44, 7, v1"); e("v_mov_b32 v45, 0x7f000000"); e("v_cmp_gt_u32 vcc, 25, v1"); e("s_nop 1"); e("v_cndmask_b32 v44, v45, v44, vcc")
    e("buffer_load_dword v46, v44, s[48:51], s57 offen"); e("buffer_load_dword v47, v44, s[52:55], s57 offen")
    e.label(f"{name}_nwt")
    def tail(e, c, what):
        if c in (6, 7):
            lab = f"{name}_tx{c}"
            e("s_cmp_lg_u32 s40, 1"); e(f"s_cbranch_scc1 {lab}")
            make_srd(e, 16, 84 if c == 6 else 86, 25600)
            e("s_mul_i32 s57, s3, 7168"); e(f"s_add_u32 s58, s57, {K.L_WK if c == 6 else K.L_WV}")
            for j in range(7):
                e("s_mov_b32 m0, s58"); e("s_add_u32 s58, s58, 1024")
                e(f"buffer_load_dwordx4 v{G.LT+8}, s[16:19], s57 offen lds"); e("s_add_u32 s57, s57, 1024")
            if c == 7: K.kv_x_loads(e, G, 196)
            e.label(lab)
        if c == 8:
            e("s_or_b32 s57, s40, s3"); e("s_cmp_lg_u32 s57, 0"); e(f"s_cbranch_scc1 {name}_nf1")
            e("s_lshl_b32 s57, s41, 2"); e("s_add_u32 s57, s57, s42"); e("s_add_u32 s57, s57, 64")
            e("s_mov_b64 exec, 1"); e("v_mov_b32 v44, s57"); e("v_mov_b32 v45, 1")
            e("buffer_store_byte v45, v44, s[44:47], 0 offen"); e("s_mov_b64 exec, -1")
            e.label(f"{name}_nf1")
    tail.extra = lambda c: {7: 7, 8: 24}.get(c, 0)
    G.loader_main(e, name + "_p1", 10, tail)
    get_nonce(e, f"{name}_pk")
    e("s_waitcnt vmcnt(0)")
    e("s_barrier")
    e("s_cmp_lg_u32 s40, 1"); e(f"s_cbranch_scc1 {name}_lnkv")
    make_srd(e, 16, 4, WS_BYTES)
    e(f"s_mov_b32 s99, {K.L_WK}"); e(f"s_mov_b32 s97, {K.L_WV}")
    K.kv_part(e, G, name, 196, [96, 112, 128, 144, 236], 48, 0, 96)
    e("s_waitcnt vmcnt(0)")
    e("s_barrier")
    e("s_cmp_lg_u32 s3, 0"); e(f"s_cbranch_scc1 {name}_nf2")
    e("s_lshl_b32 s57, s41, 2"); e("s_add_u32 s57, s57, s42"); e("s_lshl_b32 s57, s57, 7"); e(f"s_add_u32 s57, s57, {FLG_KV}")
    setflag(e, 57, "s[16:19]")
    e.label(f"{name}_nf2")
    e("s_barrier")
    e(f"s_branch {name}_lp2")
    e.label(f"{name}_lnkv")
    for i in range(3): e("s_barrier")
    e.label(f"{name}_lp2")

def p1_compute(e, G, name, ST):
    K = k1
    e(f"s_mov_b32 s3, s{SW}")
    e("s_lshr_b32 s49, s3, 1"); e("s_lshl_b32 s50, s49, 13")
    e("s_and_b32 s49, s3, 1"); e("s_mul_i32 s51, s49, 10240"); e(f"s_add_u32 s51, s51, {K.W_OFF}")
    e("s_waitcnt lgkmcnt(0)")
    make_srd(e, 16, 4, WS_BYTES)
    G.compute_setup(e, 50, 51)
    e(f"v_lshlrev_b32 v{G.T}, 4, v1"); e(f"v_add_u32 v{G.T}, {K.L_ZERO}, v{G.T}")
    for r in range(4): e(f"v_mov_b32 v{96+r}, 0")
    e(f"ds_write_b128 v{G.T}, v[96:99]")
    e("s_waitcnt lgkmcnt(0)")
    def inloop(e):
        e("s_cmp_lg_u32 s27, 2"); e(f"s_cbranch_scc1 {name}_nw3"); e("s_waitcnt vmcnt(0)"); e.label(f"{name}_nw3")
    def pre(e):
        e("s_cmp_eq_u32 s40, 0"); e(f"s_cbranch_scc1 {name}_prej")
        e("s_and_b32 s50, s3, 1"); e("s_lshl_b32 s50, s50, 2"); e("s_cmp_ge_u32 s40, 2"); e("s_cselect_b32 s50, 0, s50"); e(f"s_mov_b32 s99, {K.L_PHI}")
        K.phi_addr(e, G, G.T+6, 50)
        K.phi_frags(e, G.T+6, K.FRB)
        e(f"s_branch {name}_prek")
        e.label(f"{name}_prej")
        K.q_prefill(e, G)
        e.label(f"{name}_prek")
    G.compute_main(e, name + "_p1", ST, pre, None, inloop)
    ST.mark(e)
    e("s_cmp_eq_u32 s40, 0"); e(f"s_cbranch_scc1 {name}_ra")
    e("s_cmp_eq_u32 s40, 1"); e(f"s_cbranch_scc1 {name}_rbq")
    e("s_barrier")
    K.role_bkv(e, G, name)
    e.label(f"{name}_fin")
    ST.mark(e)
    e("s_barrier")

def p1_other_roles(e, G, name):
    K = k1
    e.label(f"{name}_ra")
    K.q_part(e, G)
    e("s_barrier"); e("s_barrier"); e("s_barrier")
    e(f"s_branch {name}_fin")
    e.label(f"{name}_rbq")
    K.role_bq(e, G, name, lambda e: e("s_barrier"))
    e("s_barrier"); e("s_barrier")
    e(f"s_branch {name}_fin")

def p2_common(e):
    K = k2r
    e("v_mov_b32 v2, v1")
    e("s_mov_b32 s38, -1"); e("s_mov_b32 s39, 0")
    e(f"v_lshlrev_b32 v{K.L16}, 4, v2"); e(f"v_lshlrev_b32 v{K.L8}, 3, v2")
    make_srd(e, 8, 4, WS_BYTES)

def p2_helper(e, name, H):
    K = k2r; L16, L8, TILE_B = K.L16, K.L8, K.TILE_B
    L_KVF, L_BZ, L_OB = K.L_KVF, K.L_BZ, K.L_OB
    H.mark(e)
    e(f"s_sub_u32 s3, s{SW}, 4")
    p2_common(e)
    e("s_setprio 2")
    def tiles(n):
        for j in range(n):
            K.dma_tile(e, 20, 21)
            e(f"s_add_u32 s20, s20, {TILE_B}"); e(f"s_add_u32 s21, s21, {TILE_B}")
    e("s_cmp_lg_u32 s3, 0"); e(f"s_cbranch_scc1 {name}_h0j")
    e(f"v_lshlrev_b32 v46, 7, v1"); e(f"v_add_u32 v46, {FLG_KV}, v46")
    pollset(e, f"{name}_pa", 46, 64)
    e.label(f"{name}_h0j")
    e("s_cmp_lg_u32 s3, 1"); e(f"s_cbranch_scc1 {name}_h1j")
    wait_prefill(e, f"{name}_pf")
    e.label(f"{name}_h1j")
    H.mark(e)
    e("s_barrier")
    H.mark(e)
    e(f"s_mul_i32 s20, s3, {16*TILE_B}"); e(f"s_add_u32 s20, s20, {WS_KV}")
    e(f"s_mul_i32 s22, s3, {K.RING_W}"); e("s_mov_b32 s21, s22")
    tiles(2)
    e(f"s_mov_b32 m0, {L_KM}"); e(f"s_mov_b32 s12, {WS_KMAX}"); e("s_mov_b64 exec, s[38:39]")
    e(f"buffer_load_dwordx4 v{L16}, s[8:11], s12 offen lds"); e("s_mov_b64 exec, -1")
    e("s_lshr_b32 s12, s2, 2"); e("s_lshl_b32 s12, s12, 5"); e("s_and_b32 s13, s2, 3"); e("s_lshl_b32 s13, s13, 3"); e("s_add_u32 s12, s12, s13")
    e(f"s_mul_i32 s12, s12, {K.QT_B}"); e(f"s_add_u32 s12, s12, {WS_Q}"); e("s_mul_i32 s13, s3, 3072"); e("s_add_u32 s12, s12, s13")
    e(f"s_add_u32 s13, s13, {K.LDS_Q}"); e(f"v_add_u32 v3, s13, v{L16}")
    H.mark(e)
    e("s_mov_b32 s30, 0")
    e.label(f"{name}_pq")
    for j in range(3): e(f"buffer_load_dwordx4 v[{8+4*j}:{11+4*j}], v{L16}, s[8:11], s12 offen offset:{1024*j} sc1")
    e("s_waitcnt vmcnt(0)")
    e("v_max_u32 v20, v8, v9")
    for r in range(10, 20): e(f"v_max_u32 v20, v20, v{r}")
    e("v_cmp_eq_u32 vcc, -1, v20")
    e("s_add_u32 s30, s30, 1")
    e("s_cmp_eq_u64 vcc, 0"); e(f"s_cbranch_scc1 {name}_pqd")
    e("s_cmp_gt_u32 s30, 1000000"); e(f"s_cbranch_scc1 {name}_pqd")
    e("s_sleep 1"); e(f"s_branch {name}_pq")
    e.label(f"{name}_pqd")
    for j in range(3): e(f"ds_write_b128 v3, v[{8+4*j}:{11+4*j}] offset:{1024*j}")
    e("s_waitcnt lgkmcnt(0)")
    H.mark(e)
    e("s_barrier")
    H.mark(e)
    e("s_mov_b32 s25, 6")
    e.label(f"{name}_hl0")
    tiles(1)
    e("s_sub_u32 s25, s25, 1"); e("s_cmp_lg_u32 s25, 0"); e(f"s_cbranch_scc1 {name}_hl0")
    e("s_cmp_lg_u32 s3, 0"); e(f"s_cbranch_scc1 {name}_h0b")
    e("s_cmp_eq_u32 s40, 0"); e(f"s_cbranch_scc1 {name}_h0b")
    e("s_sub_u32 s26, s40, 2"); e("s_lshl_b32 s26, s26, 2"); e("s_add_u32 s26, s26, s42"); e("s_lshl_b32 s26, s26, 4"); e("s_add_u32 s26, s26, s41")
    e("s_lshl_b32 s27, s41, 2"); e("s_add_u32 s27, s27, s42"); e("s_add_u32 s27, s27, 128")
    e("s_cmp_eq_u32 s40, 1"); e("s_cselect_b32 s26, s27, s26"); e("s_lshl_b32 s26, s26, 7"); e(f"s_add_u32 s26, s26, {FLG_B}")
    setflag(e, 26)
    e.label(f"{name}_h0b")
    for r in range(4): e(f"v_mov_b32 v{4+r}, 0")
    e(f"s_lshl_b32 s29, s3, 9"); e(f"s_add_u32 s29, s29, {L_BZ}"); e(f"v_add_u32 v40, s29, v{L8}"); e("ds_write_b64 v40, v[4:5]")
    e("s_waitcnt vmcnt(8) lgkmcnt(0)")
    e("s_barrier")
    e("s_mov_b32 s21, s22"); tiles(2)
    e("s_and_b32 s26, s2, 7"); e("s_lshr_b32 s27, s2, 3")
    e("s_lshl_b32 s28, s26, 4"); e("v_add_u32 v46, s28, v1")
    e("s_lshr_b32 s28, s27, 1"); e("s_lshl_b32 s28, s28, 2"); e("s_lshr_b32 s29, s26, 1"); e("s_add_u32 s28, s28, s29"); e("s_add_u32 s28, s28, 128")
    e("v_mov_b32 v45, s28"); e("v_cmp_eq_u32 vcc, 16, v1"); e("s_nop 1"); e("v_cndmask_b32 v46, v46, v45, vcc")
    e("v_lshlrev_b32 v46, 7, v46"); e(f"v_add_u32 v46, {FLG_B}, v46")
    pollset(e, f"{name}_pb", 46, 17)
    e("s_and_b32 s26, s2, 7"); e("s_lshr_b32 s27, s2, 3")
    e(f"s_mul_i32 s28, s26, {16*15360}"); e("s_mul_i32 s29, s27, 480"); e("s_add_u32 s28, s28, s29"); e("s_mul_i32 s29, s3, 120"); e("s_add_u32 s28, s28, s29")
    e(f"s_add_u32 s28, s28, {WS_KVP}")
    e("v_mov_b32 v3, 0x7f000000"); e("v_cmp_gt_u32 vcc, 15, v2"); e("s_nop 1"); e(f"v_cndmask_b32 v3, v3, v{L8}, vcc")
    for p in range(16):
        e(f"buffer_load_dwordx2 v[{8+2*p}:{9+2*p}], v3, s[8:11], s28 offen")
        if p < 15: e("s_add_u32 s28, s28, 15360")
    e("s_lshl_b32 s28, s27, 2"); e("s_add_u32 s28, s28, s3"); e("s_lshl_b32 s28, s28, 3"); e("s_add_u32 s28, s28, s26"); e("s_mul_i32 s28, s28, 2560")
    e(f"s_add_u32 s28, s28, {WS_PQ}")
    e(f"buffer_load_dwordx4 v[48:51], v{L16}, s[8:11], s28 offen")
    e(f"buffer_load_dwordx4 v[52:55], v{L16}, s[8:11], s28 offen offset:1024")
    e(f"buffer_load_dwordx2 v[56:57], v{L8}, s[8:11], s28 offen offset:2048")
    e("s_waitcnt vmcnt(3)")
    for p in range(1, 16):
        e(f"v_add_f32 v8, v8, v{8+2*p}"); e(f"v_add_f32 v9, v9, v{9+2*p}")
    e("v_cvt_pk_bf16_f32 v8, v8, v9")
    e("s_mul_i32 s28, s26, 7680"); e("s_mul_i32 s29, s27, 240"); e("s_add_u32 s28, s28, s29"); e("s_mul_i32 s29, s3, 60"); e("s_add_u32 s28, s28, s29")
    e(f"s_add_u32 s28, s28, {WS_KVF}")
    e("v_mov_b32 v3, 0x7f000000"); e("v_lshlrev_b32 v4, 2, v2"); e("v_cmp_gt_u32 vcc, 15, v2"); e("s_nop 1"); e("v_cndmask_b32 v3, v3, v4, vcc")
    e("buffer_store_dword v8, v3, s[8:11], s28 offen")
    e("s_waitcnt vmcnt(0)")
    e("s_barrier")

def p2_helper_rest(e, name, p3pre):
    K = k2r; L16, L8, TILE_B = K.L16, K.L8, K.TILE_B
    t = E(); t.sf = e.sf
    k2r.helper(t, name)
    txt = "\n".join(t.l)
    i0 = txt.index(f"{name}_noat:") + len(f"{name}_noat:")
    i1 = txt.index("s_mov_b32 s30, 0", i0)
    i2 = txt.index(f"{name}_pdone:") + len(f"{name}_pdone:")
    i3 = txt.index("s_barrier", txt.index("s_waitcnt vmcnt(3)", i2))
    e("s_cmp_lg_u32 s3, 0"); e(f"s_cbranch_scc1 {name}_nsl")
    e("s_lshl_b32 s29, s2, 7"); e(f"s_add_u32 s29, s29, {FLG_SL}")
    setflag(e, 29)
    e.label(f"{name}_nsl")
    e.l += txt[i0:i1].split("\n")
    e("v_lshlrev_b32 v46, 3, v1"); e("v_add_u32 v46, s26, v46"); e("v_lshlrev_b32 v46, 7, v46"); e(f"v_add_u32 v46, {FLG_SL}, v46")
    pollset(e, f"{name}_ps", 46, 32)
    e.l += (txt[i2:i3] + "s_barrier").split("\n")
    e("s_and_b32 s26, s2, 1"); e("s_lshr_b32 s27, s2, 1"); e("s_and_b32 s27, s27, 7"); e("s_lshr_b32 s28, s2, 4")
    e("s_cmp_eq_u32 s26, 0"); e("s_cselect_b32 s48, s92, s94"); e("s_cselect_b32 s49, s93, s95"); e("s_and_b32 s49, s49, 0xffff"); e("s_mov_b32 s50, 819200"); e("s_mov_b32 s51, 0x20000")
    e("s_mul_i32 s28, s28, 400"); e("s_mul_i32 s29, s3, 100"); e("s_add_u32 s28, s28, s29")
    e("s_mul_i32 s29, s27, 160")
    e("s_lshl_b32 s30, s26, 3"); e("s_add_u32 s30, s30, s27"); e("s_mul_i32 s30, s30, 102400"); e(f"s_add_u32 s30, s30, {WS_WOI}")
    for j in range(2):
        t_ = 8 + 8*j
        e(f"v_add_u32 v{t_}, s28, v2")
        if j: e(f"v_add_u32 v{t_}, 64, v{t_}")
        e(f"v_mul_u32_u24 v{t_+1}, 6554, v{t_}"); e(f"v_lshrrev_b32 v{t_+1}, 16, v{t_+1}")
        e(f"v_mul_u32_u24 v{t_+2}, 10, v{t_+1}"); e(f"v_sub_u32 v{t_+2}, v{t_}, v{t_+2}")
        e(f"v_and_b32 v{t_+3}, 0xfffffff3, v{t_+1}"); e(f"v_and_b32 v{t_+4}, 4, v{t_+1}"); e(f"v_lshlrev_b32 v{t_+4}, 1, v{t_+4}")
        e(f"v_and_b32 v{t_+5}, 8, v{t_+1}"); e(f"v_lshrrev_b32 v{t_+5}, 1, v{t_+5}"); e(f"v_or3_b32 v{t_+3}, v{t_+3}, v{t_+4}, v{t_+5}")
        e(f"v_mul_u32_u24 v{t_+3}, 1280, v{t_+3}"); e(f"v_lshl_add_u32 v{t_+3}, v{t_+2}, 4, v{t_+3}")
        e(f"v_lshlrev_b32 v{t_}, 4, v{t_}")
        if j:
            e("v_cmp_gt_u32 vcc, 36, v2"); e("v_mov_b32 v7, 0x7f000000"); e("s_nop 0")
            e(f"v_cndmask_b32 v{t_+3}, v7, v{t_+3}, vcc"); e(f"v_cndmask_b32 v{t_}, v7, v{t_}, vcc")
        e(f"buffer_load_dwordx4 v[{24+4*j}:{27+4*j}], v{t_+3}, s[48:51], s29 offen")
    e("s_waitcnt vmcnt(0)")
    for j in range(2): e(f"buffer_store_dwordx4 v[{24+4*j}:{27+4*j}], v{8+8*j}, s[8:11], s30 offen")
    e("s_waitcnt vmcnt(0)")
    e.label(f"{name}_he1")
    e("s_barrier")
    e("s_cmp_lg_u32 s3, 0"); e(f"s_cbranch_scc1 {name}_nwf")
    e("s_lshl_b32 s29, s2, 7"); e(f"s_add_u32 s29, s29, {FLG_W}")
    setflag(e, 29)
    e.label(f"{name}_nwf")
    e("s_barrier")
    e(f"v_mov_b32 v4, {L_FLAG}"); e("ds_read_b128 v[8:11], v4"); e("s_waitcnt lgkmcnt(0)")
    e("v_or3_b32 v8, v8, v9, v10"); e("v_or_b32 v8, v8, v11"); e("s_nop 1"); e("v_readfirstlane_b32 s26, v8")
    e("s_cmp_eq_u32 s26, 0"); e(f"s_cbranch_scc1 {name}_hf2")
    e("s_barrier")
    e(f"s_branch {name}_he1")
    e.label(f"{name}_hf2")
    p3pre()
    e("s_barrier")
    e("s_setprio 0")

def p2_compute(e, name, ST):
    K = k2r
    QA, QB, S, P, KV, L16, L8, A16, A8, T0 = K.QA, K.QB, K.S, K.P, K.KV, K.L16, K.L8, K.A16, K.A8, K.T0
    e(f"s_mov_b32 s3, s{SW}")
    p2_common(e)
    e("s_mov_b32 s101, 0")
    e(f"s_mul_i32 s22, s3, {K.RING_W}"); e(f"s_add_u32 s21, s22, {K.RING_W}"); e("s_mov_b32 s20, s22")
    e(f"v_add_u32 v{A16}, s20, v{L16}"); e(f"v_add_u32 v{A8}, s20, v{L8}")
    for r in range(128): e(f"v_mov_b32 v{128+r}, 0")
    for r in range(8): e(f"v_mov_b32 v{P+r}, 0")
    for r in range(4): e(f"v_mov_b32 v{KV(1)[2]+r}, 0")
    e(f"v_add_u32 v{T0+2}, {K.LDS_Q}, v{L16}")
    e(f"v_and_b32 v{T0+3}, 31, v2"); e(f"v_lshlrev_b32 v{T0+3}, 4, v{T0+3}"); e("v_lshrrev_b32 v3, 5, v2"); e(f"v_lshl_add_u32 v{T0+3}, v3, 3, v{T0+3}"); e(f"v_add_u32 v{T0+3}, {K.LDS_Q+1024}, v{T0+3}")
    e(f"v_add_u32 v3, {L_KM}, v{L8}")
    e("s_barrier")
    e("s_cmp_eq_u32 s40, 0"); e(f"s_cbranch_scc1 {name}_nb0w")
    e("s_waitcnt vmcnt(0)")
    e.label(f"{name}_nb0w")
    e("s_barrier")
    k = T0
    e(f"ds_read_b64 v[{T0}:{T0+1}], v3")
    K.ldk(e, 0); K.ldv(e, 0)
    for u in range(8):
        e(f"ds_read_b128 {vr(QA(u),4)}, v{T0+2} offset:{u*K.QT_B}")
        e(f"ds_read_b64 {vr(QB(u),2)}, v{T0+3} offset:{u*K.QT_B}")
    K.adv(e)
    e("s_waitcnt lgkmcnt(0)")
    e(f"v_max_f32 v{k}, v{k}, v{k+1}")
    for sh in ("row_shr:1", "row_shr:2", "row_shr:4", "row_shr:8", "row_bcast:15 row_mask:0xa", "row_bcast:31 row_mask:0xc"):
        e("s_nop 1")
        if "mask" in sh: e(f"v_max_f32_dpp v{k}, v{k}, v{k} {sh} bank_mask:0xf")
        else: e(f"v_max_f32_dpp v{k}, v{k}, v{k} {sh} row_mask:0xf bank_mask:0xf")
    e("s_nop 1")
    e(f"v_readlane_b32 s24, v{k}, 63")
    e(f"v_cmp_gt_u32 vcc, 32, v2")
    e("s_nop 1")
    e(f"v_mov_b32 v{k}, s24")
    e(f"v_sqrt_f32 v{k}, v{k}")
    e("s_nop 0")
    e(f"v_mul_f32 v{k}, 0x3f808312, v{k}")
    for u in range(8):
        t = T0 + 2 + (u % 2)
        e(f"v_mul_f32 v{t}, v{k}, v{QB(u)}")
        e(f"v_add_u32 v{t}, 0xffff, v{t}")
        e(f"v_lshrrev_b32 v{t}, 16, v{t}")
        e(f"v_or_b32 v{t}, 0x8000, v{t}")
        e(f"v_cndmask_b32 v{QB(u)}, v{t}, v{QB(u)}, vcc")
    ST.mark(e)
    e("s_nop 1")
    K.m1(e, 0); K.m2(e, 0)
    e("s_mov_b32 s25, 8")
    e(".p2align 6")
    e.label(f"{name}_loop")
    for n in range(16):
        u = n % 8; p = n // 8
        if u == 0 and p == 1:
            e("s_bitcmp1_b32 s25, 0"); e(f"s_cbranch_scc1 {name}_nobar"); e("s_barrier"); e.label(f"{name}_nobar")
        if u == 7: e("s_waitcnt lgkmcnt(0)")
        K.m1(e, n+1); K.ex(e, n, 0, 4); K.pv(e, n-1, 1); K.ex(e, n, 4, 8); K.m2(e, n+1); K.cv(e, n, 0, 4)
        if u == 1: K.ldk(e, 1-p); K.ldv(e, 1-p)
        if u == 2: K.adv(e)
        K.ex(e, n, 8, 12); K.pv(e, n, 0); K.ex(e, n, 12, 16); K.cv(e, n, 4, 8)
    e("s_sub_u32 s25, s25, 1"); e("s_cmp_lg_u32 s25, 0"); e(f"s_cbranch_scc1 {name}_loop")
    ST.mark(e)
    e("s_nop 1")
    K.pv(e, 15, 1)
    e.label(f"{name}_epi")
    e("s_nop 15"); e("s_nop 3")
    wa = 104; OWN = 4; RD = 28
    e(f"s_mul_i32 s26, s3, {K.RING_W}")
    e(f"v_add_u32 v{wa}, s26, v{L16}")
    for w in range(4):
        e(f"s_cmp_lg_u32 s3, {w}"); e(f"s_cbranch_scc1 {name}_own{w}")
        for u in range(8):
            if u // 2 == w: continue
            for i in range(3): e(f"ds_write_b128 v{wa}, {vr(128+16*u+4*i,4)} offset:{(u*3+i)*1024}")
        for h in range(2):
            for r in range(12): e(f"v_mov_b32 v{OWN+12*h+r}, v{128+16*(2*w+h)+r}")
        e.label(f"{name}_own{w}")
    for d in range(1, 4):
        e(f"s_add_u32 s27, s3, {d}"); e("s_and_b32 s27, s27, 3")
        e(f"s_mul_i32 s27, s27, {K.RING_W}"); e(f"s_mul_i32 s28, s3, {2*3*1024}"); e("s_add_u32 s27, s27, s28")
        e(f"v_add_u32 v{104+d}, s27, v{L16}")
    e("v_and_b32 v3, 31, v2"); e("v_lshrrev_b32 v119, 5, v2")
    e("v_mul_u32_u24 v3, 320, v3"); e("v_lshl_add_u32 v3, v119, 3, v3")
    e(f"s_mul_i32 s27, s3, 80"); e(f"s_add_u32 s27, s27, {K.LDS_OUT}")
    oa = 108
    e(f"v_add_u32 v{oa}, s27, v3")
    e("s_waitcnt lgkmcnt(0)")
    e("s_barrier")
    for d in range(1, 4):
        for i in range(6): e(f"ds_read_b128 {vr(RD+24*(d-1)+4*i,4)}, v{104+d} offset:{i*1024}")
    for d in range(1, 4):
        e(f"s_waitcnt lgkmcnt({6*(3-d)})")
        for r in range(24): e(f"v_add_f32 v{OWN+r}, v{OWN+r}, v{RD+24*(d-1)+r}")
    for h in range(2):
        o = OWN + 12*h; l = 110+2*h
        e(f"v_mov_b32 v{l}, v{o+8}"); e(f"v_mov_b32 v{l+1}, v{o+8}")
    e("s_nop 1")
    for h in range(2): e(f"v_permlane32_swap_b32 v{110+2*h}, v{110+2*h+1}")
    e("s_nop 1")
    e("s_mov_b32 s27, 0x1f800000")
    e("v_cmp_nle_f32 vcc, s27, v111"); e("v_cmp_nle_f32 s[28:29], s27, v113"); e("s_nop 1"); e("s_or_b64 s[28:29], s[28:29], vcc")
    e("s_cmp_lg_u64 s[28:29], 0"); e("s_cselect_b32 s27, 1, 0"); e("s_cmp_eq_u32 s101, 0"); e("s_cselect_b32 s27, s27, 0")
    e(f"s_lshl_b32 s28, s3, 2"); e(f"s_add_u32 s28, s28, {L_FLAG}"); e("v_mov_b32 v114, s28"); e("v_mov_b32 v115, s27"); e("ds_write_b32 v114, v115")
    for h in range(2): e(f"v_rcp_f32 v{110+2*h}, v{110+2*h+1}")
    e("s_nop 0")
    for h in range(2):
        o = OWN + 12*h; l = 110+2*h
        for r in range(12): e(f"v_mul_f32 v{o+r}, v{o+r}, v{l}")
        for i in range(6): e(f"v_cvt_pk_bf16_f32 v{RD+6*h+i}, v{o+2*i}, v{o+2*i+1}")
        e(f"ds_write_b64 v{oa}, {vr(RD+6*h,2)} offset:{40*h}")
        e(f"ds_write_b64 v{oa}, {vr(RD+6*h+2,2)} offset:{40*h+16}")
    e("s_mov_b64 exec, s[38:39]")
    for h in range(2): e(f"ds_write_b64 v{oa}, {vr(RD+6*h+4,2)} offset:{40*h+32}")
    e("s_mov_b64 exec, -1")
    e("s_lshr_b32 s12, s2, 2"); e(f"s_mul_i32 s12, s12, {32*1280}"); e("s_and_b32 s13, s2, 3"); e("s_mul_i32 s13, s13, 320"); e("s_add_u32 s12, s12, s13")
    e(f"s_add_u32 s12, s12, {WS_OA}")
    for j in range(3):
        t = 110+3*j
        e(f"s_mul_i32 s27, s3, 192"); e(f"s_add_u32 s27, s27, {64*j}")
        e(f"v_add_u32 v{t}, s27, v2")
        e(f"v_mul_u32_u24 v{t+2}, 3277, v{t}"); e(f"v_lshrrev_b32 v{t+2}, 16, v{t+2}")
        e(f"v_mul_u32_u24 v{t+1}, 20, v{t+2}"); e(f"v_sub_u32 v{t+1}, v{t}, v{t+1}")
        e(f"v_mul_u32_u24 v{t+2}, 1280, v{t+2}"); e(f"v_lshl_add_u32 v{t+2}, v{t+1}, 4, v{t+2}")
        e(f"v_lshlrev_b32 v{t+1}, 4, v{t}"); e(f"v_add_u32 v{t+1}, {K.LDS_OUT}, v{t+1}")
        e(f"v_cmp_gt_u32 vcc, 640, v{t}"); e("v_mov_b32 v3, 0x7f000000"); e("s_nop 0"); e(f"v_cndmask_b32 v{t+2}, v3, v{t+2}, vcc")
    e(f"v_mov_b32 v119, {L_FLAG}")
    e("s_waitcnt lgkmcnt(0)")
    e("s_barrier")
    e("ds_read_b128 v[100:103], v119")
    for j in range(3): e(f"ds_read_b128 {vr(RD+4*j,4)}, v{110+3*j+1}")
    e("s_waitcnt lgkmcnt(3)")
    e("v_or3_b32 v100, v100, v101, v102"); e("v_or_b32 v100, v100, v103"); e("s_nop 1"); e("v_readfirstlane_b32 s26, v100")
    e("s_cmp_lg_u32 s26, 0"); e(f"s_cbranch_scc1 {name}_fb")
    e("s_waitcnt lgkmcnt(0)")
    for j in range(3): e(f"buffer_store_dwordx4 {vr(RD+4*j,4)}, v{110+3*j+2}, s[8:11], s12 offen")
    e("s_waitcnt vmcnt(0)")
    ST.mark(e)
    e("s_barrier")

def p2_fallback(e, name):
    K = k2r
    QA, QB, S, P, KV, L16, L8 = K.QA, K.QB, K.S, K.P, K.KV, K.L16, K.L8
    e.label(f"{name}_fb")
    e("s_mov_b32 s101, 1")
    e("s_waitcnt lgkmcnt(0)")
    e("s_lshr_b32 s12, s2, 2"); e("s_lshl_b32 s12, s12, 5"); e("s_and_b32 s13, s2, 3"); e("s_lshl_b32 s13, s13, 3"); e("s_add_u32 s12, s12, s13")
    e(f"s_mul_i32 s12, s12, {K.QT_B}"); e(f"s_add_u32 s12, s12, {WS_Q}")
    e("v_and_b32 v3, 31, v2"); e("v_lshlrev_b32 v3, 4, v3"); e("v_add_u32 v3, 1024, v3")
    for u in range(8):
        e(f"buffer_load_dwordx4 {vr(QA(u),4)}, v{L16}, s[8:11], s12 offen")
        e(f"buffer_load_dwordx2 {vr(QB(u),2)}, v3, s[8:11], s12 offen")
        e(f"s_add_u32 s12, s12, {K.QT_B}")
    e("s_waitcnt vmcnt(0)")
    e("v_cmp_gt_u32 vcc, 32, v2"); e("s_nop 1")
    for u in range(8):
        e(f"v_cndmask_b32 v{QB(u)}, 0, v{QB(u)}, vcc"); e(f"v_cndmask_b32 v{QB(u)+1}, 0, v{QB(u)+1}, vcc")
    MX = 110
    for u in range(8): e(f"v_mov_b32 v{MX+u}, 0xff800000")
    e(f"s_mul_i32 s20, s3, {16*K.TILE_B}"); e(f"s_add_u32 s20, s20, {WS_KV}"); e("s_mov_b32 s25, 16")
    e.label(f"{name}_fb1")
    ka, v0, v1, kb = KV(0)
    e(f"buffer_load_dwordx4 {vr(ka,4)}, v{L16}, s[8:11], s20 offen"); e(f"buffer_load_dwordx2 {vr(kb,2)}, v{L8}, s[8:11], s20 offen offset:3072")
    e("s_waitcnt vmcnt(0)")
    for u in range(8):
        e(f"v_mfma_f32_32x32x16_bf16 {vr(S[0],16)}, {vr(ka,4)}, {vr(QA(u),4)}, 0")
        e(f"v_mfma_f32_32x32x8_bf16 {vr(S[0],16)}, {vr(kb,2)}, {vr(QB(u),2)}, {vr(S[0],16)}")
        e("s_nop 15"); e("s_nop 7")
        for i in range(8): e(f"v_max3_f32 v{MX+u}, v{MX+u}, v{S[0]+2*i}, v{S[0]+2*i+1}")
        e("s_nop 7")
    e(f"s_add_u32 s20, s20, {K.TILE_B}"); e("s_sub_u32 s25, s25, 1"); e("s_cmp_lg_u32 s25, 0"); e(f"s_cbranch_scc1 {name}_fb1")
    for u in range(8):
        e(f"v_mov_b32 v3, v{MX+u}"); e("s_nop 1"); e(f"v_permlane32_swap_b32 v{MX+u}, v3"); e("s_nop 1"); e(f"v_max_f32 v{MX+u}, v{MX+u}, v3")
    e(f"s_mul_i32 s26, s3, {K.RING_W}"); e("v_lshlrev_b32 v3, 2, v2"); e("v_add_u32 v108, s26, v3")
    for u in range(8): e(f"ds_write_b32 v108, v{MX+u} offset:{256*u}")
    e("s_waitcnt lgkmcnt(0)")
    e("s_barrier")
    for w in range(4):
        e(f"v_add_u32 v109, {w*K.RING_W}, v3")
        for u in range(8): e(f"ds_read_b32 v{S[0]+8*w+u}, v109 offset:{256*u}")
    e("s_waitcnt lgkmcnt(0)")
    e("v_cmp_gt_u32 vcc, 32, v2")
    for u in range(8):
        a = S[0] + u
        e(f"v_max3_f32 v{a}, v{a}, v{a+8}, v{a+16}"); e(f"v_max_f32 v{a}, v{a}, v{a+24}")
        e(f"v_and_b32 v3, 0xffff0000, v{a}")
        e(f"v_sub_f32 v109, v{a}, v3")
        e(f"v_cvt_pk_bf16_f32 v109, v3, v109")
        e(f"v_xor_b32 v109, 0x80008000, v109")
        e(f"v_cndmask_b32 v{QB(u)}, v109, v{QB(u)}, vcc")
    for r in range(128): e(f"v_mov_b32 v{128+r}, 0")
    e(f"s_mul_i32 s20, s3, {16*K.TILE_B}"); e(f"s_add_u32 s20, s20, {WS_KV}"); e("s_mov_b32 s25, 16")
    e.label(f"{name}_fb2")
    e(f"buffer_load_dwordx4 {vr(ka,4)}, v{L16}, s[8:11], s20 offen"); e(f"buffer_load_dwordx2 {vr(kb,2)}, v{L8}, s[8:11], s20 offen offset:3072")
    e(f"buffer_load_dwordx4 {vr(v0,4)}, v{L16}, s[8:11], s20 offen offset:1024"); e(f"buffer_load_dwordx4 {vr(v1,4)}, v{L16}, s[8:11], s20 offen offset:2048")
    e("s_waitcnt vmcnt(0)")
    for u in range(8):
        e(f"v_mfma_f32_32x32x16_bf16 {vr(S[0],16)}, {vr(ka,4)}, {vr(QA(u),4)}, 0")
        e(f"v_mfma_f32_32x32x8_bf16 {vr(S[0],16)}, {vr(kb,2)}, {vr(QB(u),2)}, {vr(S[0],16)}")
        e("s_nop 15"); e("s_nop 7")
        for r in range(16): e(f"v_exp_f32 v{S[0]+r}, v{S[0]+r}")
        e("s_nop 1")
        for i in range(8): e(f"v_cvt_pk_bf16_f32 v{P+i}, v{S[0]+2*i}, v{S[0]+2*i+1}")
        e("s_nop 1")
        e(f"v_mfma_f32_32x32x16_bf16 {vr(128+16*u,16)}, {vr(v0,4)}, {vr(P,4)}, {vr(128+16*u,16)}")
        e(f"v_mfma_f32_32x32x16_bf16 {vr(128+16*u,16)}, {vr(v1,4)}, {vr(P+4,4)}, {vr(128+16*u,16)}")
        e("s_nop 7")
    e(f"s_add_u32 s20, s20, {K.TILE_B}"); e("s_sub_u32 s25, s25, 1"); e("s_cmp_lg_u32 s25, 0"); e(f"s_cbranch_scc1 {name}_fb2")
    e(f"s_branch {name}_epi")

def p3_ids(e):
    e("s_and_b32 s40, s2, 1")
    e("s_lshr_b32 s41, s2, 1"); e("s_and_b32 s41, s41, 3"); e("s_lshl_b32 s41, s41, 2")
    e("s_lshr_b32 s42, s2, 3"); e("s_and_b32 s43, s42, 3"); e("s_add_u32 s41, s41, s43")
    e("s_lshr_b32 s42, s42, 2")
    e("s_movk_i32 s44, 1280")

def p3_loader_parts(e, G3, name, H):
    K = k3
    STG = K.STG_B
    def kc(i, dst):
        e(f"s_add_u32 s{dst}, s23, {i}"); e(f"s_cmp_ge_u32 s{dst}, 5"); e(f"s_cselect_b32 s49, 5, 0"); e(f"s_sub_u32 s{dst}, s{dst}, s49")
    def wpart(i):
        kc(i, 27); e("s_mul_i32 s29, s27, s22"); e("s_add_u32 s29, s29, s21"); e(f"s_add_u32 s31, s25, {(i % 3)*STG}")
        G3.dma_wlin(e, 29, 31, "s[12:15]")
    def xpart(i):
        kc(i, 27); e("s_lshl_b32 s28, s27, 7"); e("s_add_u32 s28, s28, s20"); e(f"s_add_u32 s31, s24, {(i % 3)*STG}")
        e("s_mov_b32 m0, s31")
        for j in range(8):
            e("s_nop 0" if j == 0 else "s_add_u32 m0, m0, 1024")
            if j: e("s_nop 0")
            e(f"buffer_load_dwordx4 v{G3.VOX+j}, s[8:11], s28 offen lds")
    def pre():
        p3_ids(e)
        G3.loader_setup(e, 44)
        e("s_lshr_b32 s45, s3, 1"); e("s_and_b32 s46, s3, 1")
        e("s_lshl_b32 s20, s41, 7"); e("s_lshl_b32 s49, s46, 6"); e("s_add_u32 s20, s20, s49"); e("s_mul_i32 s20, s20, 1280"); e("s_mul_i32 s49, s45, 640"); e("s_add_u32 s20, s20, s49")
        e(f"s_mov_b32 s49, {WS_OB}"); e("s_cmp_eq_u32 s40, 0"); e(f"s_cselect_b32 s49, {WS_OA}, s49"); e("s_add_u32 s20, s20, s49")
        e("s_mul_i32 s21, s45, 320"); e("s_lshl_b32 s49, s46, 5"); e("s_add_u32 s21, s21, s49"); e("s_mul_i32 s21, s21, 160")
        e("s_lshl_b32 s49, s40, 3"); e("s_add_u32 s49, s49, s42"); e("s_mul_i32 s49, s49, 102400"); e("s_add_u32 s21, s21, s49"); e(f"s_add_u32 s21, s21, {WS_WOI}")
        e(f"s_mov_b32 s22, {64*160}")
        e("s_lshl_b32 s24, s45, 14"); e("s_lshl_b32 s49, s46, 13"); e("s_add_u32 s24, s24, s49")
        e("s_mul_i32 s25, s45, 10240"); e("s_mul_i32 s49, s46, 5120"); e("s_add_u32 s25, s25, s49"); e(f"s_add_u32 s25, s25, {K.W_OFF}")
        e("s_add_u32 s23, s42, s43"); e("s_mul_i32 s49, s23, 52"); e("s_lshr_b32 s49, s49, 8"); e("s_mul_i32 s49, s49, 5"); e("s_sub_u32 s23, s23, s49")
        make_srd(e, 12, 4, WS_BYTES)
        e("s_lshl_b32 s30, s42, 1"); e("s_add_u32 s30, s30, s40"); e("v_lshlrev_b32 v46, 4, v1"); e("v_add_u32 v46, s30, v46"); e("v_lshlrev_b32 v46, 7, v46"); e(f"v_add_u32 v46, {FLG_W}, v46")
        pollset(e, f"{name}_pw", 46, 16)
        for i in range(3): wpart(i)
    def post():
        e(f"s_sub_u32 s3, s{SW}, 4")
        e("s_cmp_lg_u32 s3, 0"); e(f"s_cbranch_scc1 {name}_l0a")
        e("s_lshl_b32 s29, s2, 7"); e(f"s_add_u32 s29, s29, {FLG_O}")
        setflag(e, 29)
        e.label(f"{name}_l0a")
        e("s_cmp_lg_u32 s3, 0"); e(f"s_cbranch_scc1 {name}_l0b")
        e("s_lshl_b32 s30, s41, 4"); e("v_add_u32 v46, s30, v1"); e("v_lshlrev_b32 v46, 7, v46"); e(f"v_add_u32 v46, {FLG_O}, v46")
        pollset(e, f"{name}_po", 46, 16)
        e.label(f"{name}_l0b")
        e("s_barrier")
        xpart(0)
        e("s_waitcnt vmcnt(0)")
        e("s_barrier")
        xpart(1); xpart(2)
        e("s_waitcnt vmcnt(8)"); e("s_barrier"); xpart(3); wpart(3)
        e("s_waitcnt vmcnt(13)"); e("s_barrier"); xpart(4); wpart(4)
        e("s_waitcnt vmcnt(13)"); e("s_barrier")
        e("s_waitcnt vmcnt(0)"); e("s_barrier")
        e("s_barrier")
        if H.en and not os.environ.get("DBGOUT"):
            H.flush(e, 40, SW, "s[8:11]")
        e("s_endpgm")
    return pre, post

def p3_compute(e, G3, name, ST):
    K = k3
    e(f"s_mov_b32 s3, s{SW}")
    p3_ids(e)
    e("s_and_b32 s49, s3, 1"); e("s_lshl_b32 s50, s49, 14"); e("s_lshr_b32 s51, s3, 1"); e("s_lshl_b32 s51, s51, 13"); e("s_add_u32 s50, s50, s51")
    e("s_mul_i32 s51, s49, 10240"); e(f"s_add_u32 s51, s51, {K.W_OFF}")
    G3.compute_setup(e, 50, 51)
    e("s_barrier")
    G3.compute_main(e, name + "_p3", ST)
    ST.mark(e)
    t = E(); t.sf = ""
    k3.epilogue(t, G3, name, 90)
    e.l += t.l

def gen(e, name):
    G = Gemm(k1.STG_B, k1.NSTG, 10, 4); G.XROLE = 1
    G3 = Gemm(k3.STG_B, k3.NSTG, 5, 8, pf=1); G3.WLIN = True
    S1 = S2 = S3 = RStamps(STEN); H = RStamps(STEN); S1.main = True
    k1.ST.en = False; k1.DIAG = False
    kernel_header(e, name)
    e("s_cmp_ge_u32 s2, 256")
    e(f"s_cbranch_scc1 {name}_end")
    e("s_load_dwordx4 s[32:35], s[0:1], 0")
    e("s_load_dwordx4 s[36:39], s[0:1], 40")
    e("s_load_dwordx4 s[84:87], s[0:1], 16")
    e("s_load_dwordx2 s[88:89], s[0:1], 56")
    e("s_load_dwordx2 s[4:5], s[0:1], 88")
    e("s_load_dwordx2 s[6:7], s[0:1], 80")
    e("s_load_dwordx2 s[90:91], s[0:1], 72")
    e("s_load_dwordx2 s[92:93], s[0:1], 32")
    e("s_load_dwordx2 s[94:95], s[0:1], 64")
    S1.mark(e)
    e("v_lshrrev_b32 v2, 6, v0"); e("v_and_b32 v1, 63, v0")
    p1_ids(e)
    e(f"v_readfirstlane_b32 s{SW}, v2")
    e("s_nop 3")
    e(f"s_cmp_lt_u32 s{SW}, 4"); e(f"s_cbranch_scc1 {name}_compute")
    e.sf = WT
    p1_loader(e, G, name)
    p2_helper(e, name, H)
    p3pre, p3post = p3_loader_parts(e, G3, name, H)
    p2_helper_rest(e, name, p3pre)
    p3post()
    e.label(f"{name}_compute")
    p1_compute(e, G, name, S1)
    S2.mark(e)
    p2_compute(e, name, S2)
    S3.mark(e)
    p3_compute(e, G3, name, S3)
    S3.mark(e)
    if STEN and os.environ.get("DBGOUT"):
        e(f"s_cmp_lg_u32 s2, {os.environ['DBGOUT']}"); e(f"s_cbranch_scc1 {name}_nodbg"); e(f"s_cmp_lg_u32 s{SW}, 0"); e(f"s_cbranch_scc1 {name}_nodbg")
        e("s_waitcnt lgkmcnt(0) vmcnt(0)")
        make_srd(e, 16, 6, 256)
        e("s_mov_b64 exec, 1"); e("v_mov_b32 v174, 0")
        for i in range(12):
            e(f"s_sub_u32 s96, s{60+2*i}, s60"); e("v_mov_b32 v175, s96")
            e(f"buffer_store_dword v175, v174, s[16:19], 0 offen offset:{4*i}"); e("s_nop 1")
        e("s_waitcnt vmcnt(0)")
        e.label(f"{name}_nodbg")
    elif STEN:
        make_srd(e, 16, 4, WS_BYTES)
        S3.flush(e, 174, SW, "s[16:19]")
    e("s_endpgm")
    p1_other_roles(e, G, name)
    p2_fallback(e, name)
    e.label(f"{name}_end")
    e("s_endpgm")
    return 256, LDS_MEGA

def build(path):
    hdr = open("cdna_kernels/%s.s.ref" % NAME).read().split("\n")
    top = [l for l in hdr if l.startswith(";") and "@launch" not in l]
    name = NAME + "_kernel"
    e = E()
    nv, lds = gen(e, name)
    out = top + [f"; @launch grid=(256,1,1) block=(512,1,1) lds={lds}", '.amdgcn_target "amdgcn-amd-amdhsa--gfx950"', ".text", e.text(), '.section .rodata,"a"', kernel_desc(name, nv)]
    open(path, "w").write("\n".join(out))
if __name__ == "__main__":
    import sys
    build(sys.argv[1] if len(sys.argv) > 1 else "mega.s")
```
